```python
import torch

def _softmax(x, axis=-1):
    return torch.softmax(x, dim=axis)
def _gelu(x):
    return torch.nn.functional.gelu(x, approximate="tanh")
def _silu(x):
    return torch.nn.functional.silu(x)
def _sigmoid(x):
    return torch.sigmoid(x)
def _layernorm(x, axis=-1, eps=1e-5):
    m = x.mean(dim=axis, keepdim=True)
    v = x.var(dim=axis, keepdim=True, unbiased=False)
    return (x - m) / torch.sqrt(v + eps)
def _scatter_add(tgt, idx, src, axis=0):
    return tgt.clone().index_add_(axis, idx, src)
def _segment_sum(src, seg, n):
    out = torch.zeros((n,) + src.shape[1:], dtype=src.dtype)
    return out.index_add_(0, seg, src)
def _pad(x, pw):
    flat = tuple(v for pair in reversed(pw) for v in pair)
    return torch.nn.functional.pad(x, flat)

kernel_name = 'recurrent_scan__mha_block_cached__glu_gated_reglu__decode'

def setup_inputs():

    _w = (lambda a: (lambda t: t.to(torch.bfloat16) if t.is_floating_point() else t)(torch.as_tensor(a)))
    def _A_setup():
        B, Sq, D = 1, 1, 640
        H, Sk, Dh = 32, 32768, 128
        return {
            "x": _w((lambda *s: torch.randn(*s, dtype=torch.bfloat16) * 0.4)(B, Sq, D)),
            "k_cache": _w((lambda *s: torch.randn(*s, dtype=torch.bfloat16) * 1.6)(B, H, Sk, Dh)),
            "v_cache": _w((lambda *s: torch.randn(*s, dtype=torch.bfloat16) * 1.6)(B, H, Sk, Dh)),
            "wq": _w((lambda *s: torch.randn(*s, dtype=torch.bfloat16) * 1.6)(D, H * Dh) * (D ** -0.5)),
            "wo": _w((lambda *s: torch.randn(*s, dtype=torch.bfloat16) * 1.6)(H * Dh, D) * ((H * Dh) ** -0.5)),
        }
    _A_in = _A_setup()

    def _B_setup():
        B, S, D, F = 1, 1, 640, 1728
        return {
            "x": _w((lambda *s: torch.randn(*s, dtype=torch.bfloat16) * 0.4)(B, S, D)),
            "W_gate": _w((lambda *s: torch.randn(*s, dtype=torch.bfloat16) * 1.6)(D, F) * (2.0 / D) ** 0.5),
            "W_up": _w((lambda *s: torch.randn(*s, dtype=torch.bfloat16) * 1.6)(D, F) * (2.0 / D) ** 0.5),
            "W_down": _w((lambda *s: torch.randn(*s, dtype=torch.bfloat16) * 1.6)(F, D) * (1.0 / F) ** 0.5),
        }
    _B_in = _B_setup()

    return {
        "A_x": _A_in["x"],
        "A_k_cache": _A_in["k_cache"],
        "A_v_cache": _A_in["v_cache"],
        "A_wq": _A_in["wq"],
        "A_wo": _A_in["wo"],
        "B_x": _B_in["x"],
        "B_W_gate": _B_in["W_gate"],
        "B_W_up": _B_in["W_up"],
        "B_W_down": _B_in["W_down"],
    }

def reference(A_x, A_k_cache, A_v_cache, A_wq, A_wo, B_x, B_W_gate, B_W_up, B_W_down):
    def _A_ref(x, k_cache, v_cache, wq, wo):
        B, Sq, D = x.shape
        H, Dh = 32, 128
        q = (lambda x, *d: x.permute(*d))((x @ wq).reshape(B, Sq, H, Dh), 0, 2, 1, 3)
        scores = torch.einsum("bhqd,bhkd->bhqk", q, k_cache) * (Dh ** -0.5)
        p = _softmax(scores, axis=-1)
        o = torch.einsum("bhqk,bhkd->bhqd", p, v_cache)
        return (lambda x, *d: x.permute(*d))(o, 0, 2, 1, 3).reshape(B, Sq, H * Dh) @ wo

    def _B_ref(x, W_gate, W_up, W_down):
        gate = torch.einsum("bsd,df->bsf", x, W_gate)
        up = torch.einsum("bsd,df->bsf", x, W_up)
        gate = gate * (lambda x, dt: x.to(dt))(gate > 0, gate.dtype)
        h = gate * up
        return torch.einsum("bsf,fd->bsd", h, W_down)

    x = A_x
    xn = _layernorm(x, axis=-1)
    s = _A_ref(xn, A_k_cache, A_v_cache, A_wq, A_wo)
    g = _silu(_B_ref(xn, B_W_gate, B_W_up, B_W_down))
    return x + s * g
```

```python
import sys

NAME = "recurrent_scan__mha_block_cached__glu_gated_reglu__decode"

WS_U = 0
WS_ML = 0xA0000
WS_GP = 0xA1000
WS_SIZE = 0x200000
WS_STAMP = 0x100000
L_SC = 64
L_QP = 16640
L_OA = L_QP + 2560
L_MW = L_OA + 8 * 272
L_CNT = L_MW + 16
L_LL = L_CNT + 16
L_H = L_LL + 1024
L_END = L_H + 256
NFFN = 27
CONS0 = 96
LOG2E = 0x3fb8aa3b
SCALE = 0x3db504f3
DPPF = "row_mask:0xf bank_mask:0xf"


class Gen:
    def __init__(self, D=5, D0=None, diag=False, wflag="nt", woflag="nt", fflag="nt", wo_early=True, rot=2):
        self.L = []
        self.D = D
        self.D0 = D0 if D0 is not None else D
        self.diag = diag
        self.wflag = wflag
        self.woflag = woflag
        self.fflag = fflag
        self.wo_early = wo_early
        self.rot = rot

    def A(self, s):
        self.L.append("  " + s if not s.endswith(":") else s)

    def nop(self, n):
        while n > 0:
            k = min(n, 16)
            self.A(f"s_nop {k-1}")
            n -= k

    def stamp(self, i):
        if self.diag:
            self.A(f"s_memrealtime s[{70+2*i}:{71+2*i}]")

    def flush_stamps(self, n):
        if not self.diag:
            return
        A = self.A
        A("s_waitcnt lgkmcnt(0)")
        A("s_mov_b64 exec, 1")
        A("s_mov_b32 s60, s38"); A("s_mov_b32 s61, s39"); A(f"s_mov_b32 s62, {WS_SIZE}"); A("s_mov_b32 s63, 0x20000")
        A("s_lshl_b32 s64, s2, 4"); A("s_add_u32 s64, s64, s3"); A("s_lshl_b32 s64, s64, 6")
        A(f"s_add_u32 s64, s64, {WS_STAMP}")
        A("v_mov_b32 v1, 0")
        for i in range(n):
            A(f"v_mov_b32 v2, s{70+2*i}")
            A(f"buffer_store_dword v2, v1, s[60:63], s64 offen offset:{4*i}")
            A("s_nop 0")

    def exec_lo(self):
        self.A("s_mov_b32 exec_lo, -1")
        self.A("s_mov_b32 exec_hi, 0")

    def srd(self, d, base, size):
        self.A(f"s_mov_b32 s{d}, s{base}")
        self.A(f"s_mov_b32 s{d+1}, s{base+1}")
        self.A(f"s_mov_b32 s{d+2}, {size}")
        self.A(f"s_mov_b32 s{d+3}, 0x20000")

    def masks(self, dst, tmp, st):
        A = self.A
        A(f"v_and_b32 v{tmp}, 1, v0")
        A(f"v_lshlrev_b32 v{tmp}, 4, v{tmp}")
        A(f"v_mov_b32 v{dst}, 0xffff")
        A(f"v_lshlrev_b32 v{tmp}, v{tmp}, v{dst}")
        for r in range(4):
            pat = (3 << (2 * r)) * 0x01010101
            A(f"s_mov_b32 s{st}, {pat:#x}")
            A(f"s_mov_b32 s{st+1}, {pat:#x}")
            A(f"v_cndmask_b32 v{dst+r}, 0, v{tmp}, s[{st}:{st+1}]")

    def wave_reduce(self, op, x, t, rors=(1, 2, 4, 8)):
        A = self.A
        for r in rors:
            self.nop(2)
            A(f"{op}_dpp v{x}, v{x}, v{x} row_ror:{r} {DPPF}")
        for sw in ("v_permlane16_swap_b32", "v_permlane32_swap_b32"):
            A(f"v_mov_b32 v{t}, v{x}")
            self.nop(2)
            A(f"{sw} v{x}, v{t}")
            self.nop(1)
            A(f"{op} v{x}, v{x}, v{t}")

    def reduce4(self, a):
        A = self.A
        self.nop(2)
        A(f"v_permlane32_swap_b32 v{a}, v{a+2}")
        A(f"v_permlane32_swap_b32 v{a+1}, v{a+3}")
        self.nop(1)
        A(f"v_add_f32 v{a}, v{a}, v{a+2}")
        A(f"v_add_f32 v{a+1}, v{a+1}, v{a+3}")
        self.nop(2)
        A(f"v_permlane16_swap_b32 v{a}, v{a+1}")
        self.nop(1)
        A(f"v_add_f32 v{a}, v{a}, v{a+1}")
        for r in (1, 2, 4, 8):
            self.nop(2)
            A(f"v_add_f32_dpp v{a}, v{a}, v{a} row_ror:{r} {DPPF}")

    def bfr(self, d, s):
        self.A(f"v_cvt_pk_bf16_f32 v{d}, v{s}, v{s}")
        self.A(f"v_and_b32 v{d}, 0xffff0000, v{d}")

    def ln_stats(self, vals, m, rinv, t0, t1):
        A = self.A
        A(f"v_add_f32 v{m}, v{vals[0]}, v{vals[1]}")
        for v in vals[2:]:
            A(f"v_add_f32 v{m}, v{m}, v{v}")
        self.wave_reduce("v_add_f32", m, t0)
        A(f"v_mul_f32 v{m}, 0x3acccccd, v{m}")
        A(f"v_sub_f32 v{t0}, v{vals[0]}, v{m}")
        A(f"v_mul_f32 v{rinv}, v{t0}, v{t0}")
        for v in vals[1:]:
            A(f"v_sub_f32 v{t0}, v{v}, v{m}")
            A(f"v_fmac_f32 v{rinv}, v{t0}, v{t0}")
        self.wave_reduce("v_add_f32", rinv, t0)
        A(f"v_mul_f32 v{rinv}, 0x3acccccd, v{rinv}")
        self.bfr(m, m)
        self.bfr(rinv, rinv)
        A(f"v_add_f32 v{rinv}, 0x3727c5ac, v{rinv}")
        self.bfr(rinv, rinv)
        A(f"v_sqrt_f32 v{rinv}, v{rinv}")
        self.nop(1)
        self.bfr(rinv, rinv)
        A(f"v_rcp_f32 v{rinv}, v{rinv}")
        self.nop(1)

    def ln_apply(self, x, m, rinv):
        A = self.A
        A(f"v_sub_f32 v{x}, v{x}, v{m}")
        self.bfr(x, x)
        A(f"v_mul_f32 v{x}, v{x}, v{rinv}")
        A(f"v_cvt_pk_bf16_f32 v{x}, v{x}, v{x}")

    def abuild(self, a, src, mask, j):
        for r in range(4):
            self.A(f"v_and_b32_dpp v{a+r}, v{src}, v{mask+r} row_newbcast:{j} {DPPF}")

    def mfma(self, d, a, b, c):
        cs = "0" if c is None else f"v[{c}:{c+3}]"
        self.A(f"v_mfma_f32_16x16x32_bf16 v[{d}:{d+3}], v[{a}:{a+3}], v[{b}:{b+3}], {cs}")

    def gen(self):
        A = self.A
        D, D0 = self.D, self.D0
        hdr = open("cdna_kernels/" + NAME + ".s.ref").read().split("\n")
        for line in hdr:
            if line.startswith("; @launch"):
                break
            self.L.append(line)
        self.L.append(f"; @launch grid=(256,1,1) block=(640,1,1) lds={L_END}")
        self.L.append('.amdgcn_target "amdgcn-amd-amdhsa--gfx950"')
        self.L.append(".text")
        self.L.append(f".globl {NAME}_kernel")
        self.L.append(".p2align 8")
        self.L.append(f".type {NAME}_kernel,@function")
        self.L.append(f"{NAME}_kernel:")
        A("s_cmp_ge_u32 s2, 256")
        A("s_cbranch_scc0 L_go")
        A("s_endpgm")
        A("L_go:")
        self.stamp(0)
        A("s_load_dwordx16 s[16:31], s[0:1], 0")
        A("s_load_dwordx8 s[32:39], s[0:1], 64")
        A("v_lshrrev_b32 v1, 6, v0")
        A("v_and_b32 v0, 63, v0")
        A("v_readfirstlane_b32 s3, v1")
        A("s_and_b32 s4, s2, 7")
        A("s_lshr_b32 s5, s2, 3")
        A("s_lshl_b32 s4, s4, 2")
        A("s_lshr_b32 s6, s5, 3")
        A("s_add_u32 s4, s4, s6                  ; head")
        A("s_and_b32 s5, s5, 7                   ; chunk")
        A("s_lshl_b32 s6, s4, 3")
        A("s_add_u32 s6, s6, s5")
        A("v_lshrrev_b32 v1, 4, v0               ; s = lane>>4")
        A("v_and_b32 v2, 15, v0                  ; j = lane&15")
        A("s_cmp_ge_u32 s3, 4")
        A("s_cbranch_scc1 L_notstream")
        self.streamer_issue()
        A("s_branch L_streamer")
        A("L_notstream:")
        A("s_cmp_ge_u32 s3, 9")
        A("s_cbranch_scc1 L_aux")
        self.helper()
        self.streamer()
        self.aux()
        self.L.append('.section .rodata,"a"')
        self.L.append(".p2align 6")
        self.L.append(f".amdhsa_kernel {NAME}_kernel")
        for s in ["next_free_vgpr 168", "next_free_sgpr 102", "accum_offset 168", "group_segment_fixed_size 0",
                  "kernarg_size 96", "user_sgpr_count 2", "user_sgpr_kernarg_segment_ptr 1",
                  "system_sgpr_workgroup_id_x 1", "float_denorm_mode_32 3"]:
            self.L.append("  .amdhsa_" + s)
        self.L.append(".end_amdhsa_kernel")
        return "\n".join(self.L) + "\n"

    RING = 64
    def sload(self, n, switch=None):
        A = self.A
        if n % 4 == 0:
            if n % 16 == 0 and switch == "KV":
                A("s_cmp_eq_u32 s15, 15")
                A("s_cselect_b32 s8, s20, s8")
                A("s_cselect_b32 s9, s21, s9")
                A("s_cselect_b64 s[44:45], -1, 0")
                A("v_cndmask_b32 v3, v3, v4, s[44:45]")
            if n % 16 == 0 and switch == "END":
                A("s_cmp_eq_u32 s15, 15")
                A("s_cselect_b32 s10, 0, s10")
            A("s_add_u32 s12, s14, s13")
            A("s_add_u32 s13, s13, 0x20000")
            A("s_and_b32 s13, s13, 0x7fffff")
        sl = self.RING + 4 * (n % 16)
        A(f"buffer_load_dwordx4 v[{sl}:{sl+3}], v3, s[8:11], s12 offen offset:{1024*(n%4)} nt")

    def streamer_issue(self):
        A = self.A
        A("v_lshlrev_b32 v4, 4, v0")
        A("v_and_b32 v3, 48, v4                  ; c*16")
        A("v_lshl_add_u32 v3, v1, 6, v3          ; + s*64")
        A("v_bfe_u32 v5, v0, 2, 2                ; a")
        A("v_lshl_add_u32 v3, v5, 8, v3          ; + a*256")
        A("s_lshl_b32 s14, s4, 23")
        A("s_lshl_b32 s13, s5, 2")
        A("s_add_u32 s13, s13, s3")
        A("s_lshl_b32 s13, s13, 12               ; (4c+w)*4096")
        A(f"s_mul_i32 s7, s4, {self.rot * 0x20000}")
        A("s_add_u32 s13, s13, s7")
        A("s_and_b32 s13, s13, 0x7fffff")
        A("s_waitcnt lgkmcnt(0)")
        self.srd(8, 18, 0x10000000)
        for n in range(self.D0):
            self.sload(n)

    def kpost(self, dreg, G):
        A = self.A
        A(f"v_cndmask_b32 v6, v{dreg}, v{dreg+1}, s[40:41]")
        A(f"v_cndmask_b32 v7, v{dreg+2}, v{dreg+3}, s[40:41]")
        A(f"v_cndmask_b32 v6, v6, v7, s[42:43]")
        self.nop(2)
        A(f"v_add_f32_dpp v6, v6, v6 quad_perm:[1,0,3,2] {DPPF}")
        self.nop(2)
        A(f"v_add_f32_dpp v6, v6, v6 quad_perm:[2,3,0,1] {DPPF}")
        A("v_max_f32 v5, v5, v6")
        A(f"ds_write_b32 v8, v6 offset:{64*G}")

    def kblock(self, first):
        A = self.A
        D, D0 = self.D, self.D0
        for n in range(16):
            G, g = n // 4, n % 4
            if first and n + D < D0:
                A(f"s_waitcnt vmcnt({D0-1-n})")
            else:
                A(f"s_waitcnt vmcnt({D-1})")
                self.sload(n + D, "KV")
            dreg = 32 + 4 * (G & 1)
            self.mfma(dreg, 16 + 4 * g, self.RING + 4 * n, None if g == 0 else dreg)
            if g == 2 and not (first and G == 0):
                if first:
                    self.nop(3)
                self.kpost(32 + 4 * ((G - 1) & 1), G)
        A("v_add_u32 v8, 256, v8")

    def pcalc(self):
        A = self.A
        self.bfr(10, 11)
        A(f"v_mul_f32 v10, {SCALE:#x}, v10")
        self.bfr(10, 10)
        A("v_sub_f32 v10, v10, v9")
        A(f"v_mul_f32 v10, {LOG2E:#x}, v10")
        A("v_exp_f32 v10, v10")
        A("ds_read_b32 v11, v8 offset:320")
        A("v_add_u32 v8, 256, v8")
        A("v_add_f32 v5, v5, v10")
        A("v_cvt_pk_bf16_f32 v10, v10, v10")
        self.nop(2)

    def streamer(self):
        A = self.A
        D = self.D
        A("L_streamer:")
        self.masks(12, 6, 40)
        A("s_mov_b32 s40, 0xaaaaaaaa"); A("s_mov_b32 s41, 0xaaaaaaaa")
        A("s_mov_b32 s42, 0xcccccccc"); A("s_mov_b32 s43, 0xcccccccc")
        A("v_mov_b32 v6, 0"); A(f"v_mov_b32 v7, {L_CNT}")
        A("ds_write_b32 v7, v6")
        A("v_and_b32 v6, 3, v0")
        A("v_lshl_add_u32 v6, v1, 2, v6")
        A("v_lshlrev_b32 v6, 5, v6")
        A("s_lshl_b32 s7, s3, 12")
        A("v_and_b32 v8, 60, v0")
        A("v_add_u32 v8, s7, v8")
        A("v_mov_b32 v5, 0xff800000")
        A("s_mov_b32 s15, 0")
        A("s_waitcnt lgkmcnt(0)")
        self.stamp(1)
        A("s_barrier")
        self.stamp(2)
        for i in range(5):
            A(f"ds_read_b128 v[{128+8*i}:{131+8*i}], v6 offset:{L_QP+512*i}")
            A(f"ds_read_b128 v[{132+8*i}:{135+8*i}], v6 offset:{L_QP+512*i+16}")
        for i in range(1, 5):
            A(f"s_waitcnt lgkmcnt({8-2*i})")
            for e in range(8):
                A(f"v_add_f32 v{128+e}, v{128+e}, v{128+8*i+e}")
        for r in range(4):
            A(f"v_cvt_pk_bf16_f32 v{44+r}, v{128+2*r}, v{129+2*r}")
        for g in range(4):
            pat = (0xf << (4 * g)) * 0x00010001
            A(f"s_mov_b32 s44, {pat:#x}"); A(f"s_mov_b32 s45, {pat:#x}")
            for r in range(4):
                A(f"v_cndmask_b32 v{16+4*g+r}, 0, v{44+r}, s[44:45]")
        self.nop(2)
        self.stamp(3)
        self.kblock(True)
        A("s_mov_b32 s15, 1")
        A("L_kloop:")
        self.kblock(False)
        A("s_add_u32 s15, s15, 1")
        A("s_cmp_lt_u32 s15, 16")
        A("s_cbranch_scc1 L_kloop")
        self.nop(6)
        self.kpost(36, 0)
        self.stamp(4)
        A("s_lshl_b32 s7, s3, 12")
        A("v_lshl_add_u32 v8, v2, 2, v1          ; 4j+s")
        A("v_lshlrev_b32 v8, 2, v8")
        A("v_add_u32 v8, s7, v8")
        A("ds_read_b32 v11, v8 offset:64")
        self.wave_reduce("v_max_f32", 5, 6, rors=(4, 8))
        self.bfr(9, 5)
        A(f"v_mul_f32 v9, {SCALE:#x}, v9")
        self.bfr(9, 9)
        A("s_lshl_b32 s7, s3, 2")
        A(f"s_add_u32 s7, s7, {L_MW}")
        A("v_mov_b32 v6, s7")
        A("ds_write_b32 v6, v9")
        A("v_mov_b32 v5, 0                       ; l")
        for r in range(4):
            A(f"v_mov_b32 v{40+r}, 0")
        A("s_mov_b32 s15, 0")
        A("L_vloop:")
        A("s_waitcnt lgkmcnt(0)")
        self.pcalc()
        for n in range(16):
            self.abuild(16, 10, 12, n)
            A(f"s_waitcnt vmcnt({D-1})")
            self.sload(n + D, "END")
            self.mfma(40, 16, self.RING + 4 * n, 40)
        A("s_add_u32 s15, s15, 1")
        A("s_cmp_lt_u32 s15, 16")
        A("s_cbranch_scc1 L_vloop")
        self.stamp(5)
        A("s_lshl_b32 s7, s3, 8")
        A("v_lshl_add_u32 v6, v0, 2, s7")
        A(f"ds_write_b32 v6, v5 offset:{L_LL}")
        A("v_lshrrev_b32 v6, 5, v0")
        A("v_mul_u32_u24 v6, 1088, v6")
        A("v_lshl_add_u32 v6, v2, 4, v6")
        A("v_and_b32 v7, 1, v1")
        A("v_lshl_add_u32 v6, v7, 3, v6")
        A("s_mul_i32 s7, s3, 272")
        A("v_add_u32 v6, s7, v6")
        A("s_mov_b32 s44, 0"); A("s_mov_b32 s45, -1")
        A("v_cvt_pk_bf16_f32 v44, v40, v41")
        A("v_cvt_pk_bf16_f32 v45, v42, v43")
        A("v_lshlrev_b32 v46, 16, v44")
        A("v_and_b32 v47, 0xffff0000, v44")
        A("v_lshlrev_b32 v48, 16, v45")
        A("v_and_b32 v49, 0xffff0000, v45")
        for r in range(4):
            A(f"v_sub_f32 v{46+r}, v{40+r}, v{46+r}")
        A("v_cvt_pk_bf16_f32 v46, v46, v47")
        A("v_cvt_pk_bf16_f32 v47, v48, v49")
        A("v_cndmask_b32 v44, v44, v46, s[44:45]")
        A("v_cndmask_b32 v45, v45, v47, s[44:45]")
        A(f"ds_write_b64 v6, v[44:45] offset:{L_OA}")
        A("s_waitcnt lgkmcnt(0)")
        A("s_barrier")
        self.stamp(6)
        A("s_cmp_eq_u32 s3, 2")
        A("s_cbranch_scc0 L_sdone")
        A(f"v_mov_b32 v6, {L_MW}")
        A("ds_read_b128 v[16:19], v6")
        A("v_lshlrev_b32 v6, 2, v0")
        for w in range(4):
            A(f"ds_read_b32 v{20+w}, v6 offset:{L_LL+256*w}")
        self.srd(8, 38, WS_SIZE)
        A("s_lshl_b32 s7, s6, 3")
        A(f"s_add_u32 s7, s7, {WS_ML}")
        A("s_waitcnt lgkmcnt(0)")
        A("v_max3_f32 v24, v16, v17, v18")
        A("v_max_f32 v24, v24, v19")
        for w in range(4):
            A(f"v_sub_f32 v{16+w}, v{16+w}, v24")
            A(f"v_mul_f32 v{16+w}, {LOG2E:#x}, v{16+w}")
            A(f"v_exp_f32 v{16+w}, v{16+w}")
        A("v_mul_f32 v25, v16, v20")
        for w in range(1, 4):
            A(f"v_fmac_f32 v25, v{16+w}, v{20+w}")
        self.wave_reduce("v_add_f32", 25, 26)
        A("v_min_u32 v24, -2, v24")
        A("v_min_u32 v25, -2, v25")
        A("s_mov_b64 exec, 1")
        A("buffer_store_dwordx2 v[24:25], off, s[8:11], s7 sc1")
        A("L_sdone:")
        self.stamp(7)
        self.flush_stamps(8)
        A("s_endpgm")

    W = 40
    def wslot(self, n):
        kb, e = n // 8, n % 8
        return self.W + 32 * kb + (16 if e & 1 else 0) + 4 * (e // 2)

    def wo_load(self, n):
        A = self.A
        kb, e = n // 8, n % 8
        off = (32 * kb + e) * 1280
        lo = (e % 3) * 1280 if False else (e & 1) * 1280
        hi = off - lo
        if e % 2 == 0:
            A(f"s_add_u32 s47, s46, {hi}")
        sl = self.wslot(n)
        A(f"buffer_load_dwordx4 v[{sl}:{sl+3}], v36, s[48:51], s47 offen offset:{lo} {self.woflag}")

    def helper(self):
        A = self.A
        A("s_sub_u32 s40, s3, 4                  ; hw")
        A("s_lshl_b32 s7, s40, 7")
        A("s_mul_i32 s41, s5, 80")
        A("s_add_u32 s7, s7, s41")
        A("s_sub_u32 s41, s7, 640")
        A("s_min_u32 s7, s7, s41")
        A("v_lshl_add_u32 v4, v2, 2, v1          ; 4j+s")
        A("v_add_u32 v4, s7, v4")
        A("v_add_u32 v5, 64, v4")
        A("v_subrev_u32 v6, 640, v4")
        A("v_min_u32 v4, v4, v6")
        A("v_subrev_u32 v6, 640, v5")
        A("v_min_u32 v5, v5, v6")
        A("v_lshlrev_b32 v4, 1, v4")
        A("v_lshlrev_b32 v5, 1, v5")
        A("v_lshlrev_b32 v3, 2, v0               ; lane*4")
        A("v_lshlrev_b32 v8, 13, v1")
        A("v_lshl_add_u32 v8, v2, 4, v8          ; s*8192 + j*16")
        A("v_add_u32 v9, 0x8000, v8")
        A("v_add_u32 v10, 0x10000, v8")
        A("v_add_u32 v11, 0x18000, v8")
        A("s_lshl_b32 s42, s7, 13")
        A("s_lshl_b32 s43, s4, 8")
        A("s_add_u32 s42, s42, s43               ; row0*8192 + h*256")
        A("s_waitcnt lgkmcnt(0)")
        self.srd(8, 16, 1280)
        self.srd(12, 22, 640 * 8192)
        for i in range(5):
            A(f"buffer_load_dword v{16+i}, v3, s[8:11], 0 offen offset:{256*i}")
        A("buffer_load_ushort v21, v4, s[8:11], 0 offen")
        A("buffer_load_ushort v22, v5, s[8:11], 0 offen")
        for n in range(32):
            sl = self.wslot(n)
            A(f"buffer_load_dwordx4 v[{sl}:{sl+3}], v{8+n%4}, s[12:15], s42 offen {self.wflag}")
            if n % 4 == 3 and n < 31:
                A("s_add_u32 s42, s42, 0x20000")
                A(f"s_sub_u32 s43, s42, {640*8192}")
                A("s_min_u32 s42, s42, s43")
        self.stamp(1)
        self.masks(12, 6, 44)
        self.srd(48, 24, 4096 * 1280)
        A("v_mul_u32_u24 v36, 10240, v1")
        A("v_lshl_add_u32 v36, v2, 4, v36")
        A(f"s_mul_i32 s46, s4, {128*1280}")
        A("s_lshl_b32 s47, s40, 8")
        A("s_add_u32 s46, s46, s47")
        A("s_waitcnt vmcnt(32)")
        self.stamp(2)
        for i in range(5):
            A(f"v_lshlrev_b32 v{24+2*i}, 16, v{16+i}")
            A(f"v_and_b32 v{25+2*i}, 0xffff0000, v{16+i}")
        self.ln_stats(list(range(24, 34)), 34, 35, 16, 17)
        A("v_lshlrev_b32 v21, 16, v21")
        A("v_lshlrev_b32 v22, 16, v22")
        self.ln_apply(21, 34, 35)
        self.ln_apply(22, 34, 35)
        self.nop(2)
        self.stamp(3)
        for n in range(32):
            self.abuild(24, 21 + n // 16, 12, n % 16)
            if self.wo_early:
                A(f"s_waitcnt vmcnt({31 if n > 0 else 31})" if n == 0 else f"s_waitcnt vmcnt({30})")
                if n > 0:
                    self.wo_load(n - 1)
                else:
                    self.nop(1)
            else:
                A(f"s_waitcnt vmcnt({31-n})")
                self.nop(1)
            self.mfma(28, 24, self.wslot(n), None if n == 0 else 28)
        if self.wo_early:
            self.wo_load(31)
        A("v_and_b32 v6, 1, v1")
        A("v_lshlrev_b32 v6, 4, v6")
        A("v_lshl_add_u32 v6, v2, 5, v6")
        A("s_lshl_b32 s47, s40, 9")
        A("v_add_u32 v6, s47, v6")
        self.nop(4)
        A(f"ds_write_b128 v6, v[28:31] offset:{L_QP}")
        A("s_waitcnt lgkmcnt(0)")
        self.stamp(4)
        A("s_barrier")
        if not self.wo_early:
            for n in range(32):
                self.wo_load(n)
        self.srd(8, 38, WS_SIZE)
        self.srd(12, 36, 256)
        A("v_and_b32 v37, 1, v1")
        A("v_lshl_add_u32 v37, v2, 1, v37")
        A("v_lshlrev_b32 v37, 12, v37")
        A("s_lshl_b32 s46, s40, 17")
        A("s_lshl_b32 s47, s6, 4")
        A("s_add_u32 s46, s46, s47")
        for r in range(4):
            A(f"v_mov_b32 v{16+r}, -1")
        self.exec_lo()
        A("buffer_store_dwordx4 v[16:19], v37, s[8:11], s46 offen sc1")
        A("s_mov_b64 exec, 1")
        A("s_lshl_b32 s47, s6, 3")
        A(f"s_add_u32 s47, s47, {WS_ML}")
        A("s_cmp_eq_u32 s40, 0")
        A("s_cbranch_scc0 L_h_noml")
        A("buffer_store_dwordx2 v[16:17], off, s[8:11], s47 sc1")
        A("L_h_noml:")
        A("s_waitcnt vmcnt(0)")
        A(f"v_mov_b32 v20, {L_CNT}")
        A("v_mov_b32 v21, 1")
        A("ds_add_rtn_u32 v22, v20, v21")
        A("s_waitcnt lgkmcnt(0)")
        A("v_readfirstlane_b32 s47, v22")
        A("s_cmp_eq_u32 s47, 4")
        A("s_cbranch_scc0 L_h_nosig")
        A("buffer_atomic_add v21, off, s[12:15], 0 sc1")
        A("L_h_nosig:")
        A("s_mov_b64 exec, -1")
        self.stamp(5)
        A("s_mov_b32 s44, 0x05040100")
        A("s_mov_b32 s45, 0x07060302")
        for kb in range(4):
            P = self.W + 32 * kb
            E = lambda i, c: P + 4 * i + c
            O = lambda i, c: P + 16 + 4 * i + c
            for i in range(4):
                A(f"v_perm_b32 v16, v{O(i,i)}, v{E(i,i)}, s44")
                A(f"v_perm_b32 v{O(i,i)}, v{O(i,i)}, v{E(i,i)}, s45")
                A(f"v_mov_b32 v{E(i,i)}, v16")
                for c in range(i + 1, 4):
                    A(f"v_perm_b32 v16, v{O(i,c)}, v{E(i,c)}, s44")
                    A(f"v_perm_b32 v17, v{O(i,c)}, v{E(i,c)}, s45")
                    A(f"v_perm_b32 v{E(i,c)}, v{O(c,i)}, v{E(c,i)}, s44")
                    A(f"v_perm_b32 v{O(i,c)}, v{O(c,i)}, v{E(c,i)}, s45")
                    A(f"v_mov_b32 v{E(c,i)}, v16")
                    A(f"v_mov_b32 v{O(c,i)}, v17")
        A("v_and_b32 v38, 7, v0")
        A("v_mul_u32_u24 v38, 272, v38")
        A("v_lshl_add_u32 v38, v1, 4, v38")
        A(f"v_mov_b32 v39, {L_MW}")
        self.stamp(6)
        A("s_barrier")
        self.stamp(7)
        for kb in range(4):
            A(f"ds_read_b128 v[{4+4*kb}:{7+4*kb}], v38 offset:{L_OA+64*kb}")
        A("ds_read_b128 v[20:23], v39")
        B = lambda kb, t: self.W + 32 * kb + (16 if t & 1 else 0) + 4 * (t // 2)
        acc = lambda t: 24 if t == 0 else B(0, t - 1)
        fill = []
        fill.append("v_max3_f32 v28, v20, v21, v22")
        fill.append("v_max_f32 v28, v28, v23")
        for w in range(4):
            fill.append(f"v_sub_f32 v{20+w}, v{20+w}, v28")
        for w in range(4):
            fill.append(f"v_mul_f32 v{20+w}, {LOG2E:#x}, v{20+w}")
        for w in range(4):
            fill.append(f"v_exp_f32 v{20+w}, v{20+w}")
        def comb(t):
            a = acc(t)
            return [f"v_mul_f32 v{28+t}, v20, v{a}"] + [f"v_fmac_f32 v{28+t}, v{20+r}, v{a+r}" for r in range(1, 4)]
        for t in range(8):
            for kb in range(4):
                if t == 0:
                    A(f"s_waitcnt lgkmcnt({4-kb})")
                self.mfma(acc(t), 4 + 4 * kb, B(kb, t), None if kb == 0 else acc(t))
                if t == 0 and kb == 3:
                    A("s_waitcnt lgkmcnt(0)")
                if t >= 1:
                    for _ in range(2):
                        if fill:
                            A(fill.pop(0))
            if t >= 2:
                fill += comb(t - 2)
        while fill:
            A(fill.pop(0))
        for s in comb(6):
            A(s)
        self.nop(2)
        for s in comb(7):
            A(s)
        self.nop(2)
        for t in range(4):
            A(f"v_permlane16_swap_b32 v{28+t}, v{32+t}")
        for t in range(4):
            A(f"v_add_f32 v{28+t}, v{28+t}, v{32+t}")
        for t in range(4):
            A(f"v_min_u32 v{28+t}, -2, v{28+t}")
        self.exec_lo()
        A("buffer_store_dwordx4 v[28:31], v37, s[8:11], s46 offen sc1")
        self.stamp(8)
        self.flush_stamps(9)
        A("s_endpgm")

    def poll(self, label, loads, regs, sleep=0, between=None):
        A = self.A
        A("s_mov_b32 s47, 0")
        A(f"{label}:")
        for s in loads:
            A(s)
        if between:
            A("s_cmp_eq_u32 s47, 0")
            A(f"s_cbranch_scc0 {label}_w")
            between()
            A(f"{label}_w:")
        A("s_waitcnt vmcnt(0)")
        r = list(regs)
        A(f"v_max_u32 v3, v{r[0]}, v{r[1]}")
        r = r[2:]
        while r:
            A(f"v_max3_u32 v3, v3, v{r[0]}, v{r[1]}")
            r = r[2:]
        A("v_cmp_eq_u32 vcc, -1, v3")
        A("s_add_u32 s47, s47, 1")
        A(f"s_cbranch_vccz {label}_ok")
        if sleep:
            A(f"s_sleep {sleep}")
        A("s_cmp_lt_u32 s47, 0x40000")
        A(f"s_cbranch_scc1 {label}")
        A(f"{label}_ok:")

    def aux(self):
        A = self.A
        A("L_aux:")
        A(f"s_cmp_lt_u32 s2, {NFFN}")
        A("s_cbranch_scc1 L_ffn")
        A(f"s_cmp_ge_u32 s2, {CONS0}")
        A("s_cbranch_scc1 L_cons")
        A("s_endpgm")
        A("L_cons:")
        A("s_barrier")
        A("s_waitcnt lgkmcnt(0)")
        A(f"s_sub_u32 s40, s2, {CONS0}              ; colgroup")
        self.srd(8, 38, WS_SIZE)
        self.srd(12, 36, 256)
        self.srd(48, 16, 1280)
        self.srd(52, 34, 1280)
        A("s_lshl_b32 s41, s40, 3")
        A("v_lshlrev_b32 v4, 1, v1")
        A("buffer_load_ushort v5, v4, s[48:51], s41 offen")
        A("s_mov_b32 s47, 0")
        A("L_c_cnt:")
        A("buffer_load_dword v6, off, s[12:15], 0 sc1")
        A("s_waitcnt vmcnt(0)")
        A("v_readfirstlane_b32 s42, v6")
        A("s_add_u32 s47, s47, 1")
        A(f"s_cmp_ge_u32 s42, {256 + NFFN}")
        A("s_cbranch_scc1 L_c_cnt_ok")
        A("s_sleep 32")
        A("s_cmp_lt_u32 s47, 0x40000")
        A("s_cbranch_scc1 L_c_cnt")
        A("L_c_cnt_ok:")
        self.stamp(1)
        A("v_lshlrev_b32 v5, 16, v5")
        A("v_lshlrev_b32 v6, 4, v0               ; lane*16")
        A("v_mov_b32 v7, 0x7fffffff")
        A(f"v_cmp_gt_u32 vcc, {NFFN}, v0")
        A("s_lshl_b32 s42, s40, 9")
        A(f"s_add_u32 s42, s42, {WS_GP}")
        A("v_cndmask_b32 v7, v7, v6, vcc")
        self.poll("L_c_gp", ["buffer_load_dwordx4 v[8:11], v7, s[8:11], s42 offen sc1"], range(8, 12), sleep=32)
        self.reduce4(8)
        self.bfr(8, 8)
        A(f"v_mul_f32 v9, {LOG2E | 0x80000000:#x}, v8")
        A("v_exp_f32 v9, v9")
        self.nop(1)
        A("v_add_f32 v9, 1.0, v9")
        A("v_rcp_f32 v9, v9")
        self.nop(1)
        A("v_mul_f32 v8, v8, v9")
        self.bfr(8, 8)
        A("v_lshlrev_b32 v7, 3, v0               ; lane*8")
        A(f"s_mov_b32 s42, {WS_ML}")
        A("s_lshl_b32 s43, s40, 12")
        self.stamp(2)
        A("s_barrier")
        self.stamp(3)
        self.poll("L_c_ml", [f"buffer_load_dwordx2 v[{12+2*i}:{13+2*i}], v7, s[8:11], s42 offen offset:{512*i} sc1" for i in range(4)], range(12, 20))
        self.stamp(4)
        def weights():
            steps = ["quad_perm:[1,0,3,2]", "quad_perm:[2,3,0,1]", "row_half_mirror"]
            for i in range(4):
                A(f"v_max_f32_dpp v{20+i}, v{12+2*i}, v{12+2*i} {steps[0]} {DPPF}")
            for st in steps[1:]:
                for i in range(4):
                    A(f"v_max_f32_dpp v{20+i}, v{20+i}, v{20+i} {st} {DPPF}")
            for i in range(4):
                A(f"v_sub_f32 v{20+i}, v{12+2*i}, v{20+i}")
            for i in range(4):
                A(f"v_mul_f32 v{20+i}, {LOG2E:#x}, v{20+i}")
            for i in range(4):
                A(f"v_exp_f32 v{20+i}, v{20+i}")
            for i in range(4):
                A(f"v_mul_f32 v{13+2*i}, v{13+2*i}, v{20+i}")
            for st in steps:
                for i in range(4):
                    A(f"v_add_f32_dpp v{13+2*i}, v{13+2*i}, v{13+2*i} {st} {DPPF}")
            for i in range(4):
                A(f"v_rcp_f32 v{13+2*i}, v{13+2*i}")
            for i in range(4):
                A(f"v_mul_f32 v{20+i}, v{20+i}, v{13+2*i}")
        self.poll("L_c_u", [f"buffer_load_dwordx4 v[{24+4*i}:{27+4*i}], v6, s[8:11], s43 offen offset:{1024*i} sc1" for i in range(4)], range(24, 40), between=weights)
        self.stamp(5)
        for r in range(4):
            A(f"v_mul_f32 v{40+r}, v20, v{24+r}")
        for i in range(1, 4):
            for r in range(4):
                A(f"v_fmac_f32 v{40+r}, v{20+i}, v{24+4*i+r}")
        self.reduce4(40)
        self.bfr(40, 40)
        A("v_mul_f32 v40, v40, v8")
        self.bfr(40, 40)
        A("v_add_f32 v40, v40, v5")
        A("v_cvt_pk_bf16_f32 v40, v40, v40")
        A("s_mov_b32 exec_lo, 0x00010001")
        A("s_mov_b32 exec_hi, 0x00010001")
        A("buffer_store_short v40, v4, s[52:55], s41 offen")
        self.stamp(6)
        self.flush_stamps(7)
        A("s_endpgm")
        A("L_ffn:")
        A("s_barrier")
        A("s_waitcnt lgkmcnt(0)")
        self.srd(8, 38, WS_SIZE)
        self.srd(12, 36, 256)
        self.srd(48, 16, 1280)
        self.srd(52, 32, 1728 * 1280)
        A("v_and_b32 v37, 1, v1")
        A("v_lshl_add_u32 v37, v2, 1, v37")
        A("v_lshlrev_b32 v37, 9, v37")
        A("s_lshl_b32 s46, s2, 4")
        A(f"s_add_u32 s46, s46, {WS_GP}")
        for r in range(4):
            A(f"v_mov_b32 v{16+r}, -1")
        self.exec_lo()
        for k in range(5):
            A(f"s_add_u32 s47, s46, {16384*k}")
            A("buffer_store_dwordx4 v[16:19], v37, s[8:11], s47 offen sc1")
        A("s_mov_b64 exec, -1")
        A("v_lshl_add_u32 v4, v2, 2, v1")
        A("v_lshlrev_b32 v4, 1, v4")
        for k in range(10):
            A(f"buffer_load_ushort v{20+k}, v4, s[48:51], 0 offen offset:{128*k}")
        A("s_waitcnt vmcnt(0)")
        A("s_mov_b64 exec, 1")
        A("v_mov_b32 v5, 1")
        A("buffer_atomic_add v5, off, s[12:15], 0 sc1")
        A("s_mov_b64 exec, -1")
        self.masks(12, 6, 44)
        for k in range(10):
            A(f"v_lshlrev_b32 v{20+k}, 16, v{20+k}")
        self.ln_stats(list(range(20, 30)), 34, 35, 16, 17)
        for k in range(10):
            self.ln_apply(20 + k, 34, 35)
        A("s_mov_b32 s44, 0xff00ff00"); A("s_mov_b32 s45, 0xff00ff00")
        A("v_mov_b32 v38, s28"); A("v_mov_b32 v39, s29")
        A("v_mov_b32 v16, s30"); A("v_mov_b32 v17, s31")
        A("v_cndmask_b32 v38, v38, v16, s[44:45]")
        A("v_cndmask_b32 v39, v39, v17, s[44:45]")
        A("v_and_b32 v16, 7, v0")
        A("v_lshlrev_b32 v16, 4, v16")
        A("v_mul_u32_u24 v17, 3456, v1")
        A("v_add_u32 v16, v16, v17")
        A("s_lshl_b32 s47, s2, 7")
        A("v_add_u32 v16, s47, v16")
        A("v_mov_b32 v17, 0")
        A("v_lshl_add_u64 v[38:39], v[38:39], 0, v[16:17]")
        A("s_mov_b32 s44, 13824"); A("s_mov_b32 s45, 0")
        for r in range(4):
            A(f"v_mov_b32 v{8+r}, 0")
        A("s_mov_b32 s41, 0")
        A("L_f_loop:")
        for n in range(32):
            A(f"global_load_dwordx4 v[{40+4*n}:{43+4*n}], v[38:39], off {self.fflag}")
            A("v_lshl_add_u64 v[38:39], v[38:39], 0, s[44:45]")
        for n in range(32):
            self.abuild(4, 20 + n // 16, 12, n % 16)
            A(f"s_waitcnt vmcnt({31-n})")
            self.nop(1)
            self.mfma(8, 4, 40 + 4 * n, 8)
        for k in range(8):
            A(f"v_mov_b32 v{20+k}, v{22+k}")
        A("s_add_u32 s41, s41, 1")
        A("s_cmp_lt_u32 s41, 5")
        A("s_cbranch_scc1 L_f_loop")
        A("v_mul_u32_u24 v36, 1280, v1")
        A("v_lshl_add_u32 v36, v2, 4, v36")
        A(f"s_mul_i32 s41, s2, {64*1280}")
        def dload(n, k):
            sl = 40 + 20 * (n % 6) + 4 * k
            if k == 0:
                A(f"s_add_u32 s42, s41, {n*4*1280}")
            A(f"buffer_load_dwordx4 v[{sl}:{sl+3}], v36, s[52:55], s42 offen offset:{256*k} {self.fflag}")
        for n in range(6):
            for k in range(5):
                dload(n, k)
        for r in range(4):
            self.bfr(8 + r, 8 + r)
        for r in range(4):
            A(f"v_max_f32 v{4+r}, 0, v{8+r}")
        self.nop(2)
        for r in range(4):
            A(f"v_mul_f32_dpp v{4+r}, v{8+r}, v{4+r} row_ror:8 {DPPF}")
        for r in range(4):
            A(f"v_cvt_pk_bf16_f32 v{4+r}, v{4+r}, v{4+r}")
        A("v_lshlrev_b32 v16, 5, v2")
        A("v_lshl_add_u32 v16, v1, 4, v16")
        A("s_mov_b64 exec, 0x00ff00ff")
        A(f"ds_write_b128 v16, v[4:7] offset:{L_H}")
        A("s_mov_b64 exec, -1")
        A("v_lshl_add_u32 v16, v2, 2, v1")
        A("v_lshlrev_b32 v16, 2, v16")
        A(f"ds_read_b32 v38, v16 offset:{L_H}")
        A("s_waitcnt lgkmcnt(0)")
        issued = 30
        done = 0
        for n in range(16):
            self.abuild(4, 38, 12, n)
            for k in range(5):
                A(f"s_waitcnt vmcnt({issued - done - 1})")
                if k == 0:
                    self.nop(1)
                self.mfma(16 + 4 * k, 4, 40 + 20 * (n % 6) + 4 * k, None if n == 0 else 16 + 4 * k)
                done += 1
            if n + 6 < 16:
                for k in range(5):
                    dload(n + 6, k)
                    issued += 1
        self.nop(8)
        for r in range(20):
            A(f"v_min_u32 v{16+r}, -2, v{16+r}")
        self.exec_lo()
        for k in range(5):
            A(f"s_add_u32 s47, s46, {16384*k}")
            A(f"buffer_store_dwordx4 v[{16+4*k}:{19+4*k}], v37, s[8:11], s47 offen sc1")
        self.stamp(1)
        self.flush_stamps(2)
        A("s_endpgm")


if __name__ == "__main__":
    out = sys.argv[1]
    kw = eval("dict(" + (sys.argv[2] if len(sys.argv) > 2 else "") + ")")
    open(out, "w").write(Gen(**kw).gen())
```

```python
import sys

NAME = "recurrent_scan__mha_block_cached__glu_gated_reglu__decode"

WS_U = 0
WS_ML = 0xA0000
WS_GP = 0xA1000
WS_SIZE = 0x200000
WS_STAMP = 0x100000
L_SC = 64
L_QP = 16640
L_OA = L_QP + 2560
L_MW = L_OA + 8 * 272
L_CNT = L_MW + 16
L_LL = L_CNT + 16
L_H = L_LL + 1024
L_END = L_H + 256
NFFN = 27
CONS0 = 96
LOG2E = 0x3fb8aa3b
SCALE = 0x3db504f3
DPPF = "row_mask:0xf bank_mask:0xf"


class Gen:
    def __init__(self, D=5, D0=None, diag=False, wflag="nt", woflag="nt", fflag="nt", wo_early=False, rot=2, wo_pace=1, fdepth=4, byteflag=True, npre=12, align=True):
        self.L = []
        self.D = D
        self.D0 = D0 if D0 is not None else D
        self.diag = diag
        self.wflag = wflag
        self.woflag = woflag
        self.fflag = fflag
        self.wo_early = wo_early
        self.rot = rot
        self.wo_pace = wo_pace
        self.fdepth = fdepth
        self.byteflag = byteflag
        self.npre = npre
        self.align = align

    def A(self, s):
        self.L.append("  " + s if not s.endswith(":") else s)

    def nop(self, n):
        while n > 0:
            k = min(n, 16)
            self.A(f"s_nop {k-1}")
            n -= k

    def stamp(self, i):
        if self.diag:
            self.A(f"s_memrealtime s[{70+2*i}:{71+2*i}]")

    def flush_stamps(self, n):
        if not self.diag:
            return
        A = self.A
        A("s_waitcnt lgkmcnt(0)")
        A("s_mov_b64 exec, 1")
        A("s_mov_b32 s60, s38"); A("s_mov_b32 s61, s39"); A(f"s_mov_b32 s62, {WS_SIZE}"); A("s_mov_b32 s63, 0x20000")
        A("s_lshl_b32 s64, s2, 4"); A("s_add_u32 s64, s64, s3"); A("s_lshl_b32 s64, s64, 6")
        A(f"s_add_u32 s64, s64, {WS_STAMP}")
        A("v_mov_b32 v1, 0")
        for i in range(n):
            A(f"v_mov_b32 v2, s{70+2*i}")
            A(f"buffer_store_dword v2, v1, s[60:63], s64 offen offset:{4*i}")
            A("s_nop 0")

    def signal(self, tag):
        A = self.A
        A("s_waitcnt vmcnt(0)")
        A(f"v_mov_b32 v30, {L_CNT}")
        A("v_mov_b32 v31, 1")
        A("ds_add_rtn_u32 v32, v30, v31")
        A(f"s_cmp_lt_u32 s2, {NFFN}")
        A("s_cselect_b32 s56, 5, 4")
        A("s_waitcnt lgkmcnt(0)")
        A("v_readfirstlane_b32 s47, v32")
        A("s_cmp_eq_u32 s47, s56")
        A(f"s_cbranch_scc0 L_{tag}_nosig")
        if self.byteflag:
            A("buffer_store_byte v31, off, s[12:15], s2 sc1")
        else:
            A("buffer_atomic_add v31, off, s[12:15], 0 sc1")
        A(f"L_{tag}_nosig:")

    def exec_lo(self):
        self.A("s_mov_b32 exec_lo, -1")
        self.A("s_mov_b32 exec_hi, 0")

    def srd(self, d, base, size):
        self.A(f"s_mov_b32 s{d}, s{base}")
        self.A(f"s_mov_b32 s{d+1}, s{base+1}")
        self.A(f"s_mov_b32 s{d+2}, {size}")
        self.A(f"s_mov_b32 s{d+3}, 0x20000")

    def masks(self, dst, tmp, st):
        A = self.A
        A(f"v_and_b32 v{tmp}, 1, v0")
        A(f"v_lshlrev_b32 v{tmp}, 4, v{tmp}")
        A(f"v_mov_b32 v{dst}, 0xffff")
        A(f"v_lshlrev_b32 v{tmp}, v{tmp}, v{dst}")
        for r in range(4):
            pat = (3 << (2 * r)) * 0x01010101
            A(f"s_mov_b32 s{st}, {pat:#x}")
            A(f"s_mov_b32 s{st+1}, {pat:#x}")
            A(f"v_cndmask_b32 v{dst+r}, 0, v{tmp}, s[{st}:{st+1}]")

    def wave_reduce(self, op, x, t, rors=(1, 2, 4, 8)):
        A = self.A
        for r in rors:
            self.nop(2)
            A(f"{op}_dpp v{x}, v{x}, v{x} row_ror:{r} {DPPF}")
        for sw in ("v_permlane16_swap_b32", "v_permlane32_swap_b32"):
            A(f"v_mov_b32 v{t}, v{x}")
            self.nop(2)
            A(f"{sw} v{x}, v{t}")
            self.nop(1)
            A(f"{op} v{x}, v{x}, v{t}")

    def reduce4(self, a, rors=(1, 2, 4, 8)):
        A = self.A
        self.nop(2)
        A(f"v_permlane32_swap_b32 v{a}, v{a+2}")
        A(f"v_permlane32_swap_b32 v{a+1}, v{a+3}")
        self.nop(1)
        A(f"v_add_f32 v{a}, v{a}, v{a+2}")
        A(f"v_add_f32 v{a+1}, v{a+1}, v{a+3}")
        self.nop(2)
        A(f"v_permlane16_swap_b32 v{a}, v{a+1}")
        self.nop(1)
        A(f"v_add_f32 v{a}, v{a}, v{a+1}")
        for r in rors:
            self.nop(2)
            A(f"v_add_f32_dpp v{a}, v{a}, v{a} row_ror:{r} {DPPF}")

    def bfr(self, d, s):
        self.A(f"v_cvt_pk_bf16_f32 v{d}, v{s}, v{s}")
        self.A(f"v_and_b32 v{d}, 0xffff0000, v{d}")

    def ln_stats(self, vals, m, rinv, t0, t1):
        A = self.A
        A(f"v_add_f32 v{m}, v{vals[0]}, v{vals[1]}")
        for v in vals[2:]:
            A(f"v_add_f32 v{m}, v{m}, v{v}")
        self.wave_reduce("v_add_f32", m, t0)
        A(f"v_mul_f32 v{m}, 0x3acccccd, v{m}")
        A(f"v_sub_f32 v{t0}, v{vals[0]}, v{m}")
        A(f"v_mul_f32 v{rinv}, v{t0}, v{t0}")
        for v in vals[1:]:
            A(f"v_sub_f32 v{t0}, v{v}, v{m}")
            A(f"v_fmac_f32 v{rinv}, v{t0}, v{t0}")
        self.wave_reduce("v_add_f32", rinv, t0)
        A(f"v_mul_f32 v{rinv}, 0x3acccccd, v{rinv}")
        self.bfr(m, m)
        self.bfr(rinv, rinv)
        A(f"v_add_f32 v{rinv}, 0x3727c5ac, v{rinv}")
        self.bfr(rinv, rinv)
        A(f"v_sqrt_f32 v{rinv}, v{rinv}")
        self.nop(1)
        self.bfr(rinv, rinv)
        A(f"v_rcp_f32 v{rinv}, v{rinv}")
        self.nop(1)

    def ln_apply(self, x, m, rinv):
        A = self.A
        A(f"v_sub_f32 v{x}, v{x}, v{m}")
        self.bfr(x, x)
        A(f"v_mul_f32 v{x}, v{x}, v{rinv}")
        A(f"v_cvt_pk_bf16_f32 v{x}, v{x}, v{x}")

    def abuild(self, a, src, mask, j):
        for r in range(4):
            self.A(f"v_and_b32_dpp v{a+r}, v{src}, v{mask+r} row_newbcast:{j} {DPPF}")

    def mfma(self, d, a, b, c):
        cs = "0" if c is None else f"v[{c}:{c+3}]"
        self.A(f"v_mfma_f32_16x16x32_bf16 v[{d}:{d+3}], v[{a}:{a+3}], v[{b}:{b+3}], {cs}")

    def gen(self):
        A = self.A
        D, D0 = self.D, self.D0
        hdr = open("cdna_kernels/" + NAME + ".s.ref").read().split("\n")
        for line in hdr:
            if line.startswith("; @launch"):
                break
            self.L.append(line)
        self.L.append(f"; @launch grid=(256,1,1) block=(640,1,1) lds={L_END}")
        self.L.append('.amdgcn_target "amdgcn-amd-amdhsa--gfx950"')
        self.L.append(".text")
        self.L.append(f".globl {NAME}_kernel")
        self.L.append(".p2align 12" if self.align else ".p2align 8")
        self.L.append(".p2align 8")
        self.L.append(f".type {NAME}_kernel,@function")
        self.L.append(f"{NAME}_kernel:")
        A("s_cmp_ge_u32 s2, 256")
        A("s_cbranch_scc0 L_go")
        A("s_endpgm")
        A("L_go:")
        self.stamp(0)
        A("s_load_dwordx16 s[16:31], s[0:1], 0")
        A("s_load_dwordx8 s[32:39], s[0:1], 64")
        A("v_lshrrev_b32 v1, 6, v0")
        A("v_and_b32 v0, 63, v0")
        A("v_readfirstlane_b32 s3, v1")
        A("s_and_b32 s4, s2, 7")
        A("s_lshr_b32 s5, s2, 3")
        A("s_lshl_b32 s4, s4, 2")
        A("s_lshr_b32 s6, s5, 3")
        A("s_add_u32 s4, s4, s6                  ; head")
        A("s_and_b32 s5, s5, 7                   ; chunk")
        A("s_lshl_b32 s6, s4, 3")
        A("s_add_u32 s6, s6, s5")
        A("v_lshrrev_b32 v1, 4, v0               ; s = lane>>4")
        A("v_and_b32 v2, 15, v0                  ; j = lane&15")
        A("s_cmp_ge_u32 s3, 4")
        A("s_cbranch_scc1 L_notstream")
        self.streamer_issue()
        A("s_branch L_streamer")
        A("L_notstream:")
        A("s_cmp_ge_u32 s3, 9")
        A("s_cbranch_scc1 L_aux")
        self.helper()
        self.streamer()
        self.aux()
        self.L.append('.section .rodata,"a"')
        self.L.append(".p2align 6")
        self.L.append(f".amdhsa_kernel {NAME}_kernel")
        for s in ["next_free_vgpr 168", "next_free_sgpr 102", "accum_offset 168", "group_segment_fixed_size 0",
                  "kernarg_size 96", "user_sgpr_count 2", "user_sgpr_kernarg_segment_ptr 1",
                  "system_sgpr_workgroup_id_x 1", "float_denorm_mode_32 3"]:
            self.L.append("  .amdhsa_" + s)
        self.L.append(".end_amdhsa_kernel")
        return "\n".join(self.L) + "\n"

    RING = 64
    def sload(self, n, switch=None):
        A = self.A
        if n % 4 == 0:
            if n % 16 == 0 and switch == "KV":
                A("s_cmp_eq_u32 s15, 15")
                A("s_cselect_b32 s8, s20, s8")
                A("s_cselect_b32 s9, s21, s9")
                A("s_cselect_b64 s[44:45], -1, 0")
                A("v_cndmask_b32 v3, v3, v4, s[44:45]")
            if n % 16 == 0 and switch == "END":
                A("s_cmp_eq_u32 s15, 15")
                A("s_cselect_b32 s10, 0, s10")
            A("s_add_u32 s12, s14, s13")
            A("s_add_u32 s13, s13, 0x20000")
            A("s_and_b32 s13, s13, 0x7fffff")
        sl = self.RING + 4 * (n % 16)
        A(f"buffer_load_dwordx4 v[{sl}:{sl+3}], v3, s[8:11], s12 offen offset:{1024*(n%4)} nt")

    def streamer_issue(self):
        A = self.A
        A("v_lshlrev_b32 v4, 4, v0")
        A("v_and_b32 v3, 48, v4                  ; c*16")
        A("v_lshl_add_u32 v3, v1, 6, v3          ; + s*64")
        A("v_bfe_u32 v5, v0, 2, 2                ; a")
        A("v_lshl_add_u32 v3, v5, 8, v3          ; + a*256")
        A("s_lshl_b32 s14, s4, 23")
        A("s_lshl_b32 s13, s5, 2")
        A("s_add_u32 s13, s13, s3")
        A("s_lshl_b32 s13, s13, 12               ; (4c+w)*4096")
        A(f"s_mul_i32 s7, s4, {self.rot * 0x20000}")
        A("s_add_u32 s13, s13, s7")
        A("s_and_b32 s13, s13, 0x7fffff")
        A("s_waitcnt lgkmcnt(0)")
        self.srd(8, 18, 0x10000000)
        for n in range(self.D0):
            self.sload(n)

    def kpost(self, dreg, G):
        A = self.A
        A(f"v_cndmask_b32 v6, v{dreg}, v{dreg+1}, s[40:41]")
        A(f"v_cndmask_b32 v7, v{dreg+2}, v{dreg+3}, s[40:41]")
        A(f"v_cndmask_b32 v6, v6, v7, s[42:43]")
        self.nop(2)
        A(f"v_add_f32_dpp v6, v6, v6 quad_perm:[1,0,3,2] {DPPF}")
        self.nop(2)
        A(f"v_add_f32_dpp v6, v6, v6 quad_perm:[2,3,0,1] {DPPF}")
        A("v_max_f32 v5, v5, v6")
        A(f"ds_write_b32 v8, v6 offset:{64*G}")

    def kblock(self, first):
        A = self.A
        D, D0 = self.D, self.D0
        for n in range(16):
            G, g = n // 4, n % 4
            if first and n + D < D0:
                A(f"s_waitcnt vmcnt({D0-1-n})")
            else:
                A(f"s_waitcnt vmcnt({D-1})")
                self.sload(n + D, "KV")
            dreg = 32 + 4 * (G & 1)
            self.mfma(dreg, 16 + 4 * g, self.RING + 4 * n, None if g == 0 else dreg)
            if g == 2 and not (first and G == 0):
                if first:
                    self.nop(3)
                self.kpost(32 + 4 * ((G - 1) & 1), G)
        A("v_add_u32 v8, 256, v8")

    def pcalc(self):
        A = self.A
        self.bfr(10, 11)
        A(f"v_mul_f32 v10, {SCALE:#x}, v10")
        self.bfr(10, 10)
        A("v_sub_f32 v10, v10, v9")
        A(f"v_mul_f32 v10, {LOG2E:#x}, v10")
        A("v_exp_f32 v10, v10")
        A("ds_read_b32 v11, v8 offset:320")
        A("v_add_u32 v8, 256, v8")
        A("v_add_f32 v5, v5, v10")
        A("v_cvt_pk_bf16_f32 v10, v10, v10")
        self.nop(2)

    def streamer(self):
        A = self.A
        D = self.D
        A("L_streamer:")
        self.masks(12, 6, 40)
        A("s_mov_b32 s40, 0xaaaaaaaa"); A("s_mov_b32 s41, 0xaaaaaaaa")
        A("s_mov_b32 s42, 0xcccccccc"); A("s_mov_b32 s43, 0xcccccccc")
        A("v_mov_b32 v6, 0"); A(f"v_mov_b32 v7, {L_CNT}")
        A("ds_write_b32 v7, v6")
        A("v_mov_b32 v6, -1"); A(f"v_mov_b32 v7, {L_MW}")
        A("ds_write_b32 v7, v6")
        A("v_and_b32 v6, 3, v0")
        A("v_lshl_add_u32 v6, v1, 2, v6")
        A("v_lshlrev_b32 v6, 5, v6")
        A("s_lshl_b32 s7, s3, 12")
        A("v_and_b32 v8, 60, v0")
        A("v_add_u32 v8, s7, v8")
        A("v_mov_b32 v5, 0xff800000")
        A("s_mov_b32 s15, 0")
        A("s_waitcnt lgkmcnt(0)")
        self.stamp(1)
        A("s_barrier")
        self.stamp(2)
        for i in range(5):
            A(f"ds_read_b128 v[{128+8*i}:{131+8*i}], v6 offset:{L_QP+512*i}")
            A(f"ds_read_b128 v[{132+8*i}:{135+8*i}], v6 offset:{L_QP+512*i+16}")
        for i in range(1, 5):
            A(f"s_waitcnt lgkmcnt({8-2*i})")
            for e in range(8):
                A(f"v_add_f32 v{128+e}, v{128+e}, v{128+8*i+e}")
        for r in range(4):
            A(f"v_cvt_pk_bf16_f32 v{44+r}, v{128+2*r}, v{129+2*r}")
        for g in range(4):
            pat = (0xf << (4 * g)) * 0x00010001
            A(f"s_mov_b32 s44, {pat:#x}"); A(f"s_mov_b32 s45, {pat:#x}")
            for r in range(4):
                A(f"v_cndmask_b32 v{16+4*g+r}, 0, v{44+r}, s[44:45]")
        self.nop(2)
        self.stamp(3)
        self.kblock(True)
        A("s_mov_b32 s15, 1")
        A("L_kloop:")
        self.kblock(False)
        A("s_add_u32 s15, s15, 1")
        A("s_cmp_lt_u32 s15, 16")
        A("s_cbranch_scc1 L_kloop")
        self.nop(6)
        self.kpost(36, 0)
        self.stamp(4)
        A("s_lshl_b32 s7, s3, 12")
        A("v_lshl_add_u32 v8, v2, 2, v1          ; 4j+s")
        A("v_lshlrev_b32 v8, 2, v8")
        A("v_add_u32 v8, s7, v8")
        A("ds_read_b32 v11, v8 offset:64")
        self.wave_reduce("v_max_f32", 5, 6, rors=(4, 8))
        self.bfr(9, 5)
        A(f"v_mul_f32 v9, {SCALE:#x}, v9")
        self.bfr(9, 9)
        A("s_lshl_b32 s7, s3, 2")
        A(f"s_add_u32 s7, s7, {L_MW}")
        A("v_mov_b32 v6, s7")
        A("v_min_u32 v7, -2, v9")
        A("ds_write_b32 v6, v7")
        A("v_mov_b32 v5, 0                       ; l")
        for r in range(4):
            A(f"v_mov_b32 v{40+r}, 0")
        A("s_mov_b32 s15, 0")
        A("L_vloop:")
        A("s_waitcnt lgkmcnt(0)")
        self.pcalc()
        for n in range(16):
            self.abuild(16, 10, 12, n)
            A(f"s_waitcnt vmcnt({D-1})")
            self.sload(n + D, "END")
            self.mfma(40, 16, self.RING + 4 * n, 40)
        A("s_add_u32 s15, s15, 1")
        A("s_cmp_lt_u32 s15, 16")
        A("s_cbranch_scc1 L_vloop")
        self.stamp(5)
        A("s_lshl_b32 s7, s3, 8")
        A("v_lshl_add_u32 v6, v0, 2, s7")
        A(f"ds_write_b32 v6, v5 offset:{L_LL}")
        A("v_lshrrev_b32 v6, 5, v0")
        A("v_mul_u32_u24 v6, 1088, v6")
        A("v_lshl_add_u32 v6, v2, 4, v6")
        A("v_and_b32 v7, 1, v1")
        A("v_lshl_add_u32 v6, v7, 3, v6")
        A("s_mul_i32 s7, s3, 272")
        A("v_add_u32 v6, s7, v6")
        A("s_mov_b32 s44, 0"); A("s_mov_b32 s45, -1")
        A("v_cvt_pk_bf16_f32 v44, v40, v41")
        A("v_cvt_pk_bf16_f32 v45, v42, v43")
        A("v_lshlrev_b32 v46, 16, v44")
        A("v_and_b32 v47, 0xffff0000, v44")
        A("v_lshlrev_b32 v48, 16, v45")
        A("v_and_b32 v49, 0xffff0000, v45")
        for r in range(4):
            A(f"v_sub_f32 v{46+r}, v{40+r}, v{46+r}")
        A("v_cvt_pk_bf16_f32 v46, v46, v47")
        A("v_cvt_pk_bf16_f32 v47, v48, v49")
        A("v_cndmask_b32 v44, v44, v46, s[44:45]")
        A("v_cndmask_b32 v45, v45, v47, s[44:45]")
        A(f"ds_write_b64 v6, v[44:45] offset:{L_OA}")
        A("s_waitcnt lgkmcnt(0)")
        A("s_barrier")
        self.stamp(6)
        A("s_cmp_eq_u32 s3, 2")
        A("s_cbranch_scc0 L_sdone")
        A(f"v_mov_b32 v6, {L_MW}")
        A("ds_read_b128 v[16:19], v6")
        A("v_lshlrev_b32 v6, 2, v0")
        for w in range(4):
            A(f"ds_read_b32 v{20+w}, v6 offset:{L_LL+256*w}")
        self.srd(8, 38, WS_SIZE)
        A("s_lshl_b32 s7, s6, 3")
        A(f"s_add_u32 s7, s7, {WS_ML}")
        A("s_waitcnt lgkmcnt(0)")
        A("v_max3_f32 v24, v16, v17, v18")
        A("v_max_f32 v24, v24, v19")
        for w in range(4):
            A(f"v_sub_f32 v{16+w}, v{16+w}, v24")
            A(f"v_mul_f32 v{16+w}, {LOG2E:#x}, v{16+w}")
            A(f"v_exp_f32 v{16+w}, v{16+w}")
        A("v_mul_f32 v25, v16, v20")
        for w in range(1, 4):
            A(f"v_fmac_f32 v25, v{16+w}, v{20+w}")
        self.wave_reduce("v_add_f32", 25, 26)
        A("v_min_u32 v24, -2, v24")
        A("v_min_u32 v25, -2, v25")
        A("s_mov_b64 exec, 1")
        A("buffer_store_dwordx2 v[24:25], off, s[8:11], s7 sc1")
        A("L_sdone:")
        self.stamp(7)
        self.flush_stamps(8)
        A("s_endpgm")

    W = 40
    def wslot(self, n):
        kb, e = n // 8, n % 8
        return self.W + 32 * kb + (16 if e & 1 else 0) + 4 * (e // 2)

    def wo_load(self, n):
        A = self.A
        kb, e = n // 8, n % 8
        off = (32 * kb + e) * 1280
        lo = (e % 3) * 1280 if False else (e & 1) * 1280
        hi = off - lo
        if e % 2 == 0:
            A(f"s_add_u32 s47, s46, {hi}")
        sl = self.wslot(n)
        A(f"buffer_load_dwordx4 v[{sl}:{sl+3}], v36, s[48:51], s47 offen offset:{lo} {self.woflag}")

    def helper(self):
        A = self.A
        A("s_sub_u32 s40, s3, 4                  ; hw")
        A("s_lshl_b32 s7, s40, 7")
        A("s_mul_i32 s41, s5, 80")
        A("s_add_u32 s7, s7, s41")
        A("s_sub_u32 s41, s7, 640")
        A("s_min_u32 s7, s7, s41")
        A("v_lshl_add_u32 v4, v2, 2, v1          ; 4j+s")
        A("v_add_u32 v4, s7, v4")
        A("v_add_u32 v5, 64, v4")
        A("v_subrev_u32 v6, 640, v4")
        A("v_min_u32 v4, v4, v6")
        A("v_subrev_u32 v6, 640, v5")
        A("v_min_u32 v5, v5, v6")
        A("v_lshlrev_b32 v4, 1, v4")
        A("v_lshlrev_b32 v5, 1, v5")
        A("v_lshlrev_b32 v3, 2, v0               ; lane*4")
        A("v_lshlrev_b32 v8, 13, v1")
        A("v_lshl_add_u32 v8, v2, 4, v8          ; s*8192 + j*16")
        A("v_add_u32 v9, 0x8000, v8")
        A("v_add_u32 v10, 0x10000, v8")
        A("v_add_u32 v11, 0x18000, v8")
        A("s_lshl_b32 s42, s7, 13")
        A("s_lshl_b32 s43, s4, 8")
        A("s_add_u32 s42, s42, s43               ; row0*8192 + h*256")
        A("s_waitcnt lgkmcnt(0)")
        self.srd(8, 16, 1280)
        self.srd(12, 22, 640 * 8192)
        for i in range(5):
            A(f"buffer_load_dword v{16+i}, v3, s[8:11], 0 offen offset:{256*i}")
        A("buffer_load_ushort v21, v4, s[8:11], 0 offen")
        A("buffer_load_ushort v22, v5, s[8:11], 0 offen")
        def wq_load(n):
            sl = self.wslot(n)
            r = [f"buffer_load_dwordx4 v[{sl}:{sl+3}], v{8+n%4}, s[12:15], s42 offen {self.wflag}"]
            if n % 4 == 3 and n < 31:
                r += ["s_add_u32 s42, s42, 0x20000", f"s_sub_u32 s43, s42, {640*8192}", "s_min_u32 s42, s42, s43"]
            return r
        npre = self.npre
        for n in range(npre):
            for t in wq_load(n):
                A(t)
        self.stamp(1)
        self.masks(12, 6, 44)
        self.srd(48, 24, 4096 * 1280)
        A("v_mul_u32_u24 v36, 10240, v1")
        A("v_lshl_add_u32 v36, v2, 4, v36")
        A(f"s_mul_i32 s46, s4, {128*1280}")
        A("s_lshl_b32 s47, s40, 8")
        A("s_add_u32 s46, s46, s47")
        A(f"s_waitcnt vmcnt({npre})")
        self.stamp(2)
        mark = len(self.L)
        for i in range(5):
            A(f"v_lshlrev_b32 v{24+2*i}, 16, v{16+i}")
            A(f"v_and_b32 v{25+2*i}, 0xffff0000, v{16+i}")
        self.ln_stats(list(range(24, 34)), 34, 35, 16, 17)
        A("v_lshlrev_b32 v21, 16, v21")
        A("v_lshlrev_b32 v22, 16, v22")
        self.ln_apply(21, 34, 35)
        self.ln_apply(22, 34, 35)
        self.nop(2)
        ln = self.L[mark:]
        del self.L[mark:]
        rest = list(range(npre, 32))
        step = max(1, len(ln) // max(1, len(rest)))
        for i, t in enumerate(ln):
            if i % step == 0 and rest:
                for u in wq_load(rest.pop(0)):
                    A(u)
            self.L.append(t)
        for n in rest:
            for u in wq_load(n):
                A(u)
        self.stamp(3)
        for n in range(32):
            self.abuild(24, 21 + n // 16, 12, n % 16)
            if self.wo_early:
                A(f"s_waitcnt vmcnt({31 if n > 0 else 31})" if n == 0 else f"s_waitcnt vmcnt({30})")
                if n > 0:
                    self.wo_load(n - 1)
                else:
                    self.nop(1)
            else:
                A(f"s_waitcnt vmcnt({31-n})")
                self.nop(1)
            self.mfma(28, 24, self.wslot(n), None if n == 0 else 28)
        if self.wo_early:
            self.wo_load(31)
        A("v_and_b32 v6, 1, v1")
        A("v_lshlrev_b32 v6, 4, v6")
        A("v_lshl_add_u32 v6, v2, 5, v6")
        A("s_lshl_b32 s47, s40, 9")
        A("v_add_u32 v6, s47, v6")
        self.nop(4)
        A(f"ds_write_b128 v6, v[28:31] offset:{L_QP}")
        A("s_waitcnt lgkmcnt(0)")
        self.stamp(4)
        A("s_barrier")
        self.srd(8, 38, WS_SIZE)
        self.srd(12, 36, 256)
        A("v_and_b32 v37, 1, v1")
        A("v_lshl_add_u32 v37, v2, 1, v37")
        A("v_lshlrev_b32 v37, 12, v37")
        A("s_lshl_b32 s52, s40, 17")
        A("s_lshl_b32 s47, s6, 4")
        A("s_add_u32 s52, s52, s47")
        for r in range(4):
            A(f"v_mov_b32 v{16+r}, -1")
        self.exec_lo()
        A("buffer_store_dwordx4 v[16:19], v37, s[8:11], s52 offen sc1")
        A("s_mov_b64 exec, 1")
        A("s_lshl_b32 s47, s6, 3")
        A(f"s_add_u32 s47, s47, {WS_ML}")
        A("s_cmp_eq_u32 s40, 0")
        A("s_cbranch_scc0 L_h_noml")
        A("buffer_store_dwordx2 v[16:17], off, s[8:11], s47 sc1")
        A("L_h_noml:")
        self.signal("h")
        A("s_mov_b64 exec, -1")
        self.stamp(5)
        if not self.wo_early:
            for n in range(32):
                self.wo_load(n)
                if self.wo_pace:
                    A(f"s_waitcnt vmcnt({self.wo_pace-1})")
        A("s_waitcnt vmcnt(0)")
        A("s_mov_b32 s44, 0x05040100")
        A("s_mov_b32 s45, 0x07060302")
        for kb in range(4):
            P = self.W + 32 * kb
            E = lambda i, c: P + 4 * i + c
            O = lambda i, c: P + 16 + 4 * i + c
            for i in range(4):
                A(f"v_perm_b32 v16, v{O(i,i)}, v{E(i,i)}, s44")
                A(f"v_perm_b32 v{O(i,i)}, v{O(i,i)}, v{E(i,i)}, s45")
                A(f"v_mov_b32 v{E(i,i)}, v16")
                for c in range(i + 1, 4):
                    A(f"v_perm_b32 v16, v{O(i,c)}, v{E(i,c)}, s44")
                    A(f"v_perm_b32 v17, v{O(i,c)}, v{E(i,c)}, s45")
                    A(f"v_perm_b32 v{E(i,c)}, v{O(c,i)}, v{E(c,i)}, s44")
                    A(f"v_perm_b32 v{O(i,c)}, v{O(c,i)}, v{E(c,i)}, s45")
                    A(f"v_mov_b32 v{E(c,i)}, v16")
                    A(f"v_mov_b32 v{O(c,i)}, v17")
        A("v_and_b32 v38, 7, v0")
        A("v_mul_u32_u24 v38, 272, v38")
        A("v_lshl_add_u32 v38, v1, 4, v38")
        A(f"v_mov_b32 v39, {L_MW}")
        self.stamp(6)
        A("s_barrier")
        self.stamp(7)
        for kb in range(4):
            A(f"ds_read_b128 v[{4+4*kb}:{7+4*kb}], v38 offset:{L_OA+64*kb}")
        A("ds_read_b128 v[20:23], v39")
        B = lambda kb, t: self.W + 32 * kb + (16 if t & 1 else 0) + 4 * (t // 2)
        acc = lambda t: 24 if t == 0 else B(0, t - 1)
        fill = []
        fill.append("v_max3_f32 v28, v20, v21, v22")
        fill.append("v_max_f32 v28, v28, v23")
        for w in range(4):
            fill.append(f"v_sub_f32 v{20+w}, v{20+w}, v28")
        for w in range(4):
            fill.append(f"v_mul_f32 v{20+w}, {LOG2E:#x}, v{20+w}")
        for w in range(4):
            fill.append(f"v_exp_f32 v{20+w}, v{20+w}")
        def comb(t):
            a = acc(t)
            return [f"v_mul_f32 v{28+t}, v20, v{a}"] + [f"v_fmac_f32 v{28+t}, v{20+r}, v{a+r}" for r in range(1, 4)]
        for t in range(8):
            for kb in range(4):
                if t == 0:
                    A(f"s_waitcnt lgkmcnt({4-kb})")
                self.mfma(acc(t), 4 + 4 * kb, B(kb, t), None if kb == 0 else acc(t))
                if t == 0 and kb == 3:
                    A("s_waitcnt lgkmcnt(0)")
                if t >= 1:
                    for _ in range(2):
                        if fill:
                            A(fill.pop(0))
            if t >= 2:
                fill += comb(t - 2)
        while fill:
            A(fill.pop(0))
        for s in comb(6):
            A(s)
        self.nop(2)
        for s in comb(7):
            A(s)
        self.nop(2)
        for t in range(4):
            A(f"v_permlane16_swap_b32 v{28+t}, v{32+t}")
        for t in range(4):
            A(f"v_add_f32 v{28+t}, v{28+t}, v{32+t}")
        for t in range(4):
            A(f"v_min_u32 v{28+t}, -2, v{28+t}")
        self.exec_lo()
        A("buffer_store_dwordx4 v[28:31], v37, s[8:11], s52 offen sc1")
        self.stamp(8)
        self.flush_stamps(9)
        A("s_endpgm")

    def poll(self, label, loads, regs, sleep=0, between=None):
        A = self.A
        A("s_mov_b32 s47, 0")
        A(f"{label}:")
        for s in loads:
            A(s)
        if between:
            A("s_cmp_eq_u32 s47, 0")
            A(f"s_cbranch_scc0 {label}_w")
            between()
            A(f"{label}_w:")
        A("s_waitcnt vmcnt(0)")
        r = list(regs)
        A(f"v_max_u32 v3, v{r[0]}, v{r[1]}")
        r = r[2:]
        while r:
            A(f"v_max3_u32 v3, v3, v{r[0]}, v{r[1]}")
            r = r[2:]
        A("v_cmp_eq_u32 vcc, -1, v3")
        A("s_add_u32 s47, s47, 1")
        A(f"s_cbranch_vccz {label}_ok")
        if sleep:
            A(f"s_sleep {sleep}")
        A("s_cmp_lt_u32 s47, 0x40000")
        A(f"s_cbranch_scc1 {label}")
        A(f"{label}_ok:")

    def aux(self):
        A = self.A
        A("L_aux:")
        A(f"s_cmp_lt_u32 s2, {NFFN}")
        A("s_cbranch_scc1 L_ffn")
        A(f"s_cmp_ge_u32 s2, {CONS0}")
        A("s_cbranch_scc1 L_cons")
        A("s_endpgm")
        A("L_cons:")
        A("s_barrier")
        A("s_waitcnt lgkmcnt(0)")
        A(f"s_sub_u32 s40, s2, {CONS0}              ; colgroup")
        self.srd(8, 38, WS_SIZE)
        self.srd(12, 36, 256)
        self.srd(48, 16, 1280)
        self.srd(52, 34, 1280)
        A("s_lshl_b32 s41, s40, 3")
        A("v_lshlrev_b32 v4, 1, v1")
        A("buffer_load_ushort v5, v4, s[48:51], s41 offen")
        A(f"v_mov_b32 v7, {L_MW}")
        A("s_mov_b32 s47, 0")
        A("L_c_trig:")
        A("s_sleep 100")
        A("ds_read_b32 v6, v7")
        A("s_waitcnt lgkmcnt(0)")
        A("v_readfirstlane_b32 s42, v6")
        A("s_add_u32 s47, s47, 1")
        A("s_cmp_lg_u32 s42, -1")
        A("s_cbranch_scc1 L_c_trig_ok")
        A("s_cmp_lt_u32 s47, 0x10000")
        A("s_cbranch_scc1 L_c_trig")
        A("L_c_trig_ok:")
        A("v_lshlrev_b32 v7, 2, v0")
        A("s_mov_b32 s47, 0")
        A("L_c_cnt:")
        if self.byteflag:
            A("buffer_load_dword v6, v7, s[12:15], 0 offen sc1")
            A("s_waitcnt vmcnt(0)")
            A("v_cmp_ne_u32 vcc, 0x01010101, v6")
            A("s_add_u32 s47, s47, 1")
            A("s_cbranch_vccz L_c_cnt_ok")
        else:
            A("buffer_load_dword v6, off, s[12:15], 0 sc1")
            A("s_waitcnt vmcnt(0)")
            A("v_readfirstlane_b32 s42, v6")
            A("s_add_u32 s47, s47, 1")
            A("s_cmp_ge_u32 s42, 256")
            A("s_cbranch_scc1 L_c_cnt_ok")
        A("s_sleep 100")
        A("s_cmp_lt_u32 s47, 0x10000")
        A("s_cbranch_scc1 L_c_cnt")
        A("L_c_cnt_ok:")
        self.stamp(1)
        A("v_lshlrev_b32 v5, 16, v5")
        A("v_lshlrev_b32 v6, 4, v0               ; lane*16")
        A("v_mov_b32 v7, 0x7fffffff")
        A(f"v_cmp_gt_u32 vcc, {NFFN}, v0")
        A("s_lshl_b32 s42, s40, 9")
        A(f"s_add_u32 s42, s42, {WS_GP}")
        A("v_cndmask_b32 v7, v7, v6, vcc")
        self.poll("L_c_gp", ["buffer_load_dwordx4 v[8:11], v7, s[8:11], s42 offen sc1"], range(8, 12), sleep=100)
        self.reduce4(8)
        self.bfr(8, 8)
        A(f"v_mul_f32 v9, {LOG2E | 0x80000000:#x}, v8")
        A("v_exp_f32 v9, v9")
        self.nop(1)
        A("v_add_f32 v9, 1.0, v9")
        A("v_rcp_f32 v9, v9")
        self.nop(1)
        A("v_mul_f32 v8, v8, v9")
        self.bfr(8, 8)
        A("v_lshlrev_b32 v7, 3, v0               ; lane*8")
        A(f"s_mov_b32 s42, {WS_ML}")
        A("s_lshl_b32 s43, s40, 12")
        self.stamp(2)
        A("s_barrier")
        self.stamp(3)
        self.poll("L_c_ml", [f"buffer_load_dwordx2 v[{12+2*i}:{13+2*i}], v7, s[8:11], s42 offen offset:{512*i} sc1" for i in range(4)], range(12, 20))
        self.stamp(4)
        def weights():
            steps = ["quad_perm:[1,0,3,2]", "quad_perm:[2,3,0,1]", "row_half_mirror"]
            for i in range(4):
                A(f"v_max_f32_dpp v{20+i}, v{12+2*i}, v{12+2*i} {steps[0]} {DPPF}")
            for st in steps[1:]:
                for i in range(4):
                    A(f"v_max_f32_dpp v{20+i}, v{20+i}, v{20+i} {st} {DPPF}")
            for i in range(4):
                A(f"v_sub_f32 v{20+i}, v{12+2*i}, v{20+i}")
            for i in range(4):
                A(f"v_mul_f32 v{20+i}, {LOG2E:#x}, v{20+i}")
            for i in range(4):
                A(f"v_exp_f32 v{20+i}, v{20+i}")
            for i in range(4):
                A(f"v_mul_f32 v{13+2*i}, v{13+2*i}, v{20+i}")
            for st in steps:
                for i in range(4):
                    A(f"v_add_f32_dpp v{13+2*i}, v{13+2*i}, v{13+2*i} {st} {DPPF}")
            for i in range(4):
                A(f"v_rcp_f32 v{13+2*i}, v{13+2*i}")
            for i in range(4):
                A(f"v_mul_f32 v{20+i}, v{20+i}, v{13+2*i}")
        self.poll("L_c_u", [f"buffer_load_dwordx4 v[{24+4*i}:{27+4*i}], v6, s[8:11], s43 offen offset:{1024*i} sc1" for i in range(4)], range(24, 40), between=weights)
        self.stamp(5)
        for r in range(4):
            A(f"v_mul_f32 v{40+r}, v20, v{24+r}")
        for i in range(1, 4):
            for r in range(4):
                A(f"v_fmac_f32 v{40+r}, v{20+i}, v{24+4*i+r}")
        self.reduce4(40)
        self.bfr(40, 40)
        A("v_mul_f32 v40, v40, v8")
        self.bfr(40, 40)
        A("v_add_f32 v40, v40, v5")
        A("v_cvt_pk_bf16_f32 v40, v40, v40")
        A("s_mov_b32 exec_lo, 0x00010001")
        A("s_mov_b32 exec_hi, 0x00010001")
        A("buffer_store_short v40, v4, s[52:55], s41 offen")
        self.stamp(6)
        self.flush_stamps(7)
        A("s_endpgm")
        A("L_ffn:")
        A("s_barrier")
        A("s_waitcnt lgkmcnt(0)")
        self.srd(8, 38, WS_SIZE)
        self.srd(12, 36, 256)
        self.srd(48, 16, 1280)
        self.srd(52, 32, 1728 * 1280)
        A("v_and_b32 v37, 1, v1")
        A("v_lshl_add_u32 v37, v2, 1, v37")
        A("v_lshlrev_b32 v37, 9, v37")
        A("s_lshl_b32 s46, s2, 4")
        A(f"s_add_u32 s46, s46, {WS_GP}")
        for r in range(4):
            A(f"v_mov_b32 v{16+r}, -1")
        self.exec_lo()
        for k in range(5):
            A(f"s_add_u32 s47, s46, {16384*k}")
            A("buffer_store_dwordx4 v[16:19], v37, s[8:11], s47 offen sc1")
        A("s_mov_b64 exec, -1")
        A("v_lshl_add_u32 v4, v2, 2, v1")
        A("v_lshlrev_b32 v4, 1, v4")
        for k in range(10):
            A(f"buffer_load_ushort v{20+k}, v4, s[48:51], 0 offen offset:{128*k}")
        A("s_mov_b64 exec, 1")
        self.signal("f")
        A("s_mov_b64 exec, -1")
        self.masks(12, 6, 44)
        for k in range(10):
            A(f"v_lshlrev_b32 v{20+k}, 16, v{20+k}")
        self.ln_stats(list(range(20, 30)), 34, 35, 16, 17)
        for k in range(10):
            self.ln_apply(20 + k, 34, 35)
        A("s_mov_b32 s44, 0xff00ff00"); A("s_mov_b32 s45, 0xff00ff00")
        A("v_mov_b32 v38, s28"); A("v_mov_b32 v39, s29")
        A("v_mov_b32 v16, s30"); A("v_mov_b32 v17, s31")
        A("v_cndmask_b32 v38, v38, v16, s[44:45]")
        A("v_cndmask_b32 v39, v39, v17, s[44:45]")
        A("v_and_b32 v16, 7, v0")
        A("v_lshlrev_b32 v16, 4, v16")
        A("v_mul_u32_u24 v17, 3456, v1")
        A("v_add_u32 v16, v16, v17")
        A("s_lshl_b32 s47, s2, 7")
        A("v_add_u32 v16, s47, v16")
        A("v_mov_b32 v17, 0")
        A("v_lshl_add_u64 v[38:39], v[38:39], 0, v[16:17]")
        A("s_mov_b32 s44, 13824"); A("s_mov_b32 s45, 0")
        for r in range(4):
            A(f"v_mov_b32 v{8+r}, 0")
        FD = self.fdepth
        def gload(n):
            n %= 16
            A(f"global_load_dwordx4 v[{40+4*n}:{43+4*n}], v[38:39], off {self.fflag}")
            A("v_lshl_add_u64 v[38:39], v[38:39], 0, s[44:45]")
        def fblock(last):
            for n in range(16):
                self.abuild(4, 20, 12, n)
                if last and n + FD >= 16:
                    A(f"s_waitcnt vmcnt({15-n})")
                    self.nop(1)
                else:
                    A(f"s_waitcnt vmcnt({FD-1})")
                    gload(n + FD)
                self.mfma(8, 4, 40 + 4 * n, 8)
        for n in range(FD):
            gload(n)
        A("s_mov_b32 s41, 0")
        A("L_f_loop:")
        fblock(False)
        for k in range(9):
            A(f"v_mov_b32 v{20+k}, v{21+k}")
        A("s_add_u32 s41, s41, 1")
        A("s_cmp_lt_u32 s41, 9")
        A("s_cbranch_scc1 L_f_loop")
        fblock(True)
        A("v_mul_u32_u24 v36, 1280, v1")
        A("v_lshl_add_u32 v36, v2, 4, v36")
        A(f"s_mul_i32 s41, s2, {64*1280}")
        def dload(i):
            n, k = i // 5, i % 5
            sl = 40 + 4 * (i % 16)
            if k == 0:
                A(f"s_add_u32 s42, s41, {n*4*1280}")
            A(f"buffer_load_dwordx4 v[{sl}:{sl+3}], v36, s[52:55], s42 offen offset:{256*k} {self.fflag}")
        for i in range(FD):
            dload(i)
        self.nop(4)
        for r in range(4):
            self.bfr(8 + r, 8 + r)
        for r in range(4):
            A(f"v_max_f32 v{4+r}, 0, v{8+r}")
        self.nop(2)
        for r in range(4):
            A(f"v_mul_f32_dpp v{4+r}, v{8+r}, v{4+r} row_ror:8 {DPPF}")
        for r in range(4):
            A(f"v_cvt_pk_bf16_f32 v{4+r}, v{4+r}, v{4+r}")
        A("v_lshlrev_b32 v16, 5, v2")
        A("v_lshl_add_u32 v16, v1, 4, v16")
        A("s_mov_b64 exec, 0x00ff00ff")
        A(f"ds_write_b128 v16, v[4:7] offset:{L_H}")
        A("s_mov_b64 exec, -1")
        A("v_lshl_add_u32 v16, v2, 2, v1")
        A("v_lshlrev_b32 v16, 2, v16")
        A(f"ds_read_b32 v38, v16 offset:{L_H}")
        A("s_waitcnt lgkmcnt(0)")
        for n in range(16):
            self.abuild(4, 38, 12, n)
            for k in range(5):
                i = 5 * n + k
                if i + FD < 80:
                    A(f"s_waitcnt vmcnt({FD-1})")
                    dload(i + FD)
                else:
                    A(f"s_waitcnt vmcnt({79-i})")
                    self.nop(1)
                self.mfma(16 + 4 * k, 4, 40 + 4 * (i % 16), None if n == 0 else 16 + 4 * k)
        self.nop(8)
        for r in range(20):
            A(f"v_min_u32 v{16+r}, -2, v{16+r}")
        self.exec_lo()
        for k in range(5):
            A(f"s_add_u32 s47, s46, {16384*k}")
            A(f"buffer_store_dwordx4 v[{16+4*k}:{19+4*k}], v37, s[8:11], s47 offen sc1")
        self.stamp(1)
        self.flush_stamps(2)
        A("s_endpgm")


if __name__ == "__main__":
    out = sys.argv[1]
    kw = eval("dict(" + (sys.argv[2] if len(sys.argv) > 2 else "") + ")")
    open(out, "w").write(Gen(**kw).gen())
```

```python
import sys
from gen_kernel import Gen as Base, NAME, LOG2E, SCALE, DPPF

WS_O = 0
WS_ML = 0x80000
WS_U = 0x90000
WS_TS = 0xF8000
WS_E = 0xFC000
WS_GP = 0x200000
WS_QX = 0x2A0000
WS_FX = 0x2E0000
WS_SIZE = 0x400000
L_Q = 16640
L_MW = L_Q + 256
L_FLAG = L_MW + 16
L_CNT = L_FLAG + 16
L_ANCH = L_CNT + 4
L_PROG = L_CNT + 8
L_LL = L_CNT + 16
L_LOC = L_LL + 1024
L_H = L_LOC + 16
L_END = L_H + 512
NFH = 27
CONS0 = 216


class Gen(Base):
    def __init__(self, D=5, LA=7, DL=None, N0=28, Dp=5, cu=8, diag=False, wflag="nt", hdepth=30,
                 kmask=0, vmask=0, flagstep=4, mlsleep=8, osleep=0, usleep=2,
                 fb=True, tau=222, theta=0, theta2=-40, cp0=3, cpd=6, ncp=5, cplag=2, phase=1, qsleep=1, wopace=0, early=True, dbg='', fast=True, spacer=True, sflag=True, touch=0):
        self.L = []
        self.D, self.LA, self.DL, self.N0, self.Dp, self.cu = D, LA, DL, N0, Dp, cu
        self.diag = diag
        self.wflag, self.hdepth = wflag, hdepth
        self.kmask, self.vmask = kmask, vmask
        self.flagstep, self.mlsleep, self.osleep, self.usleep = flagstep, mlsleep, osleep, usleep
        self.fb, self.tau, self.theta, self.theta2 = fb, tau, theta, theta2
        self.cp0, self.cpd, self.ncp, self.cplag = cp0, cpd, ncp, cplag
        self.phase, self.qsleep = phase, qsleep
        self.wopace, self.early, self.dbg = wopace, early, dbg
        self.fast, self.spacer, self.sflag = fast, spacer, sflag
        self.touch = touch
        self.NS = (N0 + 15) // 16 * 16
        self.NB = self.NS + 16
        self.uid = 0

    def flush_stamps(self, n):
        if not self.diag:
            return
        A = self.A
        A("s_waitcnt lgkmcnt(0)")
        A("s_mov_b64 exec, 1")
        A("s_lshl_b32 s64, s2, 4"); A("s_add_u32 s64, s64, s3"); A("s_lshl_b32 s64, s64, 6")
        A("s_add_u32 s64, s64, 0x100000")
        A("v_mov_b32 v1, 0")
        for i in range(n):
            A(f"v_mov_b32 v2, s{70+2*i}")
            A(f"buffer_store_dword v2, v1, s[48:51], s64 offen offset:{4*i}")
            A("s_nop 0")

    def gen(self):
        A = self.A
        hdr = open("cdna_kernels/" + NAME + ".s.ref").read().split("\n")
        for line in hdr:
            if line.startswith("; @launch"):
                break
            self.L.append(line)
        self.L.append(f"; @launch grid=(256,1,1) block=(512,1,1) lds={L_END}")
        self.L.append('.amdgcn_target "amdgcn-amd-amdhsa--gfx950"')
        self.L.append(".text")
        self.L.append(f".globl {NAME}_kernel")
        self.L.append(".p2align 12")
        self.L.append(".p2align 8")
        self.L.append(f".type {NAME}_kernel,@function")
        self.L.append(f"{NAME}_kernel:")
        A("s_cmp_ge_u32 s2, 256")
        A("s_cbranch_scc0 L_go")
        A("s_endpgm")
        A("L_go:")
        self.stamp(0)
        A("s_load_dwordx16 s[16:31], s[0:1], 0")
        A("s_load_dwordx8 s[32:39], s[0:1], 64")
        A("v_lshrrev_b32 v1, 6, v0")
        A("v_and_b32 v0, 63, v0")
        A("v_readfirstlane_b32 s3, v1")
        A("s_and_b32 s4, s2, 7")
        A("s_lshr_b32 s5, s2, 3")
        A("s_lshl_b32 s4, s4, 2")
        A("s_lshr_b32 s6, s5, 3")
        A("s_add_u32 s4, s4, s6                  ; head")
        A("s_and_b32 s5, s5, 7                   ; chunk")
        A("s_lshl_b32 s6, s4, 3")
        A("s_add_u32 s6, s6, s5")
        A("v_lshrrev_b32 v1, 4, v0               ; s = lane>>4")
        A("v_and_b32 v2, 15, v0                  ; j = lane&15")
        A("s_cmp_ge_u32 s3, 4")
        A("s_cbranch_scc1 L_helper")
        self.streamer_issue()
        A("s_branch L_streamer")
        self.helper()
        self.streamer()
        self.L.append('.section .rodata,"a"')
        self.L.append(".p2align 6")
        self.L.append(f".amdhsa_kernel {NAME}_kernel")
        for s in ["next_free_vgpr 256", "next_free_sgpr 102", "accum_offset 256", "group_segment_fixed_size 0",
                  "kernarg_size 96", "user_sgpr_count 2", "user_sgpr_kernarg_segment_ptr 1",
                  "system_sgpr_workgroup_id_x 1", "float_denorm_mode_32 3"]:
            self.L.append("  .amdhsa_" + s)
        self.L.append(".end_amdhsa_kernel")
        L = self.L
        if "c" in self.dbg:
            L = [t for t in L if not ("buffer_store_dwordx4 v[32:35], v60" in t or "buffer_store_dwordx4 v[16:19], v226" in t or "buffer_store_dwordx2 v[16:17], off" in t)]
        if "g" in self.dbg:
            L = [t for t in L if not ("v37, s[48:51], s46 offen" in t)]
        if "f" in self.dbg:
            L = [t for t in L if "s_cbranch_scc1 L_ffn" not in t]
        if "w" in self.dbg:
            L = [t for t in L if "v36, s[60:63], s41" not in t]
        return "\n".join(L) + "\n"

    RING = 64
    def slot(self, p, steady=False):
        if steady or p >= self.NS:
            p %= 16
        return self.RING + 4 * p

    def sload(self, n, switch=None, steady=False):
        A = self.A
        if n % 16 == 0:
            if switch == "KV":
                A("s_cmp_eq_u32 s15, 15")
                A("s_cselect_b32 s8, s20, s8")
                A("s_cselect_b32 s9, s21, s9")
                A("s_cselect_b64 s[44:45], -1, 0")
                A("v_cndmask_b32 v3, v3, v4, s[44:45]")
            if switch == "END":
                A("s_cmp_eq_u32 s15, 15")
                A("s_cselect_b32 s10, 0, s10")
            A("s_and_b32 s59, s13, 7")
            A("s_mul_i32 s59, s59, 0x4800            ; b<<14 | b<<11")
            A("s_and_b32 s59, s59, 0x7000")
            A("s_lshl_b32 s12, s13, 19")
            A("s_or_b32 s12, s12, s59")
            A("s_xor_b32 s12, s12, s14")
            A("s_add_u32 s13, s13, 1")
            A("s_and_b32 s13, s13, 15")
            A("s_add_u32 s59, s12, 0x10000")
        elif n % 8 == 0:
            A("s_add_u32 s12, s12, 0x8000")
            A("s_add_u32 s59, s59, 0x8000")
        sl = self.slot(n, steady)
        A(f"buffer_load_dwordx4 v[{sl}:{sl+3}], v3, s[8:11], s{59 if n & 1 else 12} offen offset:{1024*((n>>1)&3)} nt")

    def dwait(self):
        A = self.A
        if self.LA == self.D:
            A(f"s_waitcnt vmcnt({self.D-1})")
            return
        self.uid += 1
        A(f"s_waitcnt vmcnt({self.LA-1})")
        A(f"s_cbranch_vccnz L_dw{self.uid}")
        A(f"s_waitcnt vmcnt({self.D-1})")
        if self.DL:
            A("s_cmp_eq_u32 s69, 0")
            A(f"s_cbranch_scc1 L_dw{self.uid}")
            A(f"s_waitcnt vmcnt({self.DL-1})")
        A(f"L_dw{self.uid}:")

    def fb_sample(self):
        if self.fb:
            self.A("s_memrealtime s[64:65]")
            self.A(f"ds_read_b32 v59, v56 offset:{L_ANCH}")

    def setdeep(self, sreg, fb=False, base=0):
        A = self.A
        if self.LA == self.D:
            return
        if fb and self.fb:
            A("s_waitcnt lgkmcnt(0)")
            A("v_readfirstlane_b32 s66, v59")
            A(f"s_add_u32 s67, s15, {base}")
            A(f"s_mul_i32 s68, s67, {self.tau}")
            A("s_sub_u32 s68, s64, s68")
            A("v_mov_b32 v58, s67")
            A("v_mov_b32 v59, s68")
            A(f"ds_write_b64 v57, v[58:59] offset:{L_PROG}")
            A("s_sub_u32 s68, s68, s66")
            if self.DL:
                A(f"s_add_u32 s69, s68, 2000")
                A(f"s_cmp_lt_u32 s69, {2000 + self.theta2}")
                A("s_cselect_b32 s69, 1, 0")
            A(f"s_cmp_gt_i32 s68, {self.theta}")
            A("s_cselect_b64 vcc, -1, 0")
            A(f"s_bitcmp1_b32 s{sreg}, s15")
            A("s_cselect_b64 vcc, -1, vcc")
            if self.diag:
                A("s_mov_b32 m0, s67")
                A("v_writelane_b32 v55, s64, m0")
                A("s_and_b32 s66, vcc_lo, 2")
                A("s_or_b32 s66, s66, s69")
                A("v_writelane_b32 v54, s66, m0")
            return
        A(f"s_bitcmp1_b32 s{sreg}, s15")
        A("s_cselect_b64 vcc, -1, 0")

    def streamer_issue(self):
        A = self.A
        A("v_lshlrev_b32 v4, 4, v0")
        A("v_and_b32 v3, 48, v4                  ; c*16")
        A("v_lshl_add_u32 v3, v1, 6, v3          ; + s*64")
        A("v_bfe_u32 v5, v0, 2, 2                ; a")
        A("v_lshl_add_u32 v3, v5, 8, v3          ; + a*256")
        A("s_lshl_b32 s14, s4, 23")
        A("s_lshr_b32 s7, s5, 1")
        A("s_lshl_b32 s7, s7, 17")
        A("s_or_b32 s14, s14, s7")
        A("s_and_b32 s7, s5, 1")
        A("s_lshl_b32 s7, s7, 14")
        A("s_or_b32 s14, s14, s7")
        A("s_lshl_b32 s7, s3, 12")
        A("s_or_b32 s14, s14, s7")
        A(f"s_lshr_b32 s13, s4, {self.phase}")
        A("s_and_b32 s13, s13, 15")
        A("s_lshl_b32 s46, s5, 2")
        A("s_add_u32 s46, s46, s3")
        A("s_waitcnt lgkmcnt(0)")
        self.srd(8, 18, 0x10000000)
        for n in range(self.Dp):
            self.sload(n)

    def kstep_post(self, n, since):
        G, g = (n % 16) // 4, n % 4
        if g == 2:
            if since < 8:
                self.nop(8 - since)
            self.kpost(32 + 4 * ((G - 1) & 1), G)

    def streamer(self):
        A = self.A
        D, LA, N0, Dp = self.D, self.LA, self.N0, self.Dp
        A("L_streamer:")
        self.srd(48, 38, WS_SIZE)
        A("v_and_b32 v6, 3, v2")
        A("v_lshl_add_u32 v6, v1, 2, v6          ; rho*4 + (j&3)")
        A("v_lshlrev_b32 v53, 4, v6")
        A("v_lshl_add_u32 v60, v5, 7, v53        ; + (j>>2)*128")
        A("s_lshl_b32 s47, s4, 14")
        A("s_lshl_b32 s7, s46, 9")
        A("s_add_u32 s47, s47, s7")
        for r in range(4):
            A(f"v_mov_b32 v{32+r}, -1")
        self.exec_lo()
        A("buffer_store_dwordx4 v[32:35], v60, s[48:51], s47 offen sc1")
        A("s_mov_b64 exec, -1")
        self.masks(12, 6, 40)
        A("s_mov_b32 s40, 0xaaaaaaaa"); A("s_mov_b32 s41, 0xaaaaaaaa")
        A("s_mov_b32 s42, 0xcccccccc"); A("s_mov_b32 s43, 0xcccccccc")
        A(f"s_mov_b32 s57, {self.kmask:#x}"); A(f"s_mov_b32 s58, {self.vmask:#x}")
        A("s_mov_b32 s69, 0")
        A("s_lshl_b32 s7, s3, 2")
        A("v_mov_b32 v61, s7                     ; w*4")
        A("v_mov_b32 v6, 0")
        A(f"ds_write_b32 v61, v6 offset:{L_FLAG}")
        A(f"ds_write_b32 v6, v6 offset:{L_CNT}")
        if self.fb:
            A("s_memrealtime s[64:65]")
            A("v_mov_b32 v56, 0")
            A("v_mov_b32 v7, 0")
            A(f"ds_write_b64 v56, v[6:7] offset:{L_PROG}")
            A("s_cmp_eq_u32 s3, 1")
            A(f"s_cselect_b32 s7, 0, {L_H - L_PROG + 256}")
            A("v_mov_b32 v57, s7")
            A("s_waitcnt lgkmcnt(0)")
            A("s_add_u32 s64, s64, 0x100000")
            A("v_mov_b32 v7, s64")
            A(f"ds_write_b32 v56, v7 offset:{L_ANCH}")
        A("s_lshl_b32 s7, s3, 8")
        A("v_lshl_add_u32 v62, v0, 2, s7")
        A("s_lshl_b32 s7, s3, 12")
        A("v_and_b32 v8, 60, v0")
        A("v_add_u32 v8, s7, v8")
        A("v_mov_b32 v5, 0xff800000")
        A("s_mov_b32 s15, 0")
        for n in range(Dp, N0):
            A(f"s_waitcnt vmcnt({Dp if n < 2 * Dp else Dp-1})")
            if (n - Dp) % 4 == 0 and (n - Dp) // 4 < 8:
                self.stamp(7 + (n - Dp) // 4)
            self.sload(n)
        A("s_waitcnt lgkmcnt(0)")
        self.stamp(1)
        A("s_barrier")
        self.stamp(2)
        A(f"ds_read_b128 v[44:47], v53 offset:{L_Q}")
        A(f"ds_read_b32 v7, v6 offset:{L_LOC}")
        A("s_waitcnt lgkmcnt(0)")
        A("v_readfirstlane_b32 s56, v7")
        for g in range(4):
            pat = (0xf << (4 * g)) * 0x00010001
            A(f"s_mov_b32 s44, {pat:#x}"); A(f"s_mov_b32 s45, {pat:#x}")
            for r in range(4):
                A(f"v_cndmask_b32 v{16+4*g+r}, 0, v{44+r}, s[44:45]")
        self.nop(2)
        self.stamp(3)
        assert N0 >= 2 * Dp + 1 and N0 <= self.NS
        NB = self.NB
        issued, landed = N0, N0 - Dp
        last_mfma = {}
        self.setdeep(57)
        for n in range(NB):
            G, g = n // 4, n % 4
            if n % 16 == 0 and n > 0:
                A(f"s_mov_b32 s15, {n//16}")
                self.setdeep(57)
            if n % 16 == 0 and self.diag and self.fb:
                A("s_memrealtime s[64:65]")
                A("s_waitcnt lgkmcnt(0)")
                A(f"v_writelane_b32 v55, s64, {n//16}")
                A(f"v_writelane_b32 v54, 0, {n//16}")
            want = issued - n <= LA or (n >= 1 and (n <= D or n % self.cu == 0))
            if want and issued < NB + LA:
                prev = issued - self.NS if issued < self.NS + 16 else issued - 16
                if prev < n:
                    self.dwait()
                    landed = max(landed, issued - (LA - 1))
                    self.sload(issued)
                    issued += 1
            if landed <= n:
                A(f"s_waitcnt vmcnt({issued - n - 1})")
                landed = n + 1
            dreg = 32 + 4 * (G & 1)
            self.mfma(dreg, 16 + 4 * g, self.slot(n), None if g == 0 else dreg)
            last_mfma[G] = len(self.L)
            if g == 2 and G > 0:
                since = sum(1 for t in self.L[last_mfma[G - 1]:] if not t.endswith(":") and "vmcnt" not in t and "cbranch" not in t and "s69" not in t)
                self.kstep_post(n, since)
            if n % 16 == 15:
                A("v_add_u32 v8, 256, v8")
        assert issued == NB + LA, (issued, NB + LA)
        A(f"s_mov_b32 s15, {NB//16}")
        self.fb_sample()
        A("L_kloop:")
        self.setdeep(57, True, 0)
        for n in range(16):
            G, g = n // 4, n % 4
            self.dwait()
            self.sload(n + LA, "KV", True)
            dreg = 32 + 4 * (G & 1)
            self.mfma(dreg, 16 + 4 * g, self.slot(n, True), None if g == 0 else dreg)
            self.kstep_post(n, 9)
            if n == 14:
                self.fb_sample()
        A("v_add_u32 v8, 256, v8")
        A("s_add_u32 s15, s15, 1")
        A("s_cmp_lt_u32 s15, 16")
        A("s_cbranch_scc1 L_kloop")
        self.nop(6)
        self.kpost(36, 0)
        self.stamp(4)
        A("s_lshl_b32 s7, s3, 12")
        A("v_lshl_add_u32 v8, v2, 2, v1          ; 4j+s")
        A("v_lshlrev_b32 v8, 2, v8")
        A("v_add_u32 v8, s7, v8")
        A("ds_read_b32 v11, v8 offset:64")
        self.wave_reduce("v_max_f32", 5, 6, rors=(4, 8))
        self.bfr(9, 5)
        A(f"v_mul_f32 v9, {SCALE:#x}, v9")
        self.bfr(9, 9)
        A(f"ds_write_b32 v61, v9 offset:{L_MW}")
        A("v_mov_b32 v5, 0                       ; l")
        A("v_mov_b32 v63, 0")
        for r in range(4):
            A(f"v_mov_b32 v{40+r}, 0")
        A("s_mov_b32 s15, 0")
        A("L_vloop:")
        self.setdeep(58, True, 16)
        A("s_waitcnt lgkmcnt(0)")
        self.pcalc()
        for n in range(16):
            self.abuild(16, 10, 12, n)
            self.dwait()
            self.sload(n + LA, "END", True)
            self.mfma(40, 16, self.slot(n, True), 40)
            if n == 14:
                self.fb_sample()
            if n == self.flagstep:
                A("v_add_u32 v63, 1, v63")
                A(f"ds_write_b32 v62, v5 offset:{L_LL}")
                A(f"ds_write_b32 v61, v63 offset:{L_FLAG}")
        A("s_add_u32 s15, s15, 1")
        A("s_cmp_lt_u32 s15, 16")
        A("s_cbranch_scc1 L_vloop")
        self.stamp(5)
        self.exec_lo()
        A("s_cmp_eq_u32 s56, 0")
        self.nop(2)
        for r in range(4):
            A(f"v_min_u32 v{40+r}, -2, v{40+r}")
        if self.fast:
            A("s_cbranch_scc0 L_s_far")
            A("buffer_store_dwordx4 v[40:43], v60, s[48:51], s47 offen")
            A("s_branch L_s_fin")
            A("L_s_far:")
        A("buffer_store_dwordx4 v[40:43], v60, s[48:51], s47 offen sc1")
        A("L_s_fin:")
        A("s_barrier")
        self.stamp(6)
        if self.diag and self.fb:
            A("s_lshl_b32 s7, s2, 2"); A("s_add_u32 s7, s7, s3"); A("s_lshl_b32 s7, s7, 8"); A("s_add_u32 s7, s7, 0x140000")
            A("v_lshlrev_b32 v6, 2, v0")
            A("buffer_store_dword v55, v6, s[48:51], s7 offen")
            A("buffer_store_dword v54, v6, s[48:51], s7 offen offset:128")
        self.flush_stamps(15)
        A("s_endpgm")

    W = 64
    def lds_wait(self, label, addr_v, off, cmp, val, sleep):
        A = self.A
        A("s_mov_b32 s47, 0")
        A(f"{label}:")
        A(f"ds_read_b32 v3, v{addr_v} offset:{off}")
        A("s_waitcnt lgkmcnt(0)")
        A("v_readfirstlane_b32 s42, v3")
        A("s_add_u32 s47, s47, 1")
        A(f"{cmp} s42, {val}")
        A(f"s_cbranch_scc1 {label}_ok")
        A(f"s_sleep {sleep}")
        A("s_cmp_lt_u32 s47, 0x100000")
        A(f"s_cbranch_scc1 {label}")
        A(f"{label}_ok:")

    def mpoll(self, label, loads, regs, sleep=0, first=None):
        A = self.A
        A("s_mov_b32 s47, 0")
        for s in loads:
            A(s)
        if first:
            first()
        A(f"{label}:")
        A("s_waitcnt vmcnt(0)")
        r = list(regs)
        A(f"v_max_u32 v3, v{r[0]}, v{r[1]}")
        r = r[2:]
        while r:
            A(f"v_max3_u32 v3, v3, v{r[0]}, v{r[1]}")
            r = r[2:]
        A("v_cmp_eq_u32 vcc, -1, v3")
        A("s_add_u32 s47, s47, 1")
        A(f"s_cbranch_vccz {label}_ok")
        A("s_mov_b64 exec, vcc")
        if sleep:
            A(f"s_sleep {sleep}")
        for s in loads:
            A(s)
        A("s_cmp_lt_u32 s47, 0x40000")
        A(f"s_cbranch_scc1 {label}")
        A(f"{label}_ok:")
        A("s_mov_b64 exec, -1")

    def mktag(self):
        A = self.A
        A("s_lshr_b32 s54, s54, 4")
        A("s_mul_i32 s54, s54, 0x9e3779b1")
        A("s_add_u32 s54, s54, 0x7f4a7c15")
        A("s_lshl_b32 s54, s54, 4")

    def x_issue(self):
        A = self.A
        for i in range(5):
            A(f"buffer_load_dword v{16+i}, v3, s[8:11], 0 offen offset:{256*i}")
        for i in range(2):
            A(f"buffer_load_ushort v{21+i}, v4, s[8:11], s7 offen offset:{128*i}")

    def ln(self):
        A = self.A
        for i in range(5):
            A(f"v_lshlrev_b32 v{24+2*i}, 16, v{16+i}")
            A(f"v_and_b32 v{25+2*i}, 0xffff0000, v{16+i}")
        self.ln_stats(list(range(24, 34)), 34, 35, 16, 17)
        for i in range(2):
            A(f"v_lshlrev_b32 v{21+i}, 16, v{21+i}")
        for i in range(2):
            self.ln_apply(21 + i, 34, 35)
        self.nop(2)

    def exchange(self, tag, base, sleep, R):
        A = self.A
        A("s_mov_b32 s44, 0"); A("s_mov_b32 s45, -1")
        A("v_lshrrev_b32 v6, 1, v1")
        A("v_and_b32 v7, 1, v1")
        A("v_lshl_add_u32 v6, v7, 1, v6")
        A("v_lshl_add_u32 v6, v2, 2, v6")
        A("v_lshlrev_b32 v6, 4, v6")
        A("s_lshl_b32 s41, s6, 10")
        A(f"s_add_u32 s41, s41, {base}")
        A("s_getreg_b32 s47, hwreg(HW_REG_XCC_ID, 0, 4)")
        A("s_or_b32 s47, s47, s54")
        A("v_mov_b32 v25, s47")
        A("v_mov_b32 v27, s47")
        A("v_cndmask_b32 v24, v28, v30, s[44:45]")
        A("v_cndmask_b32 v26, v29, v31, s[44:45]")
        A("buffer_store_dwordx4 v[24:27], v6, s[48:51], s41 offen sc1")
        A("s_and_b32 s41, s41, 0xffffe000")
        A("s_add_u32 s43, s41, 4096")
        A("s_mov_b64 exec, s[62:63]")
        A("s_waitcnt vmcnt(0)")
        A("s_mov_b32 s47, 0")
        A(f"L_{tag}_x:")
        for c in range(8):
            A(f"buffer_load_dwordx4 v[{R+4*c}:{R+3+4*c}], v228, s[48:51], s{41 if c < 4 else 43} offen offset:{1024*(c%4)} sc1")
        for c in range(8):
            A(f"s_waitcnt vmcnt({7-c})")
            if c == 0:
                A(f"v_and_b32 v6, v{R+1}, v{R+3}")
                A(f"v_or_b32 v7, v{R+1}, v{R+3}")
            else:
                A(f"v_bitop3_b32 v6, v6, v{R+4*c+1}, v{R+4*c+3} bitop3:0x80")
                A(f"v_or3_b32 v7, v7, v{R+4*c+1}, v{R+4*c+3}")
                A(f"v_add_f32 v{R}, v{R}, v{R+4*c}")
                A(f"v_add_f32 v{R+2}, v{R+2}, v{R+4*c+2}")
        A("v_xor_b32 v8, s54, v6")
        A("v_xor_b32 v9, s54, v7")
        A("v_cmp_lt_u32 vcc, 15, v8")
        A("v_cmp_lt_u32 s[44:45], 15, v9")
        A("s_add_u32 s47, s47, 1")
        A("s_or_b64 vcc, vcc, s[44:45]")
        A(f"s_cbranch_scc0 L_{tag}_ok")
        if sleep:
            A(f"s_sleep {sleep}")
        A("s_cmp_lt_u32 s47, 0x40000")
        A(f"s_cbranch_scc1 L_{tag}_x")
        A(f"L_{tag}_ok:")

    def helper(self):
        A = self.A
        W = self.W
        A("L_helper:")
        A("s_sub_u32 s40, s3, 4                  ; hw")
        A("s_mul_i32 s7, s5, 160")
        A("v_lshl_add_u32 v4, v2, 2, v1          ; 4j+s")
        A("v_lshlrev_b32 v4, 1, v4")
        A("v_lshlrev_b32 v3, 2, v0               ; lane*4")
        A("v_lshlrev_b32 v228, 4, v0             ; lane*16")
        A("s_cmp_eq_u32 s40, 0")
        A("s_cbranch_scc0 L_h_noq")
        A("v_lshlrev_b32 v8, 13, v1")
        A("v_lshl_add_u32 v8, v2, 4, v8          ; s*8192 + j*16")
        A("v_add_u32 v9, 0x8000, v8")
        A("v_add_u32 v10, 0x10000, v8")
        A("v_add_u32 v11, 0x18000, v8")
        A(f"s_mul_i32 s42, s5, {80*8192}")
        A("s_lshl_b32 s43, s4, 8")
        A("s_add_u32 s42, s42, s43")
        A("s_waitcnt lgkmcnt(0)")
        A(f"s_load_dword s54, s[38:39], {WS_E:#x}")
        self.srd(8, 16, 1280)
        self.srd(12, 22, 640 * 8192)
        self.x_issue()
        for n in range(20):
            sl = W + 4 * n
            A(f"buffer_load_dwordx4 v[{sl}:{sl+3}], v{8+n%4}, s[12:15], s42 offen {self.wflag}")
            if n % 4 == 3 and n < 19:
                A("s_add_u32 s42, s42, 0x20000")
        self.stamp(1)
        self.srd(48, 38, WS_SIZE)
        self.masks(12, 6, 44)
        A("s_mov_b64 s[62:63], -1")
        A("s_waitcnt vmcnt(20)")
        self.stamp(2)
        self.ln()
        self.stamp(3)
        for n in range(20):
            self.abuild(24, 21 + n // 16, 12, n % 16)
            A(f"s_waitcnt vmcnt({19-n})")
            self.nop(1)
            self.mfma(28, 24, W + 4 * n, None if n == 0 else 28)
        A("s_waitcnt lgkmcnt(0)")
        self.mktag()
        self.exchange("q", WS_QX, self.qsleep, 160)
        A("v_xor_b32 v7, v6, v7")
        A("v_cvt_pk_bf16_f32 v6, v160, v162")
        A(f"ds_write_b32 v3, v6 offset:{L_Q}")
        A("v_mov_b32 v6, 0")
        A(f"ds_write_b32 v6, v7 offset:{L_LOC}")
        A("s_waitcnt lgkmcnt(0)")
        self.stamp(4)
        A("s_barrier")
        A("s_branch L_h_shadow")
        A("L_h_noq:")
        if self.touch:
            A("s_cmp_eq_u32 s40, 3")
            A("s_cbranch_scc0 L_h_notouch")
            A(f"s_mul_i32 s42, s5, {80*8192}")
            A(f"s_mul_i32 s43, s5, {80*3456}")
            A(f"s_mul_i32 s44, s6, {8*1280}")
            A(f"s_min_u32 s44, s44, {1727*1280}")
            A(f"s_mul_i32 s45, s4, {128*1280}")
            A("s_lshl_b32 s46, s4, 23")
            A("s_waitcnt lgkmcnt(0)")
            if self.touch & 1:
                A("s_load_dword s64, s[16:17], 0")
                A("s_load_dword s65, s[22:23], s42")
                A("s_mov_b32 s47, 0x290000")
                A("s_load_dword s66, s[38:39], s47")
                A("s_load_dword s67, s[28:29], s43")
                A("s_load_dword s68, s[30:31], s43")
                A("s_load_dword s69, s[32:33], s44")
                A("s_load_dword s60, s[24:25], s45")
                A("s_load_dword s61, s[34:35], 0")
            if self.touch & 2:
                A("s_waitcnt lgkmcnt(0)")
                for i in range(4):
                    A(f"s_load_dword s{64+i}, s[18:19], s46")
                    A(f"s_load_dword s{60+i}, s[20:21], s46")
                    A("s_add_u32 s46, s46, 0x200000")
            A("L_h_notouch:")
        if not self.early:
            A("s_barrier")
        A("s_waitcnt lgkmcnt(0)")
        self.srd(8, 16, 1280)
        self.srd(48, 38, WS_SIZE)
        A("s_cmp_eq_u32 s40, 1")
        A(f"s_cselect_b32 s41, s4, {NFH}")
        A(f"s_cmp_lt_u32 s41, {NFH}")
        A("s_cbranch_scc1 L_ffn")
        if self.early:
            A("s_cmp_eq_u32 s40, 1")
            A("s_cbranch_scc0 L_h_shadow")
            A("s_barrier")
        A("L_h_shadow:")
        self.srd(12, 36, 256)
        A("s_mov_b32 s60, s24"); A("s_mov_b32 s61, s25"); A(f"s_mov_b32 s62, {4096*1280}"); A("s_mov_b32 s63, 0x20000")
        A("v_mul_u32_u24 v36, 10240, v1")
        A("v_lshl_add_u32 v36, v2, 4, v36")
        A("v_mov_b32 v37, 0x7fffffff")
        A("s_mov_b32 s44, 0x03ff03ff"); A("s_mov_b32 s45, 0x03ff03ff")
        A("v_cndmask_b32 v36, v37, v36, s[44:45]")
        A("s_lshl_b32 s46, s4, 2")
        A("s_add_u32 s46, s46, s40               ; 4h + hw")
        A(f"s_mul_i32 s41, s46, {32*1280}")
        A("s_mul_i32 s47, s5, 160")
        A("s_add_u32 s41, s41, s47")
        A("v_lshl_add_u32 v226, v2, 1, v1")
        A("v_lshlrev_b32 v226, 4, v226")
        A(f"s_mul_i32 s59, s5, {128*320}")
        A("s_mul_i32 s47, s46, 320")
        A("s_add_u32 s59, s59, s47")
        A(f"s_add_u32 s59, s59, {WS_U}")
        A("s_lshl_b32 s56, s6, 2")
        A("s_add_u32 s56, s56, s40")
        A("s_lshl_b32 s56, s56, 3")
        A(f"s_add_u32 s56, s56, {WS_ML}")
        for r in range(4):
            A(f"v_mov_b32 v{16+r}, -1")
        A("s_mov_b64 exec, 0x03ff03ff")
        A("buffer_store_dwordx4 v[16:19], v226, s[48:51], s59 offen sc1")
        A("s_mov_b64 exec, 1")
        A("buffer_store_dwordx2 v[16:17], off, s[48:51], s56 sc1")
        A("s_mov_b64 exec, -1")
        for e in range(8):
            sl = W + (16 if e & 1 else 0) + 4 * (e // 2)
            if e % 2 == 0 and e > 0:
                A("s_add_u32 s41, s41, 2560")
            A(f"buffer_load_dwordx4 v[{sl}:{sl+3}], v36, s[60:63], s41 offen offset:{1280*(e&1)} {self.wflag}")
            if self.wopace:
                A(f"s_waitcnt vmcnt({self.wopace-1})")
        if self.early:
            A("s_cmp_lt_u32 s40, 2")
            A("s_cbranch_scc1 L_h_nobar")
            A("s_barrier")
            A("L_h_nobar:")
        A("s_waitcnt vmcnt(0)")
        A("s_mov_b64 exec, 1")
        A(f"v_mov_b32 v30, {L_CNT}")
        A("v_mov_b32 v31, 1")
        A("ds_add_rtn_u32 v32, v30, v31")
        A("s_waitcnt lgkmcnt(0)")
        A("v_readfirstlane_b32 s47, v32")
        A("s_cmp_eq_u32 s47, 3")
        A("s_cbranch_scc0 L_h_nosig")
        A("buffer_store_byte v31, off, s[12:15], s6 sc1")
        A("L_h_nosig:")
        A("s_mov_b64 exec, -1")
        self.stamp(5)
        A("s_mov_b32 s44, 0x05040100")
        A("s_mov_b32 s45, 0x07060302")
        E = lambda i, c: W + 4 * i + c
        O = lambda i, c: W + 16 + 4 * i + c
        for i in range(4):
            A(f"v_perm_b32 v16, v{O(i,i)}, v{E(i,i)}, s44")
            A(f"v_perm_b32 v{O(i,i)}, v{O(i,i)}, v{E(i,i)}, s45")
            A(f"v_mov_b32 v{E(i,i)}, v16")
            for c in range(i + 1, 4):
                A(f"v_perm_b32 v16, v{O(i,c)}, v{E(i,c)}, s44")
                A(f"v_perm_b32 v17, v{O(i,c)}, v{E(i,c)}, s45")
                A(f"v_perm_b32 v{E(i,c)}, v{O(c,i)}, v{E(c,i)}, s44")
                A(f"v_perm_b32 v{O(i,c)}, v{O(c,i)}, v{E(c,i)}, s45")
                A(f"v_mov_b32 v{E(c,i)}, v16")
                A(f"v_mov_b32 v{O(c,i)}, v17")
        self.stamp(6)
        A("s_lshl_b32 s7, s40, 2")
        A("v_mov_b32 v227, s7                    ; hw*4")
        A("v_and_b32 v229, 3, v0")
        A("v_lshl_add_u32 v229, v229, 2, v1")
        A("v_lshlrev_b32 v229, 1, v229           ; (4q + rho)*2")
        A("s_mov_b32 s55, 0")
        if self.fb:
            A("s_cmp_eq_u32 s40, 2")
            A("s_cbranch_scc1 L_pacer")
        A("s_cmp_eq_u32 s40, 0")
        A("s_cbranch_scc0 L_h_nocons")
        self.lds_wait("L_h_trigA", 227, L_FLAG, "s_cmp_ge_u32", 1, 100)
        if self.sflag:
            A(f"s_cmp_ge_u32 s2, {CONS0}")
            A("s_cbranch_scc1 L_h_vflag")
            A("s_cmp_eq_u32 s2, 0")
            A("s_cbranch_scc1 L_h_vflag")
            A("s_lshl_b32 s42, s4, 3")
            A("s_load_dwordx2 s[44:45], s[36:37], s42")
            A("s_waitcnt lgkmcnt(0)")
            A("s_and_b32 s44, s44, s45")
            A("s_cmp_eq_u32 s44, 0x01010101")
            A("s_cbranch_scc1 L_h_nocons")
            A("L_h_vflag:")
        A("v_lshlrev_b32 v7, 2, v0")
        A("s_mov_b32 s47, 0")
        A("L_h_cnt:")
        A("buffer_load_dword v6, v7, s[12:15], 0 offen sc1")
        A("s_waitcnt vmcnt(0)")
        A("v_cmp_ne_u32 vcc, 0x01010101, v6")
        A("s_add_u32 s47, s47, 1")
        A("s_cbranch_vccz L_h_cnt_ok")
        A("s_sleep 100")
        A("s_cmp_lt_u32 s47, 0x10000")
        A("s_cbranch_scc1 L_h_cnt")
        A("L_h_cnt_ok:")
        A("s_cmp_eq_u32 s2, 0")
        A("s_cbranch_scc0 L_h_noepoch")
        A("v_mov_b32 v6, s54")
        A(f"s_mov_b32 s47, {WS_E:#x}")
        A("s_mov_b64 exec, 1")
        A("buffer_store_dword v6, off, s[48:51], s47 sc1")
        A("s_mov_b64 exec, -1")
        A("L_h_noepoch:")
        A(f"s_cmp_ge_u32 s2, {CONS0}")
        A("s_cbranch_scc0 L_h_nocons")
        A("s_mov_b32 s55, 1")
        A(f"s_sub_u32 s52, s2, {CONS0}")
        A("s_lshl_b32 s53, s52, 5")
        A("buffer_load_ushort v225, v229, s[8:11], s53 offen")
        A("v_lshrrev_b32 v230, 2, v0")
        A("v_mul_u32_u24 v230, 2560, v230")
        A("v_and_b32 v7, 48, v228")
        A("v_add_u32 v230, v230, v7")
        A("v_mov_b32 v7, 0x7fffffff")
        A("s_mov_b32 s44, -1"); A("s_mov_b32 s45, 0")
        A("v_cndmask_b32 v7, v7, v230, s[44:45]")
        A("s_lshl_b32 s42, s52, 6")
        A(f"s_add_u32 s42, s42, {WS_GP}")
        for i in range(14):
            A(f"buffer_load_dwordx4 v[{100+4*i}:{103+4*i}], v{230 if i < 13 else 7}, s[48:51], s42 offen sc1")
            A(f"s_add_u32 s42, s42, {16*2560}")
            if i % 4 == 3:
                A("s_waitcnt vmcnt(0)")
        A("s_waitcnt vmcnt(0)")
        for r in range(4):
            A(f"v_add_f32 v{8+r}, v{100+r}, v{104+r}")
        for i in range(2, 14):
            for r in range(4):
                A(f"v_add_f32 v{8+r}, v{8+r}, v{100+4*i+r}")
        self.reduce4(8, (4, 8))
        self.bfr(8, 8)
        A(f"v_mul_f32 v9, {LOG2E | 0x80000000:#x}, v8")
        A("v_exp_f32 v9, v9")
        self.nop(1)
        A("v_add_f32 v9, 1.0, v9")
        A("v_rcp_f32 v9, v9")
        self.nop(1)
        A("v_mul_f32 v8, v8, v9")
        self.bfr(224, 8)
        A("v_lshlrev_b32 v225, 16, v225")
        A("s_mul_i32 s42, s52, 52")
        A("s_lshr_b32 s42, s42, 8")
        A(f"s_mul_i32 s42, s42, {128*320 - 320}")
        A("s_lshl_b32 s52, s52, 6")
        A("s_add_u32 s52, s52, s42")
        A(f"s_add_u32 s52, s52, {WS_U}")
        A("L_h_nocons:")
        self.srd(60, 34, 1280)
        self.stamp(7)
        A("s_lshl_b32 s7, s40, 8")
        A("v_lshl_add_u32 v4, v0, 2, s7")
        A("v_lshlrev_b32 v5, 4, v2               ; j*16")
        A("s_lshl_b32 s41, s4, 8")
        A(f"s_add_u32 s41, s41, {WS_ML}")
        A("v_lshlrev_b32 v6, 4, v1")
        A("v_lshl_add_u32 v6, v2, 10, v6         ; j*1024 + s*16 : partials 2j, 2j+1")
        A("s_lshl_b32 s43, s4, 14")
        A("s_lshl_b32 s7, s40, 7")
        A("s_add_u32 s43, s43, s7")
        A("v_mov_b32 v8, 0")
        A(f"ds_read_b32 v8, v8 offset:{L_LOC}")
        A("s_waitcnt lgkmcnt(0)")
        A("v_readfirstlane_b32 s57, v8")
        self.lds_wait("L_h_trigB", 227, L_FLAG, "s_cmp_ge_u32", 16, 6)
        A(f"ds_read_b32 v8, v227 offset:{L_MW}")
        A(f"ds_read_b32 v9, v4 offset:{L_LL}")
        A("s_waitcnt lgkmcnt(0)")
        self.wave_reduce("v_add_f32", 9, 10)
        A("v_min_u32 v8, -2, v8")
        A("v_min_u32 v9, -2, v9")
        A("s_mov_b64 exec, 1")
        if self.fast:
            A("s_cmp_eq_u32 s57, 0")
            A("s_cbranch_scc0 L_h_far")
            A("buffer_store_dwordx2 v[8:9], off, s[48:51], s56")
            A("s_branch L_h_fin")
            A("L_h_far:")
        A("buffer_store_dwordx2 v[8:9], off, s[48:51], s56 sc1")
        A("L_h_fin:")
        A("s_mov_b64 exec, -1")
        self.stamp(8)
        A("s_mov_b32 s44, 0xffff0000"); A("s_mov_b32 s45, 0xffff0000")
        self.stamp(9)
        A("s_barrier")
        self.stamp(10)
        mll = "buffer_load_dwordx4 v[12:15], v5, s[48:51], s41 offen sc1"
        lds = [f"buffer_load_dwordx4 v[{20+8*i+4*hf}:{23+8*i+4*hf}], v6, s[48:51], s43 offen offset:{64*hf+512*i} sc1" for i in range(2) for hf in range(2)]
        def weights():
            A("s_waitcnt vmcnt(4)")
            A("v_max_u32 v3, v12, v13")
            A("v_max3_u32 v3, v3, v14, v15")
            A("v_cmp_eq_u32 vcc, -1, v3")
            A("v_max_f32 v18, v12, v14")
            A("s_cbranch_vccnz L_h_mlwait")
            A("L_h_mlok:")
            for r in (1, 2, 4, 8):
                self.nop(2 if r > 1 else 1)
                A(f"v_max_f32_dpp v18, v18, v18 row_ror:{r} {DPPF}")
            A("v_sub_f32 v16, v12, v18")
            A("v_sub_f32 v17, v14, v18")
            A(f"v_mul_f32 v16, {LOG2E:#x}, v16")
            A(f"v_mul_f32 v17, {LOG2E:#x}, v17")
            A("v_exp_f32 v16, v16")
            A("v_exp_f32 v17, v17")
            A("v_mul_f32 v18, v13, v16")
            A("v_fmac_f32 v18, v15, v17")
            for r in (1, 2, 4, 8):
                self.nop(2)
                A(f"v_add_f32_dpp v18, v18, v18 row_ror:{r} {DPPF}")
            A("v_rcp_f32 v18, v18")
            A("s_mov_b32 s47, 0")
            A("v_mul_f32 v16, v16, v18")
            A("v_mul_f32 v17, v17, v18")
        A(mll)
        self.mpoll("L_h_o", lds, range(20, 36), sleep=self.osleep, first=weights)
        self.mlwait = (mll, lds)
        self.stamp(11)
        for e in range(8):
            A(f"v_mul_f32 v{20+e}, v16, v{20+e}")
        for e in range(8):
            A(f"v_fmac_f32 v{20+e}, v17, v{28+e}")
        for r in (1, 2, 4, 8):
            for e in range(8):
                A(f"v_add_f32_dpp v{20+e}, v{20+e}, v{20+e} row_ror:{r} {DPPF}")
        for r in range(4):
            A(f"v_cvt_pk_bf16_f32 v{28+r}, v{20+2*r}, v{21+2*r}")
        self.nop(2)
        B = lambda t: W + (16 if t & 1 else 0) + 4 * (t // 2)
        for t in (0, 4, 1, 5, 2, 6, 3, 7):
            self.mfma(96 + 4 * t, 28, B(t), None)
        self.nop(2)
        for t in range(4):
            if t > 0:
                self.nop(1)
            A(f"v_cndmask_b32 v{20+t}, v{96+4*t}, v{112+4*t}, s[44:45]")
            A(f"v_min_u32 v{20+t}, -2, v{20+t}")
        A("s_mov_b64 exec, 0x03ff03ff")
        A("buffer_store_dwordx4 v[20:23], v226, s[48:51], s59 offen sc1")
        A("s_mov_b64 exec, -1")
        self.stamp(12)
        A("s_cmp_eq_u32 s55, 1")
        A("s_cbranch_scc0 L_h_end")
        self.mpoll("L_c_u", [f"buffer_load_dwordx4 v[{24+4*i}:{27+4*i}], v230, s[48:51], s52 offen offset:{320*i} sc1" for i in range(8)], range(24, 56), sleep=self.usleep)
        self.stamp(13)
        for st in (16, 8, 4):
            for r in range(st):
                A(f"v_add_f32 v{24+r}, v{24+r}, v{24+st+r}")
        self.reduce4(24, (4, 8))
        self.bfr(24, 24)
        A("v_mul_f32 v24, v24, v224")
        self.bfr(24, 24)
        A("v_add_f32 v24, v24, v225")
        A("v_cvt_pk_bf16_f32 v24, v24, v24")
        A("s_mov_b32 exec_lo, 0x000f000f")
        A("s_mov_b32 exec_hi, 0x000f000f")
        A("buffer_store_short v24, v229, s[60:63], s53 offen")
        A("L_h_end:")
        self.stamp(14)
        self.flush_stamps(15)
        A("s_endpgm")
        A("L_h_mlwait:")
        self.mpoll("L_h_ml", [self.mlwait[0]], range(12, 16), sleep=self.mlsleep)
        for t in self.mlwait[1]:
            A(t)
        A("v_max_f32 v18, v12, v14")
        A("s_branch L_h_mlok")
        self.ffn()
        if self.fb:
            self.pacer()

    def pacer(self):
        A = self.A
        A("L_pacer:")
        A("v_mov_b32 v4, 0")
        A(f"s_mov_b32 s52, {self.cp0}")
        A(f"s_mov_b32 s53, {WS_TS}")
        A("s_lshl_b32 s43, s2, 2")
        A("L_p_loop:")
        self.lds_wait("L_p_w0", 4, L_PROG, "s_cmp_ge_u32", "s52", 8)
        A(f"ds_read_b32 v5, v4 offset:{L_PROG+4}")
        A("s_add_u32 s41, s53, s43")
        A(f"s_add_u32 s52, s52, {self.cplag}")
        A("s_waitcnt lgkmcnt(0)")
        if self.spacer:
            A("s_cmp_lt_u32 s2, 32")
            A("s_cbranch_scc0 L_p_nopub")
        A("s_mov_b64 exec, 1")
        A("buffer_store_dword v5, off, s[48:51], s41 sc1")
        A("s_mov_b64 exec, -1")
        A("L_p_nopub:")
        self.lds_wait("L_p_w1", 4, L_PROG, "s_cmp_ge_u32", "s52", 8)
        A(f"v_mov_b32 v6, {self.cplag * self.tau}")
        if self.spacer:
            A("v_mov_b32 v8, v5")
            for hlf in range(2):
                A(f"s_add_u32 s41, s53, {64*hlf}")
                A("s_load_dwordx16 s[16:31], s[38:39], s41")
                A("s_waitcnt lgkmcnt(0)")
                for i in range(16):
                    A(f"v_writelane_b32 v8, s{16+i}, {16*hlf+i}")
            A("v_sub_u32 v8, v8, v5")
            A("v_add_u32 v12, 1500, v8")
            A("v_cmp_gt_u32 vcc, 3000, v12")
            self.nop(2)
            A("v_cndmask_b32 v7, v6, v8, vcc")
            self.wave_reduce("v_add_u32", 7, 12)
            A("v_ashrrev_i32 v7, 5, v7")
        else:
            A("buffer_load_dwordx4 v[8:11], v228, s[48:51], s53 offen sc1")
            A("v_mov_b32 v7, 0")
            A("s_waitcnt vmcnt(0)")
            for r in range(4):
                A(f"v_sub_u32 v{8+r}, v{8+r}, v5")
                A(f"v_add_u32 v12, 1500, v{8+r}")
                A("v_cmp_gt_u32 vcc, 3000, v12")
                self.nop(2)
                A(f"v_cndmask_b32 v{8+r}, v6, v{8+r}, vcc")
                A(f"v_add_u32 v7, v7, v{8+r}")
            self.wave_reduce("v_add_u32", 7, 12)
            A("v_ashrrev_i32 v7, 8, v7")
        A("v_add_u32 v7, v7, v5")
        A(f"ds_write_b32 v4, v7 offset:{L_ANCH}")
        A(f"s_add_u32 s52, s52, {self.cpd - self.cplag}")
        A("s_add_u32 s53, s53, 1024")
        A(f"s_cmp_lt_u32 s52, {self.cp0 + self.ncp * self.cpd}")
        A("s_cbranch_scc1 L_p_loop")
        A("s_branch L_h_nocons")

    def ffn(self):
        A = self.A
        W = self.W
        HD = self.hdepth
        A("L_ffn:")
        A(f"s_load_dword s54, s[38:39], {WS_E:#x}")
        self.x_issue()
        A("s_mov_b32 s44, 0xff00ff00"); A("s_mov_b32 s45, 0xff00ff00")
        A("v_mov_b32 v38, s28"); A("v_mov_b32 v39, s29")
        A("v_mov_b32 v8, s30"); A("v_mov_b32 v9, s31")
        A("v_cndmask_b32 v38, v38, v8, s[44:45]")
        A("v_cndmask_b32 v39, v39, v9, s[44:45]")
        A("v_and_b32 v8, 7, v0")
        A("v_lshlrev_b32 v8, 4, v8")
        A("v_mul_u32_u24 v9, 3456, v1")
        A("v_add_u32 v8, v8, v9")
        A(f"s_mul_i32 s47, s5, {80*3456}")
        A("s_lshl_b32 s41, s4, 7")
        A("s_add_u32 s47, s47, s41")
        A("v_add_u32 v8, s47, v8")
        A("v_mov_b32 v9, 0")
        A("v_lshl_add_u64 v[38:39], v[38:39], 0, v[8:9]")
        A("s_mov_b32 s42, 13824"); A("s_mov_b32 s43, 0")
        self.srd(12, 32, 1728 * 1280)
        A("v_mul_u32_u24 v36, 1280, v1")
        A("v_lshl_add_u32 v36, v2, 4, v36")
        A(f"s_mul_i32 s46, s6, {8*1280}            ; row 64h + 8c")
        A(f"s_add_u32 s52, s46, {4*1280}")
        def ld(i):
            sl = W + 4 * i
            if i < 20:
                A(f"global_load_dwordx4 v[{sl}:{sl+3}], v[38:39], off {self.wflag}")
                A("v_lshl_add_u64 v[38:39], v[38:39], 0, s[42:43]")
            else:
                n, k = (i - 20) // 5, (i - 20) % 5
                A(f"buffer_load_dwordx4 v[{sl}:{sl+3}], v36, s[12:15], s{46 if n == 0 else 52} offen offset:{256*k} {self.wflag}")
        for i in range(HD):
            ld(i)
        if self.early:
            A("s_barrier")
        self.masks(12, 6, 44)
        A(f"s_waitcnt vmcnt({HD})")
        self.ln()
        for n in range(20):
            self.abuild(24, 21 + n // 16, 12, n % 16)
            if n + HD < 30:
                A(f"s_waitcnt vmcnt({HD-1})")
                ld(n + HD)
            else:
                A(f"s_waitcnt vmcnt({29-n})")
                self.nop(1)
            self.mfma(28, 24, W + 4 * n, None if n == 0 else 28)
        for i in range(20 + HD, 30):
            A(f"s_waitcnt vmcnt({HD-1})")
            ld(i)
        A("s_waitcnt lgkmcnt(0)")
        self.mktag()
        A("s_lshl_b32 s47, s5, 2")
        A("s_lshl_b32 s62, 15, s47")
        A("s_mov_b32 s63, s62")
        self.exchange("f", WS_FX, 16, 192)
        A("s_mov_b64 exec, -1")
        self.bfr(192, 192)
        self.bfr(194, 194)
        A("v_mov_b32 v193, v192")
        A("v_mov_b32 v195, v194")
        self.nop(2)
        A("v_permlane32_swap_b32 v192, v193")
        A("v_permlane32_swap_b32 v194, v195")
        self.nop(1)
        A("v_max_f32 v192, 0, v192")
        A("v_max_f32 v194, 0, v194")
        A("v_mul_f32 v192, v192, v193")
        A("v_mul_f32 v194, v194, v195")
        A("v_cvt_pk_bf16_f32 v192, v192, v192")
        A("v_cvt_pk_bf16_f32 v193, v194, v194")
        A("v_lshlrev_b32 v6, 3, v0")
        A("v_and_b32 v6, 0xff, v6                ; (lane&31)*8")
        A(f"ds_write_b64 v6, v[192:193] offset:{L_H}")
        A("v_lshl_add_u32 v6, v2, 2, v1          ; 4j+s")
        A("v_and_b32 v6, 7, v6")
        A("s_lshl_b32 s47, s5, 5")
        A("v_lshl_add_u32 v6, v6, 2, s47")
        A(f"ds_read_b32 v21, v6 offset:{L_H}")
        A("v_and_b32 v37, 1, v1")
        A("v_lshl_add_u32 v37, v2, 1, v37")
        A("v_lshlrev_b32 v37, 4, v37")
        A("s_mul_i32 s46, s6, 2560")
        A(f"s_add_u32 s46, s46, {WS_GP}")
        A("s_waitcnt vmcnt(0) lgkmcnt(0)")
        for n in range(2):
            self.abuild(24, 21, 12, n)
            self.nop(2)
            for k in range(5):
                self.mfma(192 + 4 * k, 24, W + 80 + 20 * n + 4 * k, None if n == 0 else 192 + 4 * k)
        self.exec_lo()
        self.nop(8)
        for k in range(5):
            A(f"buffer_store_dwordx4 v[{192+4*k}:{195+4*k}], v37, s[48:51], s46 offen offset:{512*k} sc1")
        A("s_mov_b64 exec, -1")
        A("s_branch L_h_shadow")


if __name__ == "__main__":
    out = sys.argv[1]
    kw = eval("dict(" + (sys.argv[2] if len(sys.argv) > 2 else "") + ")")
    open(out, "w").write(Gen(**kw).gen())
```

```python
import sys
from gen_kernel import Gen as Base, NAME, LOG2E, SCALE, DPPF

WS_O = 0
WS_ML = 0x80000
WS_U = 0x90000
WS_TS = 0xF8000
WS_E = 0xFC000
WS_GP = 0x200000
WS_QX = 0x2A0000
WS_FX = 0x2E0000
WS_SIZE = 0x400000
L_Q = 16640
L_MW = L_Q + 256
L_FLAG = L_MW + 16
L_CNT = L_FLAG + 16
L_ANCH = L_CNT + 4
L_PROG = L_CNT + 8
L_LL = L_CNT + 16
L_LOC = L_LL + 1024
L_H = L_LOC + 16
L_END = L_H + 512
NFH = 27
CONS0 = 216


class Gen(Base):
    def __init__(self, D=5, LA=7, DL=None, N0=28, Dp=5, cu=8, diag=False, wflag="nt", hdepth=30,
                 kmask=0, vmask=0, flagstep=4, mlsleep=8, osleep=0, usleep=2,
                 fb=True, tau=222, theta=0, theta2=-40, cp0=3, cpd=6, ncp=5, cplag=2, phase=1, qsleep=1, wopace=0, early=True, dbg='', fast=True, spacer=True, sflag=True, touch=0, spin=None):
        self.L = []
        self.D, self.LA, self.DL, self.N0, self.Dp, self.cu = D, LA, DL, N0, Dp, cu
        self.diag = diag
        self.wflag, self.hdepth = wflag, hdepth
        self.kmask, self.vmask = kmask, vmask
        self.flagstep, self.mlsleep, self.osleep, self.usleep = flagstep, mlsleep, osleep, usleep
        self.fb, self.tau, self.theta, self.theta2 = fb, tau, theta, theta2
        self.cp0, self.cpd, self.ncp, self.cplag = cp0, cpd, ncp, cplag
        self.phase, self.qsleep = phase, qsleep
        self.wopace, self.early, self.dbg = wopace, early, dbg
        self.fast, self.spacer, self.sflag = fast, spacer, sflag
        self.touch = touch
        self.spin = spin
        self.NS = (N0 + 15) // 16 * 16
        self.NB = self.NS + 16
        self.uid = 0

    def flush_stamps(self, n):
        if not self.diag:
            return
        A = self.A
        A("s_waitcnt lgkmcnt(0)")
        A("s_mov_b64 exec, 1")
        A("s_lshl_b32 s64, s2, 4"); A("s_add_u32 s64, s64, s3"); A("s_lshl_b32 s64, s64, 6")
        A("s_add_u32 s64, s64, 0x100000")
        A("v_mov_b32 v1, 0")
        for i in range(n):
            A(f"v_mov_b32 v2, s{70+2*i}")
            A(f"buffer_store_dword v2, v1, s[48:51], s64 offen offset:{4*i}")
            A("s_nop 0")

    def gen(self):
        A = self.A
        hdr = open("cdna_kernels/" + NAME + ".s.ref").read().split("\n")
        for line in hdr:
            if line.startswith("; @launch"):
                break
            self.L.append(line)
        self.L.append(f"; @launch grid=(256,1,1) block=(512,1,1) lds={L_END}")
        self.L.append('.amdgcn_target "amdgcn-amd-amdhsa--gfx950"')
        self.L.append(".text")
        self.L.append(f".globl {NAME}_kernel")
        self.L.append(".p2align 12")
        self.L.append(".p2align 8")
        self.L.append(f".type {NAME}_kernel,@function")
        self.L.append(f"{NAME}_kernel:")
        A("s_cmp_ge_u32 s2, 256")
        A("s_cbranch_scc0 L_go")
        A("s_endpgm")
        A("L_go:")
        self.stamp(0)
        if self.spin is not None:
            A("s_memrealtime s[100:101]")
        A("s_load_dwordx16 s[16:31], s[0:1], 0")
        A("s_load_dwordx8 s[32:39], s[0:1], 64")
        A("v_lshrrev_b32 v1, 6, v0")
        A("v_and_b32 v0, 63, v0")
        A("v_readfirstlane_b32 s3, v1")
        A("s_and_b32 s4, s2, 7")
        A("s_lshr_b32 s5, s2, 3")
        A("s_lshl_b32 s4, s4, 2")
        A("s_lshr_b32 s6, s5, 3")
        A("s_add_u32 s4, s4, s6                  ; head")
        A("s_and_b32 s5, s5, 7                   ; chunk")
        A("s_lshl_b32 s6, s4, 3")
        A("s_add_u32 s6, s6, s5")
        A("v_lshrrev_b32 v1, 4, v0               ; s = lane>>4")
        A("v_and_b32 v2, 15, v0                  ; j = lane&15")
        A("s_cmp_ge_u32 s3, 4")
        A("s_cbranch_scc1 L_helper")
        self.streamer_issue()
        A("s_branch L_streamer")
        self.helper()
        self.streamer()
        self.L.append('.section .rodata,"a"')
        self.L.append(".p2align 6")
        self.L.append(f".amdhsa_kernel {NAME}_kernel")
        for s in ["next_free_vgpr 256", "next_free_sgpr 102", "accum_offset 256", "group_segment_fixed_size 0",
                  "kernarg_size 96", "user_sgpr_count 2", "user_sgpr_kernarg_segment_ptr 1",
                  "system_sgpr_workgroup_id_x 1", "float_denorm_mode_32 3"]:
            self.L.append("  .amdhsa_" + s)
        self.L.append(".end_amdhsa_kernel")
        L = self.L
        if "c" in self.dbg:
            L = [t for t in L if not ("buffer_store_dwordx4 v[32:35], v60" in t or "buffer_store_dwordx4 v[16:19], v226" in t or "buffer_store_dwordx2 v[16:17], off" in t)]
        if "g" in self.dbg:
            L = [t for t in L if not ("v37, s[48:51], s46 offen" in t)]
        if "f" in self.dbg:
            L = [t for t in L if "s_cbranch_scc1 L_ffn" not in t]
        if "w" in self.dbg:
            L = [t for t in L if "v36, s[60:63], s41" not in t]
        return "\n".join(L) + "\n"

    RING = 64
    def slot(self, p, steady=False):
        if steady or p >= self.NS:
            p %= 16
        return self.RING + 4 * p

    def sload(self, n, switch=None, steady=False):
        A = self.A
        if n % 16 == 0:
            if switch == "KV":
                A("s_cmp_eq_u32 s15, 15")
                A("s_cselect_b32 s8, s20, s8")
                A("s_cselect_b32 s9, s21, s9")
                A("s_cselect_b64 s[44:45], -1, 0")
                A("v_cndmask_b32 v3, v3, v4, s[44:45]")
            if switch == "END":
                A("s_cmp_eq_u32 s15, 15")
                A("s_cselect_b32 s10, 0, s10")
            A("s_and_b32 s59, s13, 7")
            A("s_mul_i32 s59, s59, 0x4800            ; b<<14 | b<<11")
            A("s_and_b32 s59, s59, 0x7000")
            A("s_lshl_b32 s12, s13, 19")
            A("s_or_b32 s12, s12, s59")
            A("s_xor_b32 s12, s12, s14")
            A("s_add_u32 s13, s13, 1")
            A("s_and_b32 s13, s13, 15")
            A("s_add_u32 s59, s12, 0x10000")
        elif n % 8 == 0:
            A("s_add_u32 s12, s12, 0x8000")
            A("s_add_u32 s59, s59, 0x8000")
        sl = self.slot(n, steady)
        A(f"buffer_load_dwordx4 v[{sl}:{sl+3}], v3, s[8:11], s{59 if n & 1 else 12} offen offset:{1024*((n>>1)&3)} nt")

    def dwait(self):
        A = self.A
        if self.LA == self.D:
            A(f"s_waitcnt vmcnt({self.D-1})")
            return
        self.uid += 1
        A(f"s_waitcnt vmcnt({self.LA-1})")
        A(f"s_cbranch_vccnz L_dw{self.uid}")
        A(f"s_waitcnt vmcnt({self.D-1})")
        if self.DL:
            A("s_cmp_eq_u32 s69, 0")
            A(f"s_cbranch_scc1 L_dw{self.uid}")
            A(f"s_waitcnt vmcnt({self.DL-1})")
        A(f"L_dw{self.uid}:")

    def fb_sample(self):
        if self.fb:
            self.A("s_memrealtime s[64:65]")
            self.A(f"ds_read_b32 v59, v56 offset:{L_ANCH}")

    def setdeep(self, sreg, fb=False, base=0):
        A = self.A
        if self.LA == self.D:
            return
        if fb and self.fb:
            A("s_waitcnt lgkmcnt(0)")
            A("v_readfirstlane_b32 s66, v59")
            A(f"s_add_u32 s67, s15, {base}")
            A(f"s_mul_i32 s68, s67, {self.tau}")
            A("s_sub_u32 s68, s64, s68")
            A("v_mov_b32 v58, s67")
            A("v_mov_b32 v59, s68")
            A(f"ds_write_b64 v57, v[58:59] offset:{L_PROG}")
            A("s_sub_u32 s68, s68, s66")
            if self.DL:
                A(f"s_add_u32 s69, s68, 2000")
                A(f"s_cmp_lt_u32 s69, {2000 + self.theta2}")
                A("s_cselect_b32 s69, 1, 0")
            A(f"s_cmp_gt_i32 s68, {self.theta}")
            A("s_cselect_b64 vcc, -1, 0")
            A(f"s_bitcmp1_b32 s{sreg}, s15")
            A("s_cselect_b64 vcc, -1, vcc")
            if self.diag:
                A("s_mov_b32 m0, s67")
                A("v_writelane_b32 v55, s64, m0")
                A("s_and_b32 s66, vcc_lo, 2")
                A("s_or_b32 s66, s66, s69")
                A("v_writelane_b32 v54, s66, m0")
            return
        A(f"s_bitcmp1_b32 s{sreg}, s15")
        A("s_cselect_b64 vcc, -1, 0")

    def streamer_issue(self):
        A = self.A
        A("v_lshlrev_b32 v4, 4, v0")
        A("v_and_b32 v3, 48, v4                  ; c*16")
        A("v_lshl_add_u32 v3, v1, 6, v3          ; + s*64")
        A("v_bfe_u32 v5, v0, 2, 2                ; a")
        A("v_lshl_add_u32 v3, v5, 8, v3          ; + a*256")
        A("s_lshl_b32 s14, s4, 23")
        A("s_lshr_b32 s7, s5, 1")
        A("s_lshl_b32 s7, s7, 17")
        A("s_or_b32 s14, s14, s7")
        A("s_and_b32 s7, s5, 1")
        A("s_lshl_b32 s7, s7, 14")
        A("s_or_b32 s14, s14, s7")
        A("s_lshl_b32 s7, s3, 12")
        A("s_or_b32 s14, s14, s7")
        A(f"s_lshr_b32 s13, s4, {self.phase}")
        A("s_and_b32 s13, s13, 15")
        A("s_lshl_b32 s46, s5, 2")
        A("s_add_u32 s46, s46, s3")
        A("s_waitcnt lgkmcnt(0)")
        self.srd(8, 18, 0x10000000)
        for n in range(self.Dp):
            self.sload(n)

    def kstep_post(self, n, since):
        G, g = (n % 16) // 4, n % 4
        if g == 2:
            if since < 8:
                self.nop(8 - since)
            self.kpost(32 + 4 * ((G - 1) & 1), G)

    def streamer(self):
        A = self.A
        D, LA, N0, Dp = self.D, self.LA, self.N0, self.Dp
        A("L_streamer:")
        self.srd(48, 38, WS_SIZE)
        A("v_and_b32 v6, 3, v2")
        A("v_lshl_add_u32 v6, v1, 2, v6          ; rho*4 + (j&3)")
        A("v_lshlrev_b32 v53, 4, v6")
        A("v_lshl_add_u32 v60, v5, 7, v53        ; + (j>>2)*128")
        A("s_lshl_b32 s47, s4, 14")
        A("s_lshl_b32 s7, s46, 9")
        A("s_add_u32 s47, s47, s7")
        for r in range(4):
            A(f"v_mov_b32 v{32+r}, -1")
        self.exec_lo()
        A("buffer_store_dwordx4 v[32:35], v60, s[48:51], s47 offen sc1")
        A("s_mov_b64 exec, -1")
        self.masks(12, 6, 40)
        A("s_mov_b32 s40, 0xaaaaaaaa"); A("s_mov_b32 s41, 0xaaaaaaaa")
        A("s_mov_b32 s42, 0xcccccccc"); A("s_mov_b32 s43, 0xcccccccc")
        A(f"s_mov_b32 s57, {self.kmask:#x}"); A(f"s_mov_b32 s58, {self.vmask:#x}")
        A("s_mov_b32 s69, 0")
        A("s_lshl_b32 s7, s3, 2")
        A("v_mov_b32 v61, s7                     ; w*4")
        A("v_mov_b32 v6, 0")
        A(f"ds_write_b32 v61, v6 offset:{L_FLAG}")
        A(f"ds_write_b32 v6, v6 offset:{L_CNT}")
        if self.fb:
            A("s_memrealtime s[64:65]")
            A("v_mov_b32 v56, 0")
            A("v_mov_b32 v7, 0")
            A(f"ds_write_b64 v56, v[6:7] offset:{L_PROG}")
            A("s_cmp_eq_u32 s3, 1")
            A(f"s_cselect_b32 s7, 0, {L_H - L_PROG + 256}")
            A("v_mov_b32 v57, s7")
            A("s_waitcnt lgkmcnt(0)")
            A("s_add_u32 s64, s64, 0x100000")
            A("v_mov_b32 v7, s64")
            A(f"ds_write_b32 v56, v7 offset:{L_ANCH}")
        A("s_lshl_b32 s7, s3, 8")
        A("v_lshl_add_u32 v62, v0, 2, s7")
        A("s_lshl_b32 s7, s3, 12")
        A("v_and_b32 v8, 60, v0")
        A("v_add_u32 v8, s7, v8")
        A("v_mov_b32 v5, 0xff800000")
        A("s_mov_b32 s15, 0")
        for n in range(Dp, N0):
            A(f"s_waitcnt vmcnt({Dp if n < 2 * Dp else Dp-1})")
            if (n - Dp) % 4 == 0 and (n - Dp) // 4 < 8:
                self.stamp(7 + (n - Dp) // 4)
            self.sload(n)
        A("s_waitcnt lgkmcnt(0)")
        self.stamp(1)
        A("s_barrier")
        self.stamp(2)
        A(f"ds_read_b128 v[44:47], v53 offset:{L_Q}")
        A(f"ds_read_b32 v7, v6 offset:{L_LOC}")
        A("s_waitcnt lgkmcnt(0)")
        A("v_readfirstlane_b32 s56, v7")
        for g in range(4):
            pat = (0xf << (4 * g)) * 0x00010001
            A(f"s_mov_b32 s44, {pat:#x}"); A(f"s_mov_b32 s45, {pat:#x}")
            for r in range(4):
                A(f"v_cndmask_b32 v{16+4*g+r}, 0, v{44+r}, s[44:45]")
        self.nop(2)
        self.stamp(3)
        assert N0 >= 2 * Dp + 1 and N0 <= self.NS
        NB = self.NB
        issued, landed = N0, N0 - Dp
        last_mfma = {}
        self.setdeep(57)
        for n in range(NB):
            G, g = n // 4, n % 4
            if n % 16 == 0 and n > 0:
                A(f"s_mov_b32 s15, {n//16}")
                self.setdeep(57)
            if n % 16 == 0 and self.diag and self.fb:
                A("s_memrealtime s[64:65]")
                A("s_waitcnt lgkmcnt(0)")
                A(f"v_writelane_b32 v55, s64, {n//16}")
                A(f"v_writelane_b32 v54, 0, {n//16}")
            want = issued - n <= LA or (n >= 1 and (n <= D or n % self.cu == 0))
            if want and issued < NB + LA:
                prev = issued - self.NS if issued < self.NS + 16 else issued - 16
                if prev < n:
                    self.dwait()
                    landed = max(landed, issued - (LA - 1))
                    self.sload(issued)
                    issued += 1
            if landed <= n:
                A(f"s_waitcnt vmcnt({issued - n - 1})")
                landed = n + 1
            dreg = 32 + 4 * (G & 1)
            self.mfma(dreg, 16 + 4 * g, self.slot(n), None if g == 0 else dreg)
            last_mfma[G] = len(self.L)
            if g == 2 and G > 0:
                since = sum(1 for t in self.L[last_mfma[G - 1]:] if not t.endswith(":") and "vmcnt" not in t and "cbranch" not in t and "s69" not in t)
                self.kstep_post(n, since)
            if n % 16 == 15:
                A("v_add_u32 v8, 256, v8")
        assert issued == NB + LA, (issued, NB + LA)
        A(f"s_mov_b32 s15, {NB//16}")
        self.fb_sample()
        A("L_kloop:")
        self.setdeep(57, True, 0)
        for n in range(16):
            G, g = n // 4, n % 4
            self.dwait()
            self.sload(n + LA, "KV", True)
            dreg = 32 + 4 * (G & 1)
            self.mfma(dreg, 16 + 4 * g, self.slot(n, True), None if g == 0 else dreg)
            self.kstep_post(n, 9)
            if n == 14:
                self.fb_sample()
        A("v_add_u32 v8, 256, v8")
        A("s_add_u32 s15, s15, 1")
        A("s_cmp_lt_u32 s15, 16")
        A("s_cbranch_scc1 L_kloop")
        self.nop(6)
        self.kpost(36, 0)
        self.stamp(4)
        A("s_lshl_b32 s7, s3, 12")
        A("v_lshl_add_u32 v8, v2, 2, v1          ; 4j+s")
        A("v_lshlrev_b32 v8, 2, v8")
        A("v_add_u32 v8, s7, v8")
        A("ds_read_b32 v11, v8 offset:64")
        self.wave_reduce("v_max_f32", 5, 6, rors=(4, 8))
        self.bfr(9, 5)
        A(f"v_mul_f32 v9, {SCALE:#x}, v9")
        self.bfr(9, 9)
        A(f"ds_write_b32 v61, v9 offset:{L_MW}")
        A("v_mov_b32 v5, 0                       ; l")
        A("v_mov_b32 v63, 0")
        for r in range(4):
            A(f"v_mov_b32 v{40+r}, 0")
        A("s_mov_b32 s15, 0")
        A("L_vloop:")
        self.setdeep(58, True, 16)
        A("s_waitcnt lgkmcnt(0)")
        self.pcalc()
        for n in range(16):
            self.abuild(16, 10, 12, n)
            self.dwait()
            self.sload(n + LA, "END", True)
            self.mfma(40, 16, self.slot(n, True), 40)
            if n == 14:
                self.fb_sample()
            if n == self.flagstep:
                A("v_add_u32 v63, 1, v63")
                A(f"ds_write_b32 v62, v5 offset:{L_LL}")
                A(f"ds_write_b32 v61, v63 offset:{L_FLAG}")
        A("s_add_u32 s15, s15, 1")
        A("s_cmp_lt_u32 s15, 16")
        A("s_cbranch_scc1 L_vloop")
        self.stamp(5)
        self.exec_lo()
        A("s_cmp_eq_u32 s56, 0")
        self.nop(2)
        for r in range(4):
            A(f"v_min_u32 v{40+r}, -2, v{40+r}")
        if self.fast:
            A("s_cbranch_scc0 L_s_far")
            A("buffer_store_dwordx4 v[40:43], v60, s[48:51], s47 offen")
            A("s_branch L_s_fin")
            A("L_s_far:")
        A("buffer_store_dwordx4 v[40:43], v60, s[48:51], s47 offen sc1")
        A("L_s_fin:")
        A("s_barrier")
        self.stamp(6)
        if self.diag and self.fb:
            A("s_lshl_b32 s7, s2, 2"); A("s_add_u32 s7, s7, s3"); A("s_lshl_b32 s7, s7, 8"); A("s_add_u32 s7, s7, 0x140000")
            A("v_lshlrev_b32 v6, 2, v0")
            A("buffer_store_dword v55, v6, s[48:51], s7 offen")
            A("buffer_store_dword v54, v6, s[48:51], s7 offen offset:128")
        self.flush_stamps(15)
        A("s_endpgm")

    W = 64
    def lds_wait(self, label, addr_v, off, cmp, val, sleep):
        A = self.A
        A("s_mov_b32 s47, 0")
        A(f"{label}:")
        A(f"ds_read_b32 v3, v{addr_v} offset:{off}")
        A("s_waitcnt lgkmcnt(0)")
        A("v_readfirstlane_b32 s42, v3")
        A("s_add_u32 s47, s47, 1")
        A(f"{cmp} s42, {val}")
        A(f"s_cbranch_scc1 {label}_ok")
        A(f"s_sleep {sleep}")
        A("s_cmp_lt_u32 s47, 0x100000")
        A(f"s_cbranch_scc1 {label}")
        A(f"{label}_ok:")

    def mpoll(self, label, loads, regs, sleep=0, first=None):
        A = self.A
        A("s_mov_b32 s47, 0")
        for s in loads:
            A(s)
        if first:
            first()
        A(f"{label}:")
        A("s_waitcnt vmcnt(0)")
        r = list(regs)
        A(f"v_max_u32 v3, v{r[0]}, v{r[1]}")
        r = r[2:]
        while r:
            A(f"v_max3_u32 v3, v3, v{r[0]}, v{r[1]}")
            r = r[2:]
        A("v_cmp_eq_u32 vcc, -1, v3")
        A("s_add_u32 s47, s47, 1")
        A(f"s_cbranch_vccz {label}_ok")
        A("s_mov_b64 exec, vcc")
        if sleep:
            A(f"s_sleep {sleep}")
        for s in loads:
            A(s)
        A("s_cmp_lt_u32 s47, 0x40000")
        A(f"s_cbranch_scc1 {label}")
        A(f"{label}_ok:")
        A("s_mov_b64 exec, -1")

    def mktag(self):
        A = self.A
        A("s_lshr_b32 s54, s54, 4")
        A("s_mul_i32 s54, s54, 0x9e3779b1")
        A("s_add_u32 s54, s54, 0x7f4a7c15")
        A("s_lshl_b32 s54, s54, 4")

    def x_issue(self):
        A = self.A
        for i in range(5):
            A(f"buffer_load_dword v{16+i}, v3, s[8:11], 0 offen offset:{256*i}")
        for i in range(2):
            A(f"buffer_load_ushort v{21+i}, v4, s[8:11], s7 offen offset:{128*i}")

    def ln(self):
        A = self.A
        for i in range(5):
            A(f"v_lshlrev_b32 v{24+2*i}, 16, v{16+i}")
            A(f"v_and_b32 v{25+2*i}, 0xffff0000, v{16+i}")
        self.ln_stats(list(range(24, 34)), 34, 35, 16, 17)
        for i in range(2):
            A(f"v_lshlrev_b32 v{21+i}, 16, v{21+i}")
        for i in range(2):
            self.ln_apply(21 + i, 34, 35)
        self.nop(2)

    def exchange(self, tag, base, sleep, R):
        A = self.A
        A("s_mov_b32 s44, 0"); A("s_mov_b32 s45, -1")
        A("v_lshrrev_b32 v6, 1, v1")
        A("v_and_b32 v7, 1, v1")
        A("v_lshl_add_u32 v6, v7, 1, v6")
        A("v_lshl_add_u32 v6, v2, 2, v6")
        A("v_lshlrev_b32 v6, 4, v6")
        A("s_lshl_b32 s41, s6, 10")
        A(f"s_add_u32 s41, s41, {base}")
        A("s_getreg_b32 s47, hwreg(HW_REG_XCC_ID, 0, 4)")
        A("s_or_b32 s47, s47, s54")
        A("v_mov_b32 v25, s47")
        A("v_mov_b32 v27, s47")
        A("v_cndmask_b32 v24, v28, v30, s[44:45]")
        A("v_cndmask_b32 v26, v29, v31, s[44:45]")
        A("buffer_store_dwordx4 v[24:27], v6, s[48:51], s41 offen sc1")
        A("s_and_b32 s41, s41, 0xffffe000")
        A("s_add_u32 s43, s41, 4096")
        A("s_mov_b64 exec, s[62:63]")
        A("s_waitcnt vmcnt(0)")
        A("s_mov_b32 s47, 0")
        A(f"L_{tag}_x:")
        for c in range(8):
            A(f"buffer_load_dwordx4 v[{R+4*c}:{R+3+4*c}], v228, s[48:51], s{41 if c < 4 else 43} offen offset:{1024*(c%4)} sc1")
        for c in range(8):
            A(f"s_waitcnt vmcnt({7-c})")
            if c == 0:
                A(f"v_and_b32 v6, v{R+1}, v{R+3}")
                A(f"v_or_b32 v7, v{R+1}, v{R+3}")
            else:
                A(f"v_bitop3_b32 v6, v6, v{R+4*c+1}, v{R+4*c+3} bitop3:0x80")
                A(f"v_or3_b32 v7, v7, v{R+4*c+1}, v{R+4*c+3}")
                A(f"v_add_f32 v{R}, v{R}, v{R+4*c}")
                A(f"v_add_f32 v{R+2}, v{R+2}, v{R+4*c+2}")
        A("v_xor_b32 v8, s54, v6")
        A("v_xor_b32 v9, s54, v7")
        A("v_cmp_lt_u32 vcc, 15, v8")
        A("v_cmp_lt_u32 s[44:45], 15, v9")
        A("s_add_u32 s47, s47, 1")
        A("s_or_b64 vcc, vcc, s[44:45]")
        A(f"s_cbranch_scc0 L_{tag}_ok")
        if sleep:
            A(f"s_sleep {sleep}")
        A("s_cmp_lt_u32 s47, 0x40000")
        A(f"s_cbranch_scc1 L_{tag}_x")
        A(f"L_{tag}_ok:")

    def helper(self):
        A = self.A
        W = self.W
        A("L_helper:")
        A("s_sub_u32 s40, s3, 4                  ; hw")
        A("s_mul_i32 s7, s5, 160")
        A("v_lshl_add_u32 v4, v2, 2, v1          ; 4j+s")
        A("v_lshlrev_b32 v4, 1, v4")
        A("v_lshlrev_b32 v3, 2, v0               ; lane*4")
        A("v_lshlrev_b32 v228, 4, v0             ; lane*16")
        A("s_cmp_eq_u32 s40, 0")
        A("s_cbranch_scc0 L_h_noq")
        A("v_lshlrev_b32 v8, 13, v1")
        A("v_lshl_add_u32 v8, v2, 4, v8          ; s*8192 + j*16")
        A("v_add_u32 v9, 0x8000, v8")
        A("v_add_u32 v10, 0x10000, v8")
        A("v_add_u32 v11, 0x18000, v8")
        A(f"s_mul_i32 s42, s5, {80*8192}")
        A("s_lshl_b32 s43, s4, 8")
        A("s_add_u32 s42, s42, s43")
        A("s_waitcnt lgkmcnt(0)")
        A(f"s_load_dword s54, s[38:39], {WS_E:#x}")
        self.srd(8, 16, 1280)
        self.srd(12, 22, 640 * 8192)
        self.x_issue()
        for n in range(20):
            sl = W + 4 * n
            A(f"buffer_load_dwordx4 v[{sl}:{sl+3}], v{8+n%4}, s[12:15], s42 offen {self.wflag}")
            if n % 4 == 3 and n < 19:
                A("s_add_u32 s42, s42, 0x20000")
        self.stamp(1)
        self.srd(48, 38, WS_SIZE)
        self.masks(12, 6, 44)
        A("s_mov_b64 s[62:63], -1")
        A("s_waitcnt vmcnt(20)")
        self.stamp(2)
        self.ln()
        self.stamp(3)
        for n in range(20):
            self.abuild(24, 21 + n // 16, 12, n % 16)
            A(f"s_waitcnt vmcnt({19-n})")
            self.nop(1)
            self.mfma(28, 24, W + 4 * n, None if n == 0 else 28)
        A("s_waitcnt lgkmcnt(0)")
        self.mktag()
        self.exchange("q", WS_QX, self.qsleep, 160)
        A("v_xor_b32 v7, v6, v7")
        A("v_cvt_pk_bf16_f32 v6, v160, v162")
        A(f"ds_write_b32 v3, v6 offset:{L_Q}")
        A("v_mov_b32 v6, 0")
        A(f"ds_write_b32 v6, v7 offset:{L_LOC}")
        A("s_waitcnt lgkmcnt(0)")
        self.stamp(4)
        A("s_barrier")
        A("s_branch L_h_shadow")
        A("L_h_noq:")
        if self.touch:
            A("s_cmp_eq_u32 s40, 3")
            A("s_cbranch_scc0 L_h_notouch")
            A(f"s_mul_i32 s42, s5, {80*8192}")
            A(f"s_mul_i32 s43, s5, {80*3456}")
            A(f"s_mul_i32 s44, s6, {8*1280}")
            A(f"s_min_u32 s44, s44, {1727*1280}")
            A(f"s_mul_i32 s45, s4, {128*1280}")
            A("s_lshl_b32 s46, s4, 23")
            A("s_waitcnt lgkmcnt(0)")
            if self.touch & 1:
                A("s_load_dword s64, s[16:17], 0")
                A("s_load_dword s65, s[22:23], s42")
                A("s_mov_b32 s47, 0x290000")
                A("s_load_dword s66, s[38:39], s47")
                A("s_load_dword s67, s[28:29], s43")
                A("s_load_dword s68, s[30:31], s43")
                A("s_load_dword s69, s[32:33], s44")
                A("s_load_dword s60, s[24:25], s45")
                A("s_load_dword s61, s[34:35], 0")
            if self.touch & 2:
                A("s_waitcnt lgkmcnt(0)")
                for i in range(4):
                    A(f"s_load_dword s{64+i}, s[18:19], s46")
                    A(f"s_load_dword s{60+i}, s[20:21], s46")
                    A("s_add_u32 s46, s46, 0x200000")
            A("L_h_notouch:")
        if not self.early:
            A("s_barrier")
        A("s_waitcnt lgkmcnt(0)")
        self.srd(8, 16, 1280)
        self.srd(48, 38, WS_SIZE)
        A("s_cmp_eq_u32 s40, 1")
        A(f"s_cselect_b32 s41, s4, {NFH}")
        A(f"s_cmp_lt_u32 s41, {NFH}")
        A("s_cbranch_scc1 L_ffn")
        if self.early:
            A("s_cmp_eq_u32 s40, 1")
            A("s_cbranch_scc0 L_h_shadow")
            A("s_barrier")
        A("L_h_shadow:")
        self.srd(12, 36, 256)
        A("s_mov_b32 s60, s24"); A("s_mov_b32 s61, s25"); A(f"s_mov_b32 s62, {4096*1280}"); A("s_mov_b32 s63, 0x20000")
        A("v_mul_u32_u24 v36, 10240, v1")
        A("v_lshl_add_u32 v36, v2, 4, v36")
        A("v_mov_b32 v37, 0x7fffffff")
        A("s_mov_b32 s44, 0x03ff03ff"); A("s_mov_b32 s45, 0x03ff03ff")
        A("v_cndmask_b32 v36, v37, v36, s[44:45]")
        A("s_lshl_b32 s46, s4, 2")
        A("s_add_u32 s46, s46, s40               ; 4h + hw")
        A(f"s_mul_i32 s41, s46, {32*1280}")
        A("s_mul_i32 s47, s5, 160")
        A("s_add_u32 s41, s41, s47")
        A("v_lshl_add_u32 v226, v2, 1, v1")
        A("v_lshlrev_b32 v226, 4, v226")
        A(f"s_mul_i32 s59, s5, {128*320}")
        A("s_mul_i32 s47, s46, 320")
        A("s_add_u32 s59, s59, s47")
        A(f"s_add_u32 s59, s59, {WS_U}")
        A("s_lshl_b32 s56, s6, 2")
        A("s_add_u32 s56, s56, s40")
        A("s_lshl_b32 s56, s56, 3")
        A(f"s_add_u32 s56, s56, {WS_ML}")
        for r in range(4):
            A(f"v_mov_b32 v{16+r}, -1")
        A("s_mov_b64 exec, 0x03ff03ff")
        A("buffer_store_dwordx4 v[16:19], v226, s[48:51], s59 offen sc1")
        A("s_mov_b64 exec, 1")
        A("buffer_store_dwordx2 v[16:17], off, s[48:51], s56 sc1")
        A("s_mov_b64 exec, -1")
        for e in range(8):
            sl = W + (16 if e & 1 else 0) + 4 * (e // 2)
            if e % 2 == 0 and e > 0:
                A("s_add_u32 s41, s41, 2560")
            A(f"buffer_load_dwordx4 v[{sl}:{sl+3}], v36, s[60:63], s41 offen offset:{1280*(e&1)} {self.wflag}")
            if self.wopace:
                A(f"s_waitcnt vmcnt({self.wopace-1})")
        if self.early:
            A("s_cmp_lt_u32 s40, 2")
            A("s_cbranch_scc1 L_h_nobar")
            A("s_barrier")
            A("L_h_nobar:")
        A("s_waitcnt vmcnt(0)")
        A("s_mov_b64 exec, 1")
        A(f"v_mov_b32 v30, {L_CNT}")
        A("v_mov_b32 v31, 1")
        A("ds_add_rtn_u32 v32, v30, v31")
        A("s_waitcnt lgkmcnt(0)")
        A("v_readfirstlane_b32 s47, v32")
        A("s_cmp_eq_u32 s47, 3")
        A("s_cbranch_scc0 L_h_nosig")
        A("buffer_store_byte v31, off, s[12:15], s6 sc1")
        A("L_h_nosig:")
        A("s_mov_b64 exec, -1")
        self.stamp(5)
        A("s_mov_b32 s44, 0x05040100")
        A("s_mov_b32 s45, 0x07060302")
        E = lambda i, c: W + 4 * i + c
        O = lambda i, c: W + 16 + 4 * i + c
        for i in range(4):
            A(f"v_perm_b32 v16, v{O(i,i)}, v{E(i,i)}, s44")
            A(f"v_perm_b32 v{O(i,i)}, v{O(i,i)}, v{E(i,i)}, s45")
            A(f"v_mov_b32 v{E(i,i)}, v16")
            for c in range(i + 1, 4):
                A(f"v_perm_b32 v16, v{O(i,c)}, v{E(i,c)}, s44")
                A(f"v_perm_b32 v17, v{O(i,c)}, v{E(i,c)}, s45")
                A(f"v_perm_b32 v{E(i,c)}, v{O(c,i)}, v{E(c,i)}, s44")
                A(f"v_perm_b32 v{O(i,c)}, v{O(c,i)}, v{E(c,i)}, s45")
                A(f"v_mov_b32 v{E(c,i)}, v16")
                A(f"v_mov_b32 v{O(c,i)}, v17")
        self.stamp(6)
        A("s_lshl_b32 s7, s40, 2")
        A("v_mov_b32 v227, s7                    ; hw*4")
        A("v_and_b32 v229, 3, v0")
        A("v_lshl_add_u32 v229, v229, 2, v1")
        A("v_lshlrev_b32 v229, 1, v229           ; (4q + rho)*2")
        A("s_mov_b32 s55, 0")
        if self.fb:
            A("s_cmp_eq_u32 s40, 2")
            A("s_cbranch_scc1 L_pacer")
        A("s_cmp_eq_u32 s40, 0")
        A("s_cbranch_scc0 L_h_nocons")
        self.lds_wait("L_h_trigA", 227, L_FLAG, "s_cmp_ge_u32", 1, 100)
        if self.sflag:
            A(f"s_cmp_ge_u32 s2, {CONS0}")
            A("s_cbranch_scc1 L_h_vflag")
            A("s_cmp_eq_u32 s2, 0")
            A("s_cbranch_scc1 L_h_vflag")
            A("s_lshl_b32 s42, s4, 3")
            A("s_load_dwordx2 s[44:45], s[36:37], s42")
            A("s_waitcnt lgkmcnt(0)")
            A("s_and_b32 s44, s44, s45")
            A("s_cmp_eq_u32 s44, 0x01010101")
            A("s_cbranch_scc1 L_h_nocons")
            A("L_h_vflag:")
        A("v_lshlrev_b32 v7, 2, v0")
        A("s_mov_b32 s47, 0")
        A("L_h_cnt:")
        A("buffer_load_dword v6, v7, s[12:15], 0 offen sc1")
        A("s_waitcnt vmcnt(0)")
        A("v_cmp_ne_u32 vcc, 0x01010101, v6")
        A("s_add_u32 s47, s47, 1")
        A("s_cbranch_vccz L_h_cnt_ok")
        A("s_sleep 100")
        A("s_cmp_lt_u32 s47, 0x10000")
        A("s_cbranch_scc1 L_h_cnt")
        A("L_h_cnt_ok:")
        A("s_cmp_eq_u32 s2, 0")
        A("s_cbranch_scc0 L_h_noepoch")
        A("v_mov_b32 v6, s54")
        A(f"s_mov_b32 s47, {WS_E:#x}")
        A("s_mov_b64 exec, 1")
        A("buffer_store_dword v6, off, s[48:51], s47 sc1")
        A("s_mov_b64 exec, -1")
        A("L_h_noepoch:")
        A(f"s_cmp_ge_u32 s2, {CONS0}")
        A("s_cbranch_scc0 L_h_nocons")
        A("s_mov_b32 s55, 1")
        A(f"s_sub_u32 s52, s2, {CONS0}")
        A("s_lshl_b32 s53, s52, 5")
        A("buffer_load_ushort v225, v229, s[8:11], s53 offen")
        A("v_lshrrev_b32 v230, 2, v0")
        A("v_mul_u32_u24 v230, 2560, v230")
        A("v_and_b32 v7, 48, v228")
        A("v_add_u32 v230, v230, v7")
        A("v_mov_b32 v7, 0x7fffffff")
        A("s_mov_b32 s44, -1"); A("s_mov_b32 s45, 0")
        A("v_cndmask_b32 v7, v7, v230, s[44:45]")
        A("s_lshl_b32 s42, s52, 6")
        A(f"s_add_u32 s42, s42, {WS_GP}")
        for i in range(14):
            A(f"buffer_load_dwordx4 v[{100+4*i}:{103+4*i}], v{230 if i < 13 else 7}, s[48:51], s42 offen sc1")
            A(f"s_add_u32 s42, s42, {16*2560}")
            if i % 4 == 3:
                A("s_waitcnt vmcnt(0)")
        A("s_waitcnt vmcnt(0)")
        for r in range(4):
            A(f"v_add_f32 v{8+r}, v{100+r}, v{104+r}")
        for i in range(2, 14):
            for r in range(4):
                A(f"v_add_f32 v{8+r}, v{8+r}, v{100+4*i+r}")
        self.reduce4(8, (4, 8))
        self.bfr(8, 8)
        A(f"v_mul_f32 v9, {LOG2E | 0x80000000:#x}, v8")
        A("v_exp_f32 v9, v9")
        self.nop(1)
        A("v_add_f32 v9, 1.0, v9")
        A("v_rcp_f32 v9, v9")
        self.nop(1)
        A("v_mul_f32 v8, v8, v9")
        self.bfr(224, 8)
        A("v_lshlrev_b32 v225, 16, v225")
        A("s_mul_i32 s42, s52, 52")
        A("s_lshr_b32 s42, s42, 8")
        A(f"s_mul_i32 s42, s42, {128*320 - 320}")
        A("s_lshl_b32 s52, s52, 6")
        A("s_add_u32 s52, s52, s42")
        A(f"s_add_u32 s52, s52, {WS_U}")
        A("L_h_nocons:")
        self.srd(60, 34, 1280)
        self.stamp(7)
        A("s_lshl_b32 s7, s40, 8")
        A("v_lshl_add_u32 v4, v0, 2, s7")
        A("v_lshlrev_b32 v5, 4, v2               ; j*16")
        A("s_lshl_b32 s41, s4, 8")
        A(f"s_add_u32 s41, s41, {WS_ML}")
        A("v_lshlrev_b32 v6, 4, v1")
        A("v_lshl_add_u32 v6, v2, 10, v6         ; j*1024 + s*16 : partials 2j, 2j+1")
        A("s_lshl_b32 s43, s4, 14")
        A("s_lshl_b32 s7, s40, 7")
        A("s_add_u32 s43, s43, s7")
        A("v_mov_b32 v8, 0")
        A(f"ds_read_b32 v8, v8 offset:{L_LOC}")
        A("s_waitcnt lgkmcnt(0)")
        A("v_readfirstlane_b32 s57, v8")
        self.lds_wait("L_h_trigB", 227, L_FLAG, "s_cmp_ge_u32", 16, 6)
        A(f"ds_read_b32 v8, v227 offset:{L_MW}")
        A(f"ds_read_b32 v9, v4 offset:{L_LL}")
        A("s_waitcnt lgkmcnt(0)")
        self.wave_reduce("v_add_f32", 9, 10)
        A("v_min_u32 v8, -2, v8")
        A("v_min_u32 v9, -2, v9")
        A("s_mov_b64 exec, 1")
        if self.fast:
            A("s_cmp_eq_u32 s57, 0")
            A("s_cbranch_scc0 L_h_far")
            A("buffer_store_dwordx2 v[8:9], off, s[48:51], s56")
            A("s_branch L_h_fin")
            A("L_h_far:")
        A("buffer_store_dwordx2 v[8:9], off, s[48:51], s56 sc1")
        A("L_h_fin:")
        A("s_mov_b64 exec, -1")
        self.stamp(8)
        A("s_mov_b32 s44, 0xffff0000"); A("s_mov_b32 s45, 0xffff0000")
        self.stamp(9)
        A("s_barrier")
        self.stamp(10)
        mll = "buffer_load_dwordx4 v[12:15], v5, s[48:51], s41 offen sc1"
        lds = [f"buffer_load_dwordx4 v[{20+8*i+4*hf}:{23+8*i+4*hf}], v6, s[48:51], s43 offen offset:{64*hf+512*i} sc1" for i in range(2) for hf in range(2)]
        def weights():
            A("s_waitcnt vmcnt(4)")
            A("v_max_u32 v3, v12, v13")
            A("v_max3_u32 v3, v3, v14, v15")
            A("v_cmp_eq_u32 vcc, -1, v3")
            A("v_max_f32 v18, v12, v14")
            A("s_cbranch_vccnz L_h_mlwait")
            A("L_h_mlok:")
            for r in (1, 2, 4, 8):
                self.nop(2 if r > 1 else 1)
                A(f"v_max_f32_dpp v18, v18, v18 row_ror:{r} {DPPF}")
            A("v_sub_f32 v16, v12, v18")
            A("v_sub_f32 v17, v14, v18")
            A(f"v_mul_f32 v16, {LOG2E:#x}, v16")
            A(f"v_mul_f32 v17, {LOG2E:#x}, v17")
            A("v_exp_f32 v16, v16")
            A("v_exp_f32 v17, v17")
            A("v_mul_f32 v18, v13, v16")
            A("v_fmac_f32 v18, v15, v17")
            for r in (1, 2, 4, 8):
                self.nop(2)
                A(f"v_add_f32_dpp v18, v18, v18 row_ror:{r} {DPPF}")
            A("v_rcp_f32 v18, v18")
            A("s_mov_b32 s47, 0")
            A("v_mul_f32 v16, v16, v18")
            A("v_mul_f32 v17, v17, v18")
        A(mll)
        self.mpoll("L_h_o", lds, range(20, 36), sleep=self.osleep, first=weights)
        self.mlwait = (mll, lds)
        self.stamp(11)
        for e in range(8):
            A(f"v_mul_f32 v{20+e}, v16, v{20+e}")
        for e in range(8):
            A(f"v_fmac_f32 v{20+e}, v17, v{28+e}")
        for r in (1, 2, 4, 8):
            for e in range(8):
                A(f"v_add_f32_dpp v{20+e}, v{20+e}, v{20+e} row_ror:{r} {DPPF}")
        for r in range(4):
            A(f"v_cvt_pk_bf16_f32 v{28+r}, v{20+2*r}, v{21+2*r}")
        self.nop(2)
        B = lambda t: W + (16 if t & 1 else 0) + 4 * (t // 2)
        for t in (0, 4, 1, 5, 2, 6, 3, 7):
            self.mfma(96 + 4 * t, 28, B(t), None)
        self.nop(2)
        for t in range(4):
            if t > 0:
                self.nop(1)
            A(f"v_cndmask_b32 v{20+t}, v{96+4*t}, v{112+4*t}, s[44:45]")
            A(f"v_min_u32 v{20+t}, -2, v{20+t}")
        A("s_mov_b64 exec, 0x03ff03ff")
        A("buffer_store_dwordx4 v[20:23], v226, s[48:51], s59 offen sc1")
        A("s_mov_b64 exec, -1")
        self.stamp(12)
        A("s_cmp_eq_u32 s55, 1")
        A("s_cbranch_scc0 L_h_end")
        self.mpoll("L_c_u", [f"buffer_load_dwordx4 v[{24+4*i}:{27+4*i}], v230, s[48:51], s52 offen offset:{320*i} sc1" for i in range(8)], range(24, 56), sleep=self.usleep)
        self.stamp(13)
        for st in (16, 8, 4):
            for r in range(st):
                A(f"v_add_f32 v{24+r}, v{24+r}, v{24+st+r}")
        self.reduce4(24, (4, 8))
        self.bfr(24, 24)
        A("v_mul_f32 v24, v24, v224")
        self.bfr(24, 24)
        A("v_add_f32 v24, v24, v225")
        A("v_cvt_pk_bf16_f32 v24, v24, v24")
        A("s_mov_b32 exec_lo, 0x000f000f")
        A("s_mov_b32 exec_hi, 0x000f000f")
        A("buffer_store_short v24, v229, s[60:63], s53 offen")
        A("L_h_end:")
        if self.spin is not None:
            A(f"s_cmp_eq_u32 s2, {self.spin}")
            A("s_cbranch_scc0 L_nospin")
            A("L_spin:")
            A("s_memrealtime s[98:99]")
            A("s_waitcnt lgkmcnt(0)")
            A("s_sub_u32 s98, s98, s100")
            A("s_cmp_lt_u32 s98, 15000")
            A("s_cbranch_scc1 L_spin")
            A("L_nospin:")
        self.stamp(14)
        self.flush_stamps(15)
        A("s_endpgm")
        A("L_h_mlwait:")
        self.mpoll("L_h_ml", [self.mlwait[0]], range(12, 16), sleep=self.mlsleep)
        for t in self.mlwait[1]:
            A(t)
        A("v_max_f32 v18, v12, v14")
        A("s_branch L_h_mlok")
        self.ffn()
        if self.fb:
            self.pacer()

    def pacer(self):
        A = self.A
        A("L_pacer:")
        A("v_mov_b32 v4, 0")
        A(f"s_mov_b32 s52, {self.cp0}")
        A(f"s_mov_b32 s53, {WS_TS}")
        A("s_lshl_b32 s43, s2, 2")
        A("L_p_loop:")
        self.lds_wait("L_p_w0", 4, L_PROG, "s_cmp_ge_u32", "s52", 8)
        A(f"ds_read_b32 v5, v4 offset:{L_PROG+4}")
        A("s_add_u32 s41, s53, s43")
        A(f"s_add_u32 s52, s52, {self.cplag}")
        A("s_waitcnt lgkmcnt(0)")
        if self.spacer:
            A("s_cmp_lt_u32 s2, 32")
            A("s_cbranch_scc0 L_p_nopub")
        A("s_mov_b64 exec, 1")
        A("buffer_store_dword v5, off, s[48:51], s41 sc1")
        A("s_mov_b64 exec, -1")
        A("L_p_nopub:")
        self.lds_wait("L_p_w1", 4, L_PROG, "s_cmp_ge_u32", "s52", 8)
        A(f"v_mov_b32 v6, {self.cplag * self.tau}")
        if self.spacer:
            A("v_mov_b32 v8, v5")
            for hlf in range(2):
                A(f"s_add_u32 s41, s53, {64*hlf}")
                A("s_load_dwordx16 s[16:31], s[38:39], s41")
                A("s_waitcnt lgkmcnt(0)")
                for i in range(16):
                    A(f"v_writelane_b32 v8, s{16+i}, {16*hlf+i}")
            A("v_sub_u32 v8, v8, v5")
            A("v_add_u32 v12, 1500, v8")
            A("v_cmp_gt_u32 vcc, 3000, v12")
            self.nop(2)
            A("v_cndmask_b32 v7, v6, v8, vcc")
            self.wave_reduce("v_add_u32", 7, 12)
            A("v_ashrrev_i32 v7, 5, v7")
        else:
            A("buffer_load_dwordx4 v[8:11], v228, s[48:51], s53 offen sc1")
            A("v_mov_b32 v7, 0")
            A("s_waitcnt vmcnt(0)")
            for r in range(4):
                A(f"v_sub_u32 v{8+r}, v{8+r}, v5")
                A(f"v_add_u32 v12, 1500, v{8+r}")
                A("v_cmp_gt_u32 vcc, 3000, v12")
                self.nop(2)
                A(f"v_cndmask_b32 v{8+r}, v6, v{8+r}, vcc")
                A(f"v_add_u32 v7, v7, v{8+r}")
            self.wave_reduce("v_add_u32", 7, 12)
            A("v_ashrrev_i32 v7, 8, v7")
        A("v_add_u32 v7, v7, v5")
        A(f"ds_write_b32 v4, v7 offset:{L_ANCH}")
        A(f"s_add_u32 s52, s52, {self.cpd - self.cplag}")
        A("s_add_u32 s53, s53, 1024")
        A(f"s_cmp_lt_u32 s52, {self.cp0 + self.ncp * self.cpd}")
        A("s_cbranch_scc1 L_p_loop")
        A("s_branch L_h_nocons")

    def ffn(self):
        A = self.A
        W = self.W
        HD = self.hdepth
        A("L_ffn:")
        A(f"s_load_dword s54, s[38:39], {WS_E:#x}")
        self.x_issue()
        A("s_mov_b32 s44, 0xff00ff00"); A("s_mov_b32 s45, 0xff00ff00")
        A("v_mov_b32 v38, s28"); A("v_mov_b32 v39, s29")
        A("v_mov_b32 v8, s30"); A("v_mov_b32 v9, s31")
        A("v_cndmask_b32 v38, v38, v8, s[44:45]")
        A("v_cndmask_b32 v39, v39, v9, s[44:45]")
        A("v_and_b32 v8, 7, v0")
        A("v_lshlrev_b32 v8, 4, v8")
        A("v_mul_u32_u24 v9, 3456, v1")
        A("v_add_u32 v8, v8, v9")
        A(f"s_mul_i32 s47, s5, {80*3456}")
        A("s_lshl_b32 s41, s4, 7")
        A("s_add_u32 s47, s47, s41")
        A("v_add_u32 v8, s47, v8")
        A("v_mov_b32 v9, 0")
        A("v_lshl_add_u64 v[38:39], v[38:39], 0, v[8:9]")
        A("s_mov_b32 s42, 13824"); A("s_mov_b32 s43, 0")
        self.srd(12, 32, 1728 * 1280)
        A("v_mul_u32_u24 v36, 1280, v1")
        A("v_lshl_add_u32 v36, v2, 4, v36")
        A(f"s_mul_i32 s46, s6, {8*1280}            ; row 64h + 8c")
        A(f"s_add_u32 s52, s46, {4*1280}")
        def ld(i):
            sl = W + 4 * i
            if i < 20:
                A(f"global_load_dwordx4 v[{sl}:{sl+3}], v[38:39], off {self.wflag}")
                A("v_lshl_add_u64 v[38:39], v[38:39], 0, s[42:43]")
            else:
                n, k = (i - 20) // 5, (i - 20) % 5
                A(f"buffer_load_dwordx4 v[{sl}:{sl+3}], v36, s[12:15], s{46 if n == 0 else 52} offen offset:{256*k} {self.wflag}")
        for i in range(HD):
            ld(i)
        if self.early:
            A("s_barrier")
        self.masks(12, 6, 44)
        A(f"s_waitcnt vmcnt({HD})")
        self.ln()
        for n in range(20):
            self.abuild(24, 21 + n // 16, 12, n % 16)
            if n + HD < 30:
                A(f"s_waitcnt vmcnt({HD-1})")
                ld(n + HD)
            else:
                A(f"s_waitcnt vmcnt({29-n})")
                self.nop(1)
            self.mfma(28, 24, W + 4 * n, None if n == 0 else 28)
        for i in range(20 + HD, 30):
            A(f"s_waitcnt vmcnt({HD-1})")
            ld(i)
        A("s_waitcnt lgkmcnt(0)")
        self.mktag()
        A("s_lshl_b32 s47, s5, 2")
        A("s_lshl_b32 s62, 15, s47")
        A("s_mov_b32 s63, s62")
        self.exchange("f", WS_FX, 16, 192)
        A("s_mov_b64 exec, -1")
        self.bfr(192, 192)
        self.bfr(194, 194)
        A("v_mov_b32 v193, v192")
        A("v_mov_b32 v195, v194")
        self.nop(2)
        A("v_permlane32_swap_b32 v192, v193")
        A("v_permlane32_swap_b32 v194, v195")
        self.nop(1)
        A("v_max_f32 v192, 0, v192")
        A("v_max_f32 v194, 0, v194")
        A("v_mul_f32 v192, v192, v193")
        A("v_mul_f32 v194, v194, v195")
        A("v_cvt_pk_bf16_f32 v192, v192, v192")
        A("v_cvt_pk_bf16_f32 v193, v194, v194")
        A("v_lshlrev_b32 v6, 3, v0")
        A("v_and_b32 v6, 0xff, v6                ; (lane&31)*8")
        A(f"ds_write_b64 v6, v[192:193] offset:{L_H}")
        A("v_lshl_add_u32 v6, v2, 2, v1          ; 4j+s")
        A("v_and_b32 v6, 7, v6")
        A("s_lshl_b32 s47, s5, 5")
        A("v_lshl_add_u32 v6, v6, 2, s47")
        A(f"ds_read_b32 v21, v6 offset:{L_H}")
        A("v_and_b32 v37, 1, v1")
        A("v_lshl_add_u32 v37, v2, 1, v37")
        A("v_lshlrev_b32 v37, 4, v37")
        A("s_mul_i32 s46, s6, 2560")
        A(f"s_add_u32 s46, s46, {WS_GP}")
        A("s_waitcnt vmcnt(0) lgkmcnt(0)")
        for n in range(2):
            self.abuild(24, 21, 12, n)
            self.nop(2)
            for k in range(5):
                self.mfma(192 + 4 * k, 24, W + 80 + 20 * n + 4 * k, None if n == 0 else 192 + 4 * k)
        self.exec_lo()
        self.nop(8)
        for k in range(5):
            A(f"buffer_store_dwordx4 v[{192+4*k}:{195+4*k}], v37, s[48:51], s46 offen offset:{512*k} sc1")
        A("s_mov_b64 exec, -1")
        A("s_branch L_h_shadow")


if __name__ == "__main__":
    out = sys.argv[1]
    kw = eval("dict(" + (sys.argv[2] if len(sys.argv) > 2 else "") + ")")
    open(out, "w").write(Gen(**kw).gen())
```

```python
import sys
from gen_kernel import Gen as Base, NAME, LOG2E, SCALE, DPPF

WS_O = 0
WS_ML = 0x80000
WS_U = 0x90000
WS_TS = 0xF8000
WS_E = 0xFC000
WS_GP = 0x200000
WS_QX = 0x2A0000
WS_FX = 0x2E0000
WS_SIZE = 0x500000
L_Q = 16640
L_MW = L_Q + 256
L_FLAG = L_MW + 16
L_CNT = L_FLAG + 16
L_ANCH = L_CNT + 4
L_PROG = L_CNT + 8
L_LL = L_CNT + 16
L_LOC = L_LL + 1024
L_H = L_LOC + 16
L_END = L_H + 512
NFH = 27
CONS0 = 216


class Gen(Base):
    def __init__(self, D=5, LA=7, DL=None, N0=28, Dp=5, cu=8, diag=False, wflag="nt", hdepth=30,
                 kmask=0, vmask=0, flagstep=4, mlsleep=8, osleep=0, usleep=2,
                 fb=True, tau=222, theta=0, theta2=-40, cp0=3, cpd=6, ncp=5, cplag=2, phase=1, qsleep=1, wopace=0, early=True, dbg='', fast=True, spacer=True, sflag=True, touch=0, spin=None, N1=None, Dp2=None, n1=10, xfast=0):
        self.L = []
        self.D, self.LA, self.DL, self.N0, self.Dp, self.cu = D, LA, DL, N0, Dp, cu
        self.diag = diag
        self.wflag, self.hdepth = wflag, hdepth
        self.kmask, self.vmask = kmask, vmask
        self.flagstep, self.mlsleep, self.osleep, self.usleep = flagstep, mlsleep, osleep, usleep
        self.fb, self.tau, self.theta, self.theta2 = fb, tau, theta, theta2
        self.cp0, self.cpd, self.ncp, self.cplag = cp0, cpd, ncp, cplag
        self.phase, self.qsleep = phase, qsleep
        self.wopace, self.early, self.dbg = wopace, early, dbg
        self.fast, self.spacer, self.sflag = fast, spacer, sflag
        self.touch = touch
        self.N1 = N1 if N1 is not None else N0
        self.Dp2 = Dp2 if Dp2 is not None else Dp
        self.n1, self.xfast = n1, xfast
        self.spin = spin
        self.NS = (N0 + 15) // 16 * 16
        self.NB = self.NS + 16
        self.uid = 0

    def flush_stamps(self, n):
        if not self.diag:
            return
        A = self.A
        A("s_waitcnt lgkmcnt(0)")
        A("s_mov_b64 exec, 1")
        A("s_lshl_b32 s64, s2, 4"); A("s_add_u32 s64, s64, s3"); A("s_lshl_b32 s64, s64, 6")
        A("s_add_u32 s64, s64, 0x100000")
        A("v_mov_b32 v1, 0")
        for i in range(n):
            A(f"v_mov_b32 v2, s{70+2*i}")
            A(f"buffer_store_dword v2, v1, s[48:51], s64 offen offset:{4*i}")
            A("s_nop 0")

    def gen(self):
        A = self.A
        hdr = open("cdna_kernels/" + NAME + ".s.ref").read().split("\n")
        for line in hdr:
            if line.startswith("; @launch"):
                break
            self.L.append(line)
        self.L.append(f"; @launch grid=(256,1,1) block=(512,1,1) lds={L_END}")
        self.L.append('.amdgcn_target "amdgcn-amd-amdhsa--gfx950"')
        self.L.append(".text")
        self.L.append(f".globl {NAME}_kernel")
        self.L.append(".p2align 12")
        self.L.append(".p2align 8")
        self.L.append(f".type {NAME}_kernel,@function")
        self.L.append(f"{NAME}_kernel:")
        A("s_cmp_ge_u32 s2, 256")
        A("s_cbranch_scc0 L_go")
        A("s_endpgm")
        A("L_go:")
        self.stamp(0)
        if self.spin is not None:
            A("s_memrealtime s[100:101]")
        A("s_load_dwordx16 s[16:31], s[0:1], 0")
        A("s_load_dwordx8 s[32:39], s[0:1], 64")
        A("v_lshrrev_b32 v1, 6, v0")
        A("v_and_b32 v0, 63, v0")
        A("v_readfirstlane_b32 s3, v1")
        A("s_and_b32 s4, s2, 7")
        A("s_lshr_b32 s5, s2, 3")
        A("s_lshl_b32 s4, s4, 2")
        A("s_lshr_b32 s6, s5, 3")
        A("s_add_u32 s4, s4, s6                  ; head")
        A("s_and_b32 s5, s5, 7                   ; chunk")
        A("s_lshl_b32 s6, s4, 3")
        A("s_add_u32 s6, s6, s5")
        A("v_lshrrev_b32 v1, 4, v0               ; s = lane>>4")
        A("v_and_b32 v2, 15, v0                  ; j = lane&15")
        A("s_cmp_ge_u32 s3, 4")
        A("s_cbranch_scc1 L_helper")
        self.streamer_issue()
        A("s_branch L_streamer")
        self.helper()
        self.streamer()
        self.L.append('.section .rodata,"a"')
        self.L.append(".p2align 6")
        self.L.append(f".amdhsa_kernel {NAME}_kernel")
        for s in ["next_free_vgpr 256", "next_free_sgpr 102", "accum_offset 256", "group_segment_fixed_size 0",
                  "kernarg_size 96", "user_sgpr_count 2", "user_sgpr_kernarg_segment_ptr 1",
                  "system_sgpr_workgroup_id_x 1", "float_denorm_mode_32 3"]:
            self.L.append("  .amdhsa_" + s)
        self.L.append(".end_amdhsa_kernel")
        L = self.L
        if "c" in self.dbg:
            L = [t for t in L if not ("buffer_store_dwordx4 v[32:35], v60" in t or "buffer_store_dwordx4 v[16:19], v226" in t or "buffer_store_dwordx2 v[16:17], off" in t)]
        if "g" in self.dbg:
            L = [t for t in L if not ("v37, s[48:51], s46 offen" in t)]
        if "f" in self.dbg:
            L = [t for t in L if "s_cbranch_scc1 L_ffn" not in t]
        if "w" in self.dbg:
            L = [t for t in L if "v36, s[60:63], s41" not in t]
        return "\n".join(L) + "\n"

    RING = 64
    def slot(self, p, steady=False):
        if steady or p >= self.NS:
            p %= 16
        return self.RING + 4 * p

    def sload(self, n, switch=None, steady=False):
        A = self.A
        if n % 16 == 0:
            if switch == "KV":
                A("s_cmp_eq_u32 s15, 15")
                A("s_cselect_b32 s8, s20, s8")
                A("s_cselect_b32 s9, s21, s9")
                A("s_cselect_b64 s[44:45], -1, 0")
                A("v_cndmask_b32 v3, v3, v4, s[44:45]")
            if switch == "END":
                A("s_cmp_eq_u32 s15, 15")
                A("s_cselect_b32 s10, 0, s10")
            A("s_and_b32 s59, s13, 7")
            A("s_mul_i32 s59, s59, 0x4800            ; b<<14 | b<<11")
            A("s_and_b32 s59, s59, 0x7000")
            A("s_lshl_b32 s12, s13, 19")
            A("s_or_b32 s12, s12, s59")
            A("s_xor_b32 s12, s12, s14")
            A("s_add_u32 s13, s13, 1")
            A("s_and_b32 s13, s13, 15")
            A("s_add_u32 s59, s12, 0x10000")
        elif n % 8 == 0:
            A("s_add_u32 s12, s12, 0x8000")
            A("s_add_u32 s59, s59, 0x8000")
        sl = self.slot(n, steady)
        A(f"buffer_load_dwordx4 v[{sl}:{sl+3}], v3, s[8:11], s{59 if n & 1 else 12} offen offset:{1024*((n>>1)&3)} nt")

    def dwait(self):
        A = self.A
        if self.LA == self.D:
            A(f"s_waitcnt vmcnt({self.D-1})")
            return
        self.uid += 1
        A(f"s_waitcnt vmcnt({self.LA-1})")
        A(f"s_cbranch_vccnz L_dw{self.uid}")
        A(f"s_waitcnt vmcnt({self.D-1})")
        if self.DL:
            A("s_cmp_eq_u32 s69, 0")
            A(f"s_cbranch_scc1 L_dw{self.uid}")
            A(f"s_waitcnt vmcnt({self.DL-1})")
        A(f"L_dw{self.uid}:")

    def fb_sample(self):
        if self.fb:
            self.A("s_memrealtime s[64:65]")
            self.A(f"ds_read_b32 v59, v56 offset:{L_ANCH}")

    def setdeep(self, sreg, fb=False, base=0):
        A = self.A
        if self.LA == self.D:
            return
        if fb and self.fb:
            A("s_waitcnt lgkmcnt(0)")
            A("v_readfirstlane_b32 s66, v59")
            A(f"s_add_u32 s67, s15, {base}")
            A(f"s_mul_i32 s68, s67, {self.tau}")
            A("s_sub_u32 s68, s64, s68")
            A("v_mov_b32 v58, s67")
            A("v_mov_b32 v59, s68")
            A(f"ds_write_b64 v57, v[58:59] offset:{L_PROG}")
            A("s_sub_u32 s68, s68, s66")
            if self.DL:
                A(f"s_add_u32 s69, s68, 2000")
                A(f"s_cmp_lt_u32 s69, {2000 + self.theta2}")
                A("s_cselect_b32 s69, 1, 0")
            A(f"s_cmp_gt_i32 s68, {self.theta}")
            A("s_cselect_b64 vcc, -1, 0")
            A(f"s_bitcmp1_b32 s{sreg}, s15")
            A("s_cselect_b64 vcc, -1, vcc")
            if self.diag:
                A("s_mov_b32 m0, s67")
                A("v_writelane_b32 v55, s64, m0")
                A("s_and_b32 s66, vcc_lo, 2")
                A("s_or_b32 s66, s66, s69")
                A("v_writelane_b32 v54, s66, m0")
            return
        A(f"s_bitcmp1_b32 s{sreg}, s15")
        A("s_cselect_b64 vcc, -1, 0")

    def streamer_issue(self):
        A = self.A
        A("v_lshlrev_b32 v4, 4, v0")
        A("v_and_b32 v3, 48, v4                  ; c*16")
        A("v_lshl_add_u32 v3, v1, 6, v3          ; + s*64")
        A("v_bfe_u32 v5, v0, 2, 2                ; a")
        A("v_lshl_add_u32 v3, v5, 8, v3          ; + a*256")
        A("s_lshl_b32 s14, s4, 23")
        A("s_lshr_b32 s7, s5, 1")
        A("s_lshl_b32 s7, s7, 17")
        A("s_or_b32 s14, s14, s7")
        A("s_and_b32 s7, s5, 1")
        A("s_lshl_b32 s7, s7, 14")
        A("s_or_b32 s14, s14, s7")
        A("s_lshl_b32 s7, s3, 12")
        A("s_or_b32 s14, s14, s7")
        A(f"s_lshr_b32 s13, s4, {self.phase}")
        A("s_and_b32 s13, s13, 15")
        A("s_lshl_b32 s46, s5, 2")
        A("s_add_u32 s46, s46, s3")
        A("s_waitcnt lgkmcnt(0)")
        self.srd(8, 18, 0x10000000)
        for n in range(self.Dp):
            self.sload(n)

    def kstep_post(self, n, since):
        G, g = (n % 16) // 4, n % 4
        if g == 2:
            if since < 8:
                self.nop(8 - since)
            self.kpost(32 + 4 * ((G - 1) & 1), G)

    def streamer(self):
        A = self.A
        D, LA, N0, Dp = self.D, self.LA, self.N0, self.Dp
        A("L_streamer:")
        self.srd(48, 38, WS_SIZE)
        A("v_and_b32 v6, 3, v2")
        A("v_lshl_add_u32 v6, v1, 2, v6          ; rho*4 + (j&3)")
        A("v_lshlrev_b32 v53, 4, v6")
        A("v_lshl_add_u32 v60, v5, 7, v53        ; + (j>>2)*128")
        A("s_lshl_b32 s47, s4, 14")
        A("s_lshl_b32 s7, s46, 9")
        A("s_add_u32 s47, s47, s7")
        for r in range(4):
            A(f"v_mov_b32 v{32+r}, -1")
        self.exec_lo()
        A("buffer_store_dwordx4 v[32:35], v60, s[48:51], s47 offen sc1")
        A("s_mov_b64 exec, -1")
        self.masks(12, 6, 40)
        A("s_mov_b32 s40, 0xaaaaaaaa"); A("s_mov_b32 s41, 0xaaaaaaaa")
        A("s_mov_b32 s42, 0xcccccccc"); A("s_mov_b32 s43, 0xcccccccc")
        A(f"s_mov_b32 s57, {self.kmask:#x}"); A(f"s_mov_b32 s58, {self.vmask:#x}")
        A("s_mov_b32 s69, 0")
        A("s_lshl_b32 s7, s3, 2")
        A("v_mov_b32 v61, s7                     ; w*4")
        A("v_mov_b32 v6, 0")
        A(f"ds_write_b32 v61, v6 offset:{L_FLAG}")
        A(f"ds_write_b32 v6, v6 offset:{L_CNT}")
        if self.fb:
            A("s_memrealtime s[64:65]")
            A("v_mov_b32 v56, 0")
            A("v_mov_b32 v7, 0")
            A(f"ds_write_b64 v56, v[6:7] offset:{L_PROG}")
            A("s_cmp_eq_u32 s3, 1")
            A(f"s_cselect_b32 s7, 0, {L_H - L_PROG + 256}")
            A("v_mov_b32 v57, s7")
            A("s_waitcnt lgkmcnt(0)")
            A("s_add_u32 s64, s64, 0x100000")
            A("v_mov_b32 v7, s64")
            A(f"ds_write_b32 v56, v7 offset:{L_ANCH}")
        A("s_lshl_b32 s7, s3, 8")
        A("v_lshl_add_u32 v62, v0, 2, s7")
        A("s_lshl_b32 s7, s3, 12")
        A("v_and_b32 v8, 60, v0")
        A("v_add_u32 v8, s7, v8")
        A("v_mov_b32 v5, 0xff800000")
        A("s_mov_b32 s15, 0")
        N1, Dp2 = self.N1, self.Dp2
        def pf(n):
            d = Dp if n < self.n1 else Dp2
            A(f"s_waitcnt vmcnt({d if n - d < Dp else d-1})")
            if (n - Dp) % 4 == 0 and (n - Dp) // 4 < 8:
                self.stamp(7 + (n - Dp) // 4)
            self.sload(n)
        for n in range(Dp, N1):
            pf(n)
        A("s_waitcnt lgkmcnt(0)")
        self.stamp(1)
        A("s_barrier")
        self.stamp(2)
        A(f"ds_read_b128 v[44:47], v53 offset:{L_Q}")
        A(f"ds_read_b32 v7, v6 offset:{L_LOC}")
        rest = list(range(N1, N0))
        if rest:
            pf(rest.pop(0))
        A("s_waitcnt lgkmcnt(0)")
        A("v_readfirstlane_b32 s56, v7")
        for g in range(4):
            pat = (0xf << (4 * g)) * 0x00010001
            A(f"s_mov_b32 s44, {pat:#x}"); A(f"s_mov_b32 s45, {pat:#x}")
            for r in range(4):
                A(f"v_cndmask_b32 v{16+4*g+r}, 0, v{44+r}, s[44:45]")
            if rest:
                pf(rest.pop(0))
        for n in rest:
            pf(n)
        self.nop(2)
        self.stamp(3)
        assert N1 - 1 - Dp2 >= Dp and N0 <= self.NS
        NB = self.NB
        issued, landed = N0, N0 - Dp2
        last_mfma = {}
        self.setdeep(57)
        for n in range(NB):
            G, g = n // 4, n % 4
            if n % 16 == 0 and n > 0:
                A(f"s_mov_b32 s15, {n//16}")
                self.setdeep(57)
            if n % 16 == 0 and self.diag and self.fb:
                A("s_memrealtime s[64:65]")
                A("s_waitcnt lgkmcnt(0)")
                A(f"v_writelane_b32 v55, s64, {n//16}")
                A(f"v_writelane_b32 v54, 0, {n//16}")
            want = issued - n <= LA or (n >= 1 and (n <= D or n % self.cu == 0))
            if want and issued < NB + LA:
                prev = issued - self.NS if issued < self.NS + 16 else issued - 16
                if prev < n:
                    self.dwait()
                    landed = max(landed, issued - (LA - 1))
                    self.sload(issued)
                    issued += 1
            if landed <= n:
                A(f"s_waitcnt vmcnt({issued - n - 1})")
                landed = n + 1
            dreg = 32 + 4 * (G & 1)
            self.mfma(dreg, 16 + 4 * g, self.slot(n), None if g == 0 else dreg)
            last_mfma[G] = len(self.L)
            if g == 2 and G > 0:
                since = sum(1 for t in self.L[last_mfma[G - 1]:] if not t.endswith(":") and "vmcnt" not in t and "cbranch" not in t and "s69" not in t)
                self.kstep_post(n, since)
            if n % 16 == 15:
                A("v_add_u32 v8, 256, v8")
        assert issued == NB + LA, (issued, NB + LA)
        A(f"s_mov_b32 s15, {NB//16}")
        self.fb_sample()
        A("L_kloop:")
        self.setdeep(57, True, 0)
        for n in range(16):
            G, g = n // 4, n % 4
            self.dwait()
            self.sload(n + LA, "KV", True)
            dreg = 32 + 4 * (G & 1)
            self.mfma(dreg, 16 + 4 * g, self.slot(n, True), None if g == 0 else dreg)
            self.kstep_post(n, 9)
            if n == 14:
                self.fb_sample()
        A("v_add_u32 v8, 256, v8")
        A("s_add_u32 s15, s15, 1")
        A("s_cmp_lt_u32 s15, 16")
        A("s_cbranch_scc1 L_kloop")
        self.nop(6)
        self.kpost(36, 0)
        self.stamp(4)
        A("s_lshl_b32 s7, s3, 12")
        A("v_lshl_add_u32 v8, v2, 2, v1          ; 4j+s")
        A("v_lshlrev_b32 v8, 2, v8")
        A("v_add_u32 v8, s7, v8")
        A("ds_read_b32 v11, v8 offset:64")
        self.wave_reduce("v_max_f32", 5, 6, rors=(4, 8))
        self.bfr(9, 5)
        A(f"v_mul_f32 v9, {SCALE:#x}, v9")
        self.bfr(9, 9)
        A(f"ds_write_b32 v61, v9 offset:{L_MW}")
        A("v_mov_b32 v5, 0                       ; l")
        A("v_mov_b32 v63, 0")
        for r in range(4):
            A(f"v_mov_b32 v{40+r}, 0")
        A("s_mov_b32 s15, 0")
        A("L_vloop:")
        self.setdeep(58, True, 16)
        A("s_waitcnt lgkmcnt(0)")
        self.pcalc()
        for n in range(16):
            self.abuild(16, 10, 12, n)
            self.dwait()
            self.sload(n + LA, "END", True)
            self.mfma(40, 16, self.slot(n, True), 40)
            if n == 14:
                self.fb_sample()
            if n == self.flagstep:
                A("v_add_u32 v63, 1, v63")
                A(f"ds_write_b32 v62, v5 offset:{L_LL}")
                A(f"ds_write_b32 v61, v63 offset:{L_FLAG}")
        A("s_add_u32 s15, s15, 1")
        A("s_cmp_lt_u32 s15, 16")
        A("s_cbranch_scc1 L_vloop")
        self.stamp(5)
        self.exec_lo()
        A("s_cmp_eq_u32 s56, 0")
        self.nop(2)
        for r in range(4):
            A(f"v_min_u32 v{40+r}, -2, v{40+r}")
        if self.fast:
            A("s_cbranch_scc0 L_s_far")
            A("buffer_store_dwordx4 v[40:43], v60, s[48:51], s47 offen")
            A("s_branch L_s_fin")
            A("L_s_far:")
        A("buffer_store_dwordx4 v[40:43], v60, s[48:51], s47 offen sc1")
        A("L_s_fin:")
        A("s_barrier")
        self.stamp(6)
        if self.diag and self.fb:
            A("s_lshl_b32 s7, s2, 2"); A("s_add_u32 s7, s7, s3"); A("s_lshl_b32 s7, s7, 8"); A("s_add_u32 s7, s7, 0x140000")
            A("v_lshlrev_b32 v6, 2, v0")
            A("buffer_store_dword v55, v6, s[48:51], s7 offen")
            A("buffer_store_dword v54, v6, s[48:51], s7 offen offset:128")
        self.flush_stamps(15)
        A("s_endpgm")

    W = 64
    def lds_wait(self, label, addr_v, off, cmp, val, sleep):
        A = self.A
        A("s_mov_b32 s47, 0")
        A(f"{label}:")
        A(f"ds_read_b32 v3, v{addr_v} offset:{off}")
        A("s_waitcnt lgkmcnt(0)")
        A("v_readfirstlane_b32 s42, v3")
        A("s_add_u32 s47, s47, 1")
        A(f"{cmp} s42, {val}")
        A(f"s_cbranch_scc1 {label}_ok")
        A(f"s_sleep {sleep}")
        A("s_cmp_lt_u32 s47, 0x100000")
        A(f"s_cbranch_scc1 {label}")
        A(f"{label}_ok:")

    def mpoll(self, label, loads, regs, sleep=0, first=None):
        A = self.A
        A("s_mov_b32 s47, 0")
        for s in loads:
            A(s)
        if first:
            first()
        A(f"{label}:")
        A("s_waitcnt vmcnt(0)")
        r = list(regs)
        A(f"v_max_u32 v3, v{r[0]}, v{r[1]}")
        r = r[2:]
        while r:
            A(f"v_max3_u32 v3, v3, v{r[0]}, v{r[1]}")
            r = r[2:]
        A("v_cmp_eq_u32 vcc, -1, v3")
        A("s_add_u32 s47, s47, 1")
        A(f"s_cbranch_vccz {label}_ok")
        A("s_mov_b64 exec, vcc")
        if sleep:
            A(f"s_sleep {sleep}")
        for s in loads:
            A(s)
        A("s_cmp_lt_u32 s47, 0x40000")
        A(f"s_cbranch_scc1 {label}")
        A(f"{label}_ok:")
        A("s_mov_b64 exec, -1")

    def mktag(self):
        A = self.A
        A("s_lshr_b32 s54, s54, 4")
        A("s_mul_i32 s54, s54, 0x9e3779b1")
        A("s_add_u32 s54, s54, 0x7f4a7c15")
        A("s_lshl_b32 s54, s54, 4")

    def x_issue(self):
        A = self.A
        for i in range(5):
            A(f"buffer_load_dword v{16+i}, v3, s[8:11], 0 offen offset:{256*i}")
        for i in range(2):
            A(f"buffer_load_ushort v{21+i}, v4, s[8:11], s7 offen offset:{128*i}")

    def ln(self):
        A = self.A
        for i in range(5):
            A(f"v_lshlrev_b32 v{24+2*i}, 16, v{16+i}")
            A(f"v_and_b32 v{25+2*i}, 0xffff0000, v{16+i}")
        self.ln_stats(list(range(24, 34)), 34, 35, 16, 17)
        for i in range(2):
            A(f"v_lshlrev_b32 v{21+i}, 16, v{21+i}")
        for i in range(2):
            self.ln_apply(21 + i, 34, 35)
        self.nop(2)

    def exchange(self, tag, base, sleep, R):
        A = self.A
        A("s_mov_b32 s44, 0"); A("s_mov_b32 s45, -1")
        A("v_lshrrev_b32 v6, 1, v1")
        A("v_and_b32 v7, 1, v1")
        A("v_lshl_add_u32 v6, v7, 1, v6")
        A("v_lshl_add_u32 v6, v2, 2, v6")
        A("v_lshlrev_b32 v6, 4, v6")
        A("s_lshl_b32 s41, s6, 10")
        A(f"s_add_u32 s41, s41, {base}")
        A("s_getreg_b32 s47, hwreg(HW_REG_XCC_ID, 0, 4)")
        A("s_or_b32 s47, s47, s54")
        A("v_mov_b32 v25, s47")
        A("v_mov_b32 v27, s47")
        A("v_cndmask_b32 v24, v28, v30, s[44:45]")
        A("v_cndmask_b32 v26, v29, v31, s[44:45]")
        if self.xfast:
            A("s_add_u32 s43, s41, 0x100000")
            A("buffer_store_dwordx4 v[24:27], v6, s[48:51], s43 offen")
        A("buffer_store_dwordx4 v[24:27], v6, s[48:51], s41 offen sc1")
        A("s_and_b32 s41, s41, 0xffffe000")
        if self.xfast:
            A("s_add_u32 s41, s41, 0x100000")
        A("s_mov_b64 exec, s[62:63]")
        A(f"s_waitcnt vmcnt({1 if self.xfast else 0})")
        A("s_mov_b32 s47, 0")
        A(f"L_{tag}_x:")
        if self.xfast:
            A(f"s_cmp_eq_u32 s47, {self.xfast}")
            A("s_cselect_b32 s43, 0x100000, 0")
            A("s_sub_u32 s41, s41, s43")
        A("s_add_u32 s43, s41, 4096")
        for c in range(8):
            A(f"buffer_load_dwordx4 v[{R+4*c}:{R+3+4*c}], v228, s[48:51], s{41 if c < 4 else 43} offen offset:{1024*(c%4)} sc1")
        for c in range(8):
            A(f"s_waitcnt vmcnt({7-c})")
            if c == 0:
                A(f"v_and_b32 v6, v{R+1}, v{R+3}")
                A(f"v_or_b32 v7, v{R+1}, v{R+3}")
            else:
                A(f"v_bitop3_b32 v6, v6, v{R+4*c+1}, v{R+4*c+3} bitop3:0x80")
                A(f"v_or3_b32 v7, v7, v{R+4*c+1}, v{R+4*c+3}")
                A(f"v_add_f32 v{R}, v{R}, v{R+4*c}")
                A(f"v_add_f32 v{R+2}, v{R+2}, v{R+4*c+2}")
        A("v_xor_b32 v8, s54, v6")
        A("v_xor_b32 v9, s54, v7")
        A("v_cmp_lt_u32 vcc, 15, v8")
        A("v_cmp_lt_u32 s[44:45], 15, v9")
        A("s_add_u32 s47, s47, 1")
        A("s_or_b64 vcc, vcc, s[44:45]")
        A(f"s_cbranch_scc0 L_{tag}_ok")
        if sleep:
            A(f"s_sleep {sleep}")
        A("s_cmp_lt_u32 s47, 0x40000")
        A(f"s_cbranch_scc1 L_{tag}_x")
        A(f"L_{tag}_ok:")

    def helper(self):
        A = self.A
        W = self.W
        A("L_helper:")
        A("s_sub_u32 s40, s3, 4                  ; hw")
        A("s_mul_i32 s7, s5, 160")
        A("v_lshl_add_u32 v4, v2, 2, v1          ; 4j+s")
        A("v_lshlrev_b32 v4, 1, v4")
        A("v_lshlrev_b32 v3, 2, v0               ; lane*4")
        A("v_lshlrev_b32 v228, 4, v0             ; lane*16")
        A("s_cmp_eq_u32 s40, 0")
        A("s_cbranch_scc0 L_h_noq")
        A("v_lshlrev_b32 v8, 13, v1")
        A("v_lshl_add_u32 v8, v2, 4, v8          ; s*8192 + j*16")
        A("v_add_u32 v9, 0x8000, v8")
        A("v_add_u32 v10, 0x10000, v8")
        A("v_add_u32 v11, 0x18000, v8")
        A(f"s_mul_i32 s42, s5, {80*8192}")
        A("s_lshl_b32 s43, s4, 8")
        A("s_add_u32 s42, s42, s43")
        A("s_waitcnt lgkmcnt(0)")
        A(f"s_load_dword s54, s[38:39], {WS_E:#x}")
        self.srd(8, 16, 1280)
        self.srd(12, 22, 640 * 8192)
        self.x_issue()
        for n in range(20):
            sl = W + 4 * n
            A(f"buffer_load_dwordx4 v[{sl}:{sl+3}], v{8+n%4}, s[12:15], s42 offen {self.wflag}")
            if n % 4 == 3 and n < 19:
                A("s_add_u32 s42, s42, 0x20000")
        self.stamp(1)
        self.srd(48, 38, WS_SIZE)
        self.masks(12, 6, 44)
        A("s_mov_b64 s[62:63], -1")
        A("s_waitcnt vmcnt(20)")
        self.stamp(2)
        self.ln()
        self.stamp(3)
        for n in range(20):
            self.abuild(24, 21 + n // 16, 12, n % 16)
            A(f"s_waitcnt vmcnt({19-n})")
            self.nop(1)
            self.mfma(28, 24, W + 4 * n, None if n == 0 else 28)
        A("s_waitcnt lgkmcnt(0)")
        self.mktag()
        self.exchange("q", WS_QX, self.qsleep, 160)
        A("v_xor_b32 v7, v6, v7")
        A("v_cvt_pk_bf16_f32 v6, v160, v162")
        A(f"ds_write_b32 v3, v6 offset:{L_Q}")
        A("v_mov_b32 v6, 0")
        A(f"ds_write_b32 v6, v7 offset:{L_LOC}")
        A("s_waitcnt lgkmcnt(0)")
        self.stamp(4)
        A("s_barrier")
        A("s_branch L_h_shadow")
        A("L_h_noq:")
        if self.touch:
            A("s_cmp_eq_u32 s40, 3")
            A("s_cbranch_scc0 L_h_notouch")
            A(f"s_mul_i32 s42, s5, {80*8192}")
            A(f"s_mul_i32 s43, s5, {80*3456}")
            A(f"s_mul_i32 s44, s6, {8*1280}")
            A(f"s_min_u32 s44, s44, {1727*1280}")
            A(f"s_mul_i32 s45, s4, {128*1280}")
            A("s_lshl_b32 s46, s4, 23")
            A("s_waitcnt lgkmcnt(0)")
            if self.touch & 1:
                A("s_load_dword s64, s[16:17], 0")
                A("s_load_dword s65, s[22:23], s42")
                A("s_mov_b32 s47, 0x290000")
                A("s_load_dword s66, s[38:39], s47")
                A("s_load_dword s67, s[28:29], s43")
                A("s_load_dword s68, s[30:31], s43")
                A("s_load_dword s69, s[32:33], s44")
                A("s_load_dword s60, s[24:25], s45")
                A("s_load_dword s61, s[34:35], 0")
            if self.touch & 2:
                A("s_waitcnt lgkmcnt(0)")
                for i in range(4):
                    A(f"s_load_dword s{64+i}, s[18:19], s46")
                    A(f"s_load_dword s{60+i}, s[20:21], s46")
                    A("s_add_u32 s46, s46, 0x200000")
            A("L_h_notouch:")
        if not self.early:
            A("s_barrier")
        A("s_waitcnt lgkmcnt(0)")
        self.srd(8, 16, 1280)
        self.srd(48, 38, WS_SIZE)
        A("s_cmp_eq_u32 s40, 1")
        A(f"s_cselect_b32 s41, s4, {NFH}")
        A(f"s_cmp_lt_u32 s41, {NFH}")
        A("s_cbranch_scc1 L_ffn")
        if self.early:
            A("s_cmp_eq_u32 s40, 1")
            A("s_cbranch_scc0 L_h_shadow")
            A("s_barrier")
        A("L_h_shadow:")
        self.srd(12, 36, 256)
        A("s_mov_b32 s60, s24"); A("s_mov_b32 s61, s25"); A(f"s_mov_b32 s62, {4096*1280}"); A("s_mov_b32 s63, 0x20000")
        A("v_mul_u32_u24 v36, 10240, v1")
        A("v_lshl_add_u32 v36, v2, 4, v36")
        A("v_mov_b32 v37, 0x7fffffff")
        A("s_mov_b32 s44, 0x03ff03ff"); A("s_mov_b32 s45, 0x03ff03ff")
        A("v_cndmask_b32 v36, v37, v36, s[44:45]")
        A("s_lshl_b32 s46, s4, 2")
        A("s_add_u32 s46, s46, s40               ; 4h + hw")
        A(f"s_mul_i32 s41, s46, {32*1280}")
        A("s_mul_i32 s47, s5, 160")
        A("s_add_u32 s41, s41, s47")
        A("v_lshl_add_u32 v226, v2, 1, v1")
        A("v_lshlrev_b32 v226, 4, v226")
        A(f"s_mul_i32 s59, s5, {128*320}")
        A("s_mul_i32 s47, s46, 320")
        A("s_add_u32 s59, s59, s47")
        A(f"s_add_u32 s59, s59, {WS_U}")
        A("s_lshl_b32 s56, s6, 2")
        A("s_add_u32 s56, s56, s40")
        A("s_lshl_b32 s56, s56, 3")
        A(f"s_add_u32 s56, s56, {WS_ML}")
        for r in range(4):
            A(f"v_mov_b32 v{16+r}, -1")
        A("s_mov_b64 exec, 0x03ff03ff")
        A("buffer_store_dwordx4 v[16:19], v226, s[48:51], s59 offen sc1")
        A("s_mov_b64 exec, 1")
        A("buffer_store_dwordx2 v[16:17], off, s[48:51], s56 sc1")
        A("s_mov_b64 exec, -1")
        for e in range(8):
            sl = W + (16 if e & 1 else 0) + 4 * (e // 2)
            if e % 2 == 0 and e > 0:
                A("s_add_u32 s41, s41, 2560")
            A(f"buffer_load_dwordx4 v[{sl}:{sl+3}], v36, s[60:63], s41 offen offset:{1280*(e&1)} {self.wflag}")
            if self.wopace:
                A(f"s_waitcnt vmcnt({self.wopace-1})")
        if self.early:
            A("s_cmp_lt_u32 s40, 2")
            A("s_cbranch_scc1 L_h_nobar")
            A("s_barrier")
            A("L_h_nobar:")
        A("s_waitcnt vmcnt(0)")
        A("s_mov_b64 exec, 1")
        A(f"v_mov_b32 v30, {L_CNT}")
        A("v_mov_b32 v31, 1")
        A("ds_add_rtn_u32 v32, v30, v31")
        A("s_waitcnt lgkmcnt(0)")
        A("v_readfirstlane_b32 s47, v32")
        A("s_cmp_eq_u32 s47, 3")
        A("s_cbranch_scc0 L_h_nosig")
        A("buffer_store_byte v31, off, s[12:15], s6 sc1")
        A("L_h_nosig:")
        A("s_mov_b64 exec, -1")
        self.stamp(5)
        A("s_mov_b32 s44, 0x05040100")
        A("s_mov_b32 s45, 0x07060302")
        E = lambda i, c: W + 4 * i + c
        O = lambda i, c: W + 16 + 4 * i + c
        for i in range(4):
            A(f"v_perm_b32 v16, v{O(i,i)}, v{E(i,i)}, s44")
            A(f"v_perm_b32 v{O(i,i)}, v{O(i,i)}, v{E(i,i)}, s45")
            A(f"v_mov_b32 v{E(i,i)}, v16")
            for c in range(i + 1, 4):
                A(f"v_perm_b32 v16, v{O(i,c)}, v{E(i,c)}, s44")
                A(f"v_perm_b32 v17, v{O(i,c)}, v{E(i,c)}, s45")
                A(f"v_perm_b32 v{E(i,c)}, v{O(c,i)}, v{E(c,i)}, s44")
                A(f"v_perm_b32 v{O(i,c)}, v{O(c,i)}, v{E(c,i)}, s45")
                A(f"v_mov_b32 v{E(c,i)}, v16")
                A(f"v_mov_b32 v{O(c,i)}, v17")
        self.stamp(6)
        A("s_lshl_b32 s7, s40, 2")
        A("v_mov_b32 v227, s7                    ; hw*4")
        A("v_and_b32 v229, 3, v0")
        A("v_lshl_add_u32 v229, v229, 2, v1")
        A("v_lshlrev_b32 v229, 1, v229           ; (4q + rho)*2")
        A("s_mov_b32 s55, 0")
        if self.fb:
            A("s_cmp_eq_u32 s40, 2")
            A("s_cbranch_scc1 L_pacer")
        A("s_cmp_eq_u32 s40, 0")
        A("s_cbranch_scc0 L_h_nocons")
        self.lds_wait("L_h_trigA", 227, L_FLAG, "s_cmp_ge_u32", 1, 100)
        if self.sflag:
            A(f"s_cmp_ge_u32 s2, {CONS0}")
            A("s_cbranch_scc1 L_h_vflag")
            A("s_cmp_eq_u32 s2, 0")
            A("s_cbranch_scc1 L_h_vflag")
            A("s_lshl_b32 s42, s4, 3")
            A("s_load_dwordx2 s[44:45], s[36:37], s42")
            A("s_waitcnt lgkmcnt(0)")
            A("s_and_b32 s44, s44, s45")
            A("s_cmp_eq_u32 s44, 0x01010101")
            A("s_cbranch_scc1 L_h_nocons")
            A("L_h_vflag:")
        A("v_lshlrev_b32 v7, 2, v0")
        A("s_mov_b32 s47, 0")
        A("L_h_cnt:")
        A("buffer_load_dword v6, v7, s[12:15], 0 offen sc1")
        A("s_waitcnt vmcnt(0)")
        A("v_cmp_ne_u32 vcc, 0x01010101, v6")
        A("s_add_u32 s47, s47, 1")
        A("s_cbranch_vccz L_h_cnt_ok")
        A("s_sleep 100")
        A("s_cmp_lt_u32 s47, 0x10000")
        A("s_cbranch_scc1 L_h_cnt")
        A("L_h_cnt_ok:")
        A("s_cmp_eq_u32 s2, 0")
        A("s_cbranch_scc0 L_h_noepoch")
        A("v_mov_b32 v6, s54")
        A(f"s_mov_b32 s47, {WS_E:#x}")
        A("s_mov_b64 exec, 1")
        A("buffer_store_dword v6, off, s[48:51], s47 sc1")
        A("s_mov_b64 exec, -1")
        A("L_h_noepoch:")
        A(f"s_cmp_ge_u32 s2, {CONS0}")
        A("s_cbranch_scc0 L_h_nocons")
        A("s_mov_b32 s55, 1")
        A(f"s_sub_u32 s52, s2, {CONS0}")
        A("s_lshl_b32 s53, s52, 5")
        A("buffer_load_ushort v225, v229, s[8:11], s53 offen")
        A("v_lshrrev_b32 v230, 2, v0")
        A("v_mul_u32_u24 v230, 2560, v230")
        A("v_and_b32 v7, 48, v228")
        A("v_add_u32 v230, v230, v7")
        A("v_mov_b32 v7, 0x7fffffff")
        A("s_mov_b32 s44, -1"); A("s_mov_b32 s45, 0")
        A("v_cndmask_b32 v7, v7, v230, s[44:45]")
        A("s_lshl_b32 s42, s52, 6")
        A(f"s_add_u32 s42, s42, {WS_GP}")
        for i in range(14):
            A(f"buffer_load_dwordx4 v[{100+4*i}:{103+4*i}], v{230 if i < 13 else 7}, s[48:51], s42 offen sc1")
            A(f"s_add_u32 s42, s42, {16*2560}")
            if i % 4 == 3:
                A("s_waitcnt vmcnt(0)")
        A("s_waitcnt vmcnt(0)")
        for r in range(4):
            A(f"v_add_f32 v{8+r}, v{100+r}, v{104+r}")
        for i in range(2, 14):
            for r in range(4):
                A(f"v_add_f32 v{8+r}, v{8+r}, v{100+4*i+r}")
        self.reduce4(8, (4, 8))
        self.bfr(8, 8)
        A(f"v_mul_f32 v9, {LOG2E | 0x80000000:#x}, v8")
        A("v_exp_f32 v9, v9")
        self.nop(1)
        A("v_add_f32 v9, 1.0, v9")
        A("v_rcp_f32 v9, v9")
        self.nop(1)
        A("v_mul_f32 v8, v8, v9")
        self.bfr(224, 8)
        A("v_lshlrev_b32 v225, 16, v225")
        A("s_mul_i32 s42, s52, 52")
        A("s_lshr_b32 s42, s42, 8")
        A(f"s_mul_i32 s42, s42, {128*320 - 320}")
        A("s_lshl_b32 s52, s52, 6")
        A("s_add_u32 s52, s52, s42")
        A(f"s_add_u32 s52, s52, {WS_U}")
        A("L_h_nocons:")
        self.srd(60, 34, 1280)
        self.stamp(7)
        A("s_lshl_b32 s7, s40, 8")
        A("v_lshl_add_u32 v4, v0, 2, s7")
        A("v_lshlrev_b32 v5, 4, v2               ; j*16")
        A("s_lshl_b32 s41, s4, 8")
        A(f"s_add_u32 s41, s41, {WS_ML}")
        A("v_lshlrev_b32 v6, 4, v1")
        A("v_lshl_add_u32 v6, v2, 10, v6         ; j*1024 + s*16 : partials 2j, 2j+1")
        A("s_lshl_b32 s43, s4, 14")
        A("s_lshl_b32 s7, s40, 7")
        A("s_add_u32 s43, s43, s7")
        A("v_mov_b32 v8, 0")
        A(f"ds_read_b32 v8, v8 offset:{L_LOC}")
        A("s_waitcnt lgkmcnt(0)")
        A("v_readfirstlane_b32 s57, v8")
        self.lds_wait("L_h_trigB", 227, L_FLAG, "s_cmp_ge_u32", 16, 6)
        A(f"ds_read_b32 v8, v227 offset:{L_MW}")
        A(f"ds_read_b32 v9, v4 offset:{L_LL}")
        A("s_waitcnt lgkmcnt(0)")
        self.wave_reduce("v_add_f32", 9, 10)
        A("v_min_u32 v8, -2, v8")
        A("v_min_u32 v9, -2, v9")
        A("s_mov_b64 exec, 1")
        if self.fast:
            A("s_cmp_eq_u32 s57, 0")
            A("s_cbranch_scc0 L_h_far")
            A("buffer_store_dwordx2 v[8:9], off, s[48:51], s56")
            A("s_branch L_h_fin")
            A("L_h_far:")
        A("buffer_store_dwordx2 v[8:9], off, s[48:51], s56 sc1")
        A("L_h_fin:")
        A("s_mov_b64 exec, -1")
        self.stamp(8)
        A("s_mov_b32 s44, 0xffff0000"); A("s_mov_b32 s45, 0xffff0000")
        self.stamp(9)
        A("s_barrier")
        self.stamp(10)
        mll = "buffer_load_dwordx4 v[12:15], v5, s[48:51], s41 offen sc1"
        lds = [f"buffer_load_dwordx4 v[{20+8*i+4*hf}:{23+8*i+4*hf}], v6, s[48:51], s43 offen offset:{64*hf+512*i} sc1" for i in range(2) for hf in range(2)]
        def weights():
            A("s_waitcnt vmcnt(4)")
            A("v_max_u32 v3, v12, v13")
            A("v_max3_u32 v3, v3, v14, v15")
            A("v_cmp_eq_u32 vcc, -1, v3")
            A("v_max_f32 v18, v12, v14")
            A("s_cbranch_vccnz L_h_mlwait")
            A("L_h_mlok:")
            for r in (1, 2, 4, 8):
                self.nop(2 if r > 1 else 1)
                A(f"v_max_f32_dpp v18, v18, v18 row_ror:{r} {DPPF}")
            A("v_sub_f32 v16, v12, v18")
            A("v_sub_f32 v17, v14, v18")
            A(f"v_mul_f32 v16, {LOG2E:#x}, v16")
            A(f"v_mul_f32 v17, {LOG2E:#x}, v17")
            A("v_exp_f32 v16, v16")
            A("v_exp_f32 v17, v17")
            A("v_mul_f32 v18, v13, v16")
            A("v_fmac_f32 v18, v15, v17")
            for r in (1, 2, 4, 8):
                self.nop(2)
                A(f"v_add_f32_dpp v18, v18, v18 row_ror:{r} {DPPF}")
            A("v_rcp_f32 v18, v18")
            A("s_mov_b32 s47, 0")
            A("v_mul_f32 v16, v16, v18")
            A("v_mul_f32 v17, v17, v18")
        A(mll)
        self.mpoll("L_h_o", lds, range(20, 36), sleep=self.osleep, first=weights)
        self.mlwait = (mll, lds)
        self.stamp(11)
        for e in range(8):
            A(f"v_mul_f32 v{20+e}, v16, v{20+e}")
        for e in range(8):
            A(f"v_fmac_f32 v{20+e}, v17, v{28+e}")
        for r in (1, 2, 4, 8):
            for e in range(8):
                A(f"v_add_f32_dpp v{20+e}, v{20+e}, v{20+e} row_ror:{r} {DPPF}")
        for r in range(4):
            A(f"v_cvt_pk_bf16_f32 v{28+r}, v{20+2*r}, v{21+2*r}")
        self.nop(2)
        B = lambda t: W + (16 if t & 1 else 0) + 4 * (t // 2)
        for t in (0, 4, 1, 5, 2, 6, 3, 7):
            self.mfma(96 + 4 * t, 28, B(t), None)
        self.nop(2)
        for t in range(4):
            if t > 0:
                self.nop(1)
            A(f"v_cndmask_b32 v{20+t}, v{96+4*t}, v{112+4*t}, s[44:45]")
            A(f"v_min_u32 v{20+t}, -2, v{20+t}")
        A("s_mov_b64 exec, 0x03ff03ff")
        A("buffer_store_dwordx4 v[20:23], v226, s[48:51], s59 offen sc1")
        A("s_mov_b64 exec, -1")
        self.stamp(12)
        A("s_cmp_eq_u32 s55, 1")
        A("s_cbranch_scc0 L_h_end")
        self.mpoll("L_c_u", [f"buffer_load_dwordx4 v[{24+4*i}:{27+4*i}], v230, s[48:51], s52 offen offset:{320*i} sc1" for i in range(8)], range(24, 56), sleep=self.usleep)
        self.stamp(13)
        for st in (16, 8, 4):
            for r in range(st):
                A(f"v_add_f32 v{24+r}, v{24+r}, v{24+st+r}")
        self.reduce4(24, (4, 8))
        self.bfr(24, 24)
        A("v_mul_f32 v24, v24, v224")
        self.bfr(24, 24)
        A("v_add_f32 v24, v24, v225")
        A("v_cvt_pk_bf16_f32 v24, v24, v24")
        A("s_mov_b32 exec_lo, 0x000f000f")
        A("s_mov_b32 exec_hi, 0x000f000f")
        A("buffer_store_short v24, v229, s[60:63], s53 offen")
        A("L_h_end:")
        if self.spin is not None:
            A(f"s_cmp_eq_u32 s2, {self.spin}")
            A("s_cbranch_scc0 L_nospin")
            A("L_spin:")
            A("s_memrealtime s[98:99]")
            A("s_waitcnt lgkmcnt(0)")
            A("s_sub_u32 s98, s98, s100")
            A("s_cmp_lt_u32 s98, 15000")
            A("s_cbranch_scc1 L_spin")
            A("L_nospin:")
        self.stamp(14)
        self.flush_stamps(15)
        A("s_endpgm")
        A("L_h_mlwait:")
        self.mpoll("L_h_ml", [self.mlwait[0]], range(12, 16), sleep=self.mlsleep)
        for t in self.mlwait[1]:
            A(t)
        A("v_max_f32 v18, v12, v14")
        A("s_branch L_h_mlok")
        self.ffn()
        if self.fb:
            self.pacer()

    def pacer(self):
        A = self.A
        A("L_pacer:")
        A("v_mov_b32 v4, 0")
        A(f"s_mov_b32 s52, {self.cp0}")
        A(f"s_mov_b32 s53, {WS_TS}")
        A("s_lshl_b32 s43, s2, 2")
        A("L_p_loop:")
        self.lds_wait("L_p_w0", 4, L_PROG, "s_cmp_ge_u32", "s52", 8)
        A(f"ds_read_b32 v5, v4 offset:{L_PROG+4}")
        A("s_add_u32 s41, s53, s43")
        A(f"s_add_u32 s52, s52, {self.cplag}")
        A("s_waitcnt lgkmcnt(0)")
        if self.spacer:
            A("s_cmp_lt_u32 s2, 32")
            A("s_cbranch_scc0 L_p_nopub")
        A("s_mov_b64 exec, 1")
        A("buffer_store_dword v5, off, s[48:51], s41 sc1")
        A("s_mov_b64 exec, -1")
        A("L_p_nopub:")
        self.lds_wait("L_p_w1", 4, L_PROG, "s_cmp_ge_u32", "s52", 8)
        A(f"v_mov_b32 v6, {self.cplag * self.tau}")
        if self.spacer:
            A("v_mov_b32 v8, v5")
            for hlf in range(2):
                A(f"s_add_u32 s41, s53, {64*hlf}")
                A("s_load_dwordx16 s[16:31], s[38:39], s41")
                A("s_waitcnt lgkmcnt(0)")
                for i in range(16):
                    A(f"v_writelane_b32 v8, s{16+i}, {16*hlf+i}")
            A("v_sub_u32 v8, v8, v5")
            A("v_add_u32 v12, 1500, v8")
            A("v_cmp_gt_u32 vcc, 3000, v12")
            self.nop(2)
            A("v_cndmask_b32 v7, v6, v8, vcc")
            self.wave_reduce("v_add_u32", 7, 12)
            A("v_ashrrev_i32 v7, 5, v7")
        else:
            A("buffer_load_dwordx4 v[8:11], v228, s[48:51], s53 offen sc1")
            A("v_mov_b32 v7, 0")
            A("s_waitcnt vmcnt(0)")
            for r in range(4):
                A(f"v_sub_u32 v{8+r}, v{8+r}, v5")
                A(f"v_add_u32 v12, 1500, v{8+r}")
                A("v_cmp_gt_u32 vcc, 3000, v12")
                self.nop(2)
                A(f"v_cndmask_b32 v{8+r}, v6, v{8+r}, vcc")
                A(f"v_add_u32 v7, v7, v{8+r}")
            self.wave_reduce("v_add_u32", 7, 12)
            A("v_ashrrev_i32 v7, 8, v7")
        A("v_add_u32 v7, v7, v5")
        A(f"ds_write_b32 v4, v7 offset:{L_ANCH}")
        A(f"s_add_u32 s52, s52, {self.cpd - self.cplag}")
        A("s_add_u32 s53, s53, 1024")
        A(f"s_cmp_lt_u32 s52, {self.cp0 + self.ncp * self.cpd}")
        A("s_cbranch_scc1 L_p_loop")
        A("s_branch L_h_nocons")

    def ffn(self):
        A = self.A
        W = self.W
        HD = self.hdepth
        A("L_ffn:")
        A(f"s_load_dword s54, s[38:39], {WS_E:#x}")
        self.x_issue()
        A("s_mov_b32 s44, 0xff00ff00"); A("s_mov_b32 s45, 0xff00ff00")
        A("v_mov_b32 v38, s28"); A("v_mov_b32 v39, s29")
        A("v_mov_b32 v8, s30"); A("v_mov_b32 v9, s31")
        A("v_cndmask_b32 v38, v38, v8, s[44:45]")
        A("v_cndmask_b32 v39, v39, v9, s[44:45]")
        A("v_and_b32 v8, 7, v0")
        A("v_lshlrev_b32 v8, 4, v8")
        A("v_mul_u32_u24 v9, 3456, v1")
        A("v_add_u32 v8, v8, v9")
        A(f"s_mul_i32 s47, s5, {80*3456}")
        A("s_lshl_b32 s41, s4, 7")
        A("s_add_u32 s47, s47, s41")
        A("v_add_u32 v8, s47, v8")
        A("v_mov_b32 v9, 0")
        A("v_lshl_add_u64 v[38:39], v[38:39], 0, v[8:9]")
        A("s_mov_b32 s42, 13824"); A("s_mov_b32 s43, 0")
        self.srd(12, 32, 1728 * 1280)
        A("v_mul_u32_u24 v36, 1280, v1")
        A("v_lshl_add_u32 v36, v2, 4, v36")
        A(f"s_mul_i32 s46, s6, {8*1280}            ; row 64h + 8c")
        A(f"s_add_u32 s52, s46, {4*1280}")
        def ld(i):
            sl = W + 4 * i
            if i < 20:
                A(f"global_load_dwordx4 v[{sl}:{sl+3}], v[38:39], off {self.wflag}")
                A("v_lshl_add_u64 v[38:39], v[38:39], 0, s[42:43]")
            else:
                n, k = (i - 20) // 5, (i - 20) % 5
                A(f"buffer_load_dwordx4 v[{sl}:{sl+3}], v36, s[12:15], s{46 if n == 0 else 52} offen offset:{256*k} {self.wflag}")
        for i in range(HD):
            ld(i)
        if self.early:
            A("s_barrier")
        self.masks(12, 6, 44)
        A(f"s_waitcnt vmcnt({HD})")
        self.ln()
        for n in range(20):
            self.abuild(24, 21 + n // 16, 12, n % 16)
            if n + HD < 30:
                A(f"s_waitcnt vmcnt({HD-1})")
                ld(n + HD)
            else:
                A(f"s_waitcnt vmcnt({29-n})")
                self.nop(1)
            self.mfma(28, 24, W + 4 * n, None if n == 0 else 28)
        for i in range(20 + HD, 30):
            A(f"s_waitcnt vmcnt({HD-1})")
            ld(i)
        A("s_waitcnt lgkmcnt(0)")
        self.mktag()
        A("s_lshl_b32 s47, s5, 2")
        A("s_lshl_b32 s62, 15, s47")
        A("s_mov_b32 s63, s62")
        self.exchange("f", WS_FX, 16, 192)
        A("s_mov_b64 exec, -1")
        self.bfr(192, 192)
        self.bfr(194, 194)
        A("v_mov_b32 v193, v192")
        A("v_mov_b32 v195, v194")
        self.nop(2)
        A("v_permlane32_swap_b32 v192, v193")
        A("v_permlane32_swap_b32 v194, v195")
        self.nop(1)
        A("v_max_f32 v192, 0, v192")
        A("v_max_f32 v194, 0, v194")
        A("v_mul_f32 v192, v192, v193")
        A("v_mul_f32 v194, v194, v195")
        A("v_cvt_pk_bf16_f32 v192, v192, v192")
        A("v_cvt_pk_bf16_f32 v193, v194, v194")
        A("v_lshlrev_b32 v6, 3, v0")
        A("v_and_b32 v6, 0xff, v6                ; (lane&31)*8")
        A(f"ds_write_b64 v6, v[192:193] offset:{L_H}")
        A("v_lshl_add_u32 v6, v2, 2, v1          ; 4j+s")
        A("v_and_b32 v6, 7, v6")
        A("s_lshl_b32 s47, s5, 5")
        A("v_lshl_add_u32 v6, v6, 2, s47")
        A(f"ds_read_b32 v21, v6 offset:{L_H}")
        A("v_and_b32 v37, 1, v1")
        A("v_lshl_add_u32 v37, v2, 1, v37")
        A("v_lshlrev_b32 v37, 4, v37")
        A("s_mul_i32 s46, s6, 2560")
        A(f"s_add_u32 s46, s46, {WS_GP}")
        A("s_waitcnt vmcnt(0) lgkmcnt(0)")
        for n in range(2):
            self.abuild(24, 21, 12, n)
            self.nop(2)
            for k in range(5):
                self.mfma(192 + 4 * k, 24, W + 80 + 20 * n + 4 * k, None if n == 0 else 192 + 4 * k)
        self.exec_lo()
        self.nop(8)
        for k in range(5):
            A(f"buffer_store_dwordx4 v[{192+4*k}:{195+4*k}], v37, s[48:51], s46 offen offset:{512*k} sc1")
        A("s_mov_b64 exec, -1")
        A("s_branch L_h_shadow")


if __name__ == "__main__":
    out = sys.argv[1]
    kw = eval("dict(" + (sys.argv[2] if len(sys.argv) > 2 else "") + ")")
    open(out, "w").write(Gen(**kw).gen())
```

```python
import sys
from gen_kernel import NAME, LOG2E, SCALE, DPPF
from gen6 import Gen as G6

WS_O = 0
WS_ML = 0x40000
WS_U = 0x50000
WS_GP = 0x80000
WS_TS = 0xF8000
WS_E = 0xFC000
WS_QN = 0x200000
WS_QF = 0x240000
WS_FX = 0x280000
WS_SIZE = 0x300000
L_Q = 16640
L_MW = L_Q + 256
L_FLAG = L_MW + 16
L_TAG = L_FLAG + 16
L_PROG = L_TAG + 8
L_ANCH = L_PROG + 8
L_LL = L_ANCH + 16
L_O = L_LL + 1024
L_X = L_O + 2048
L_H = L_X + 1280
L_END = L_H + 512
NFH = 27
CONS0 = 216
import gen6
gen6.L_ANCH, gen6.L_PROG = L_ANCH, L_PROG


class Gen(G6):
    def __init__(self, npipe=3, gap=2, warm=0, uflag='sc1', gplate=True, rwarm='', **kw):
        kw.setdefault("N1", 24); kw.setdefault("N0", 30); kw.setdefault("xfast", 6)
        super().__init__(**kw)
        self.npipe, self.gap, self.warm, self.uflag = npipe, gap, warm, uflag
        self.gplate, self.rwarm = gplate, rwarm

    def gen(self):
        txt = super().gen()
        return txt.replace(f"lds={gen6.L_END}", f"lds={L_END}")

    def streamer(self):
        A = self.A
        D, LA, N0, Dp = self.D, self.LA, self.N0, self.Dp
        A("L_streamer:")
        if self.diag:
            self.srd(48, 38, WS_SIZE)
        A("v_and_b32 v6, 3, v2")
        A("v_lshl_add_u32 v6, v1, 2, v6          ; rho*4 + (j&3)")
        A("v_lshlrev_b32 v53, 4, v6")
        A("v_and_b32 v6, 1, v1")
        A("v_lshl_add_u32 v6, v2, 1, v6")
        A("s_lshl_b32 s7, s3, 9")
        A("v_lshl_add_u32 v60, v6, 4, s7")
        self.masks(12, 6, 40)
        A("s_mov_b32 s40, 0xaaaaaaaa"); A("s_mov_b32 s41, 0xaaaaaaaa")
        A("s_mov_b32 s42, 0xcccccccc"); A("s_mov_b32 s43, 0xcccccccc")
        A(f"s_mov_b32 s57, {self.kmask:#x}"); A(f"s_mov_b32 s58, {self.vmask:#x}")
        A("s_mov_b32 s69, 0")
        A("s_lshl_b32 s7, s3, 2")
        A("v_mov_b32 v61, s7                     ; w*4")
        A("v_mov_b32 v6, 0")
        A(f"ds_write_b32 v61, v6 offset:{L_FLAG}")
        if self.fb:
            A("s_memrealtime s[64:65]")
            A("v_mov_b32 v56, 0")
            A("v_mov_b32 v7, 0")
            A(f"ds_write_b64 v56, v[6:7] offset:{L_PROG}")
            A("s_cmp_eq_u32 s3, 1")
            A(f"s_cselect_b32 s7, 0, {L_H - L_PROG + 256}")
            A("v_mov_b32 v57, s7")
            A("s_waitcnt lgkmcnt(0)")
            A("s_add_u32 s64, s64, 0x100000")
            A("v_mov_b32 v7, s64")
            A(f"ds_write_b32 v56, v7 offset:{L_ANCH}")
        A("s_lshl_b32 s7, s3, 8")
        A("v_lshl_add_u32 v62, v0, 2, s7")
        A("s_lshl_b32 s7, s3, 12")
        A("v_and_b32 v8, 60, v0")
        A("v_add_u32 v8, s7, v8")
        A("v_mov_b32 v5, 0xff800000")
        A("s_mov_b32 s15, 0")
        N1, Dp2 = self.N1, self.Dp2
        def pf(n):
            d = Dp if n < self.n1 else Dp2
            A(f"s_waitcnt vmcnt({d-1})")
            if (n - Dp) % 4 == 0 and (n - Dp) // 4 < 8:
                self.stamp(7 + (n - Dp) // 4)
            self.sload(n)
        for n in range(Dp, N1):
            pf(n)
        A("s_waitcnt lgkmcnt(0)")
        self.stamp(1)
        A("s_barrier")
        self.stamp(2)
        A(f"ds_read_b128 v[44:47], v53 offset:{L_Q}")
        rest = list(range(N1, N0))
        if rest:
            pf(rest.pop(0))
        A("s_waitcnt lgkmcnt(0)")
        for g in range(4):
            pat = (0xf << (4 * g)) * 0x00010001
            A(f"s_mov_b32 s44, {pat:#x}"); A(f"s_mov_b32 s45, {pat:#x}")
            for r in range(4):
                A(f"v_cndmask_b32 v{16+4*g+r}, 0, v{44+r}, s[44:45]")
            if rest:
                pf(rest.pop(0))
        for n in rest:
            pf(n)
        self.nop(2)
        self.stamp(3)
        NB = self.NB
        issued, landed = N0, N0 - Dp2
        last_mfma = {}
        self.setdeep(57)
        for n in range(NB):
            G, g = n // 4, n % 4
            if n % 16 == 0 and n > 0:
                A(f"s_mov_b32 s15, {n//16}")
                self.setdeep(57)
            if n % 16 == 0 and self.diag and self.fb:
                A("s_memrealtime s[64:65]")
                A("s_waitcnt lgkmcnt(0)")
                A(f"v_writelane_b32 v55, s64, {n//16}")
                A(f"v_writelane_b32 v54, 0, {n//16}")
            want = issued - n <= LA or (n >= 1 and (n <= D or n % self.cu == 0))
            if want and issued < NB + LA:
                prev = issued - self.NS if issued < self.NS + 16 else issued - 16
                if prev < n:
                    self.dwait()
                    landed = max(landed, issued - (LA - 1))
                    self.sload(issued)
                    issued += 1
            if landed <= n:
                A(f"s_waitcnt vmcnt({issued - n - 1})")
                landed = n + 1
            dreg = 32 + 4 * (G & 1)
            self.mfma(dreg, 16 + 4 * g, self.slot(n), None if g == 0 else dreg)
            last_mfma[G] = len(self.L)
            if g == 2 and G > 0:
                since = sum(1 for t in self.L[last_mfma[G - 1]:] if not t.endswith(":") and "vmcnt" not in t and "cbranch" not in t and "s69" not in t)
                self.kstep_post(n, since)
            if n % 16 == 15:
                A("v_add_u32 v8, 256, v8")
        assert issued == NB + LA, (issued, NB + LA)
        A(f"s_mov_b32 s15, {NB//16}")
        self.fb_sample()
        A("L_kloop:")
        self.setdeep(57, True, 0)
        for n in range(16):
            G, g = n // 4, n % 4
            self.dwait()
            self.sload(n + LA, "KV", True)
            dreg = 32 + 4 * (G & 1)
            self.mfma(dreg, 16 + 4 * g, self.slot(n, True), None if g == 0 else dreg)
            self.kstep_post(n, 9)
            if n == 14:
                self.fb_sample()
        A("v_add_u32 v8, 256, v8")
        A("s_add_u32 s15, s15, 1")
        A("s_cmp_lt_u32 s15, 16")
        A("s_cbranch_scc1 L_kloop")
        self.nop(6)
        self.kpost(36, 0)
        self.stamp(4)
        A("s_lshl_b32 s7, s3, 12")
        A("v_lshl_add_u32 v8, v2, 2, v1          ; 4j+s")
        A("v_lshlrev_b32 v8, 2, v8")
        A("v_add_u32 v8, s7, v8")
        A("ds_read_b32 v11, v8 offset:64")
        self.wave_reduce("v_max_f32", 5, 6, rors=(4, 8))
        self.bfr(9, 5)
        A(f"v_mul_f32 v9, {SCALE:#x}, v9")
        self.bfr(9, 9)
        A(f"ds_write_b32 v61, v9 offset:{L_MW}")
        A("v_mov_b32 v5, 0                       ; l")
        A("v_mov_b32 v63, 0")
        for r in range(4):
            A(f"v_mov_b32 v{40+r}, 0")
        A("s_mov_b32 s15, 0")
        A("L_vloop:")
        self.setdeep(58, True, 16)
        A("s_waitcnt lgkmcnt(0)")
        self.pcalc()
        for n in range(16):
            self.abuild(16, 10, 12, n)
            self.dwait()
            self.sload(n + LA, "END", True)
            self.mfma(40, 16, self.slot(n, True), 40)
            if n == 14:
                self.fb_sample()
            if n == self.flagstep:
                A("v_add_u32 v63, 1, v63")
                A(f"ds_write_b32 v62, v5 offset:{L_LL}")
                A(f"ds_write_b32 v61, v63 offset:{L_FLAG}")
        A("s_add_u32 s15, s15, 1")
        A("s_cmp_lt_u32 s15, 16")
        A("s_cbranch_scc1 L_vloop")
        self.stamp(5)
        self.exec_lo()
        self.nop(3)
        A(f"ds_write_b128 v60, v[40:43] offset:{L_O}")
        A("s_waitcnt lgkmcnt(0)")
        A("s_barrier")
        self.stamp(6)
        if self.diag:
            A("s_barrier")
            for _ in range(3):
                A("s_sleep 127")
        if self.diag and self.fb:
            A("s_lshl_b32 s7, s2, 2"); A("s_add_u32 s7, s7, s3"); A("s_lshl_b32 s7, s7, 8"); A("s_add_u32 s7, s7, 0x140000")
            A("v_lshlrev_b32 v6, 2, v0")
            A("buffer_store_dword v55, v6, s[48:51], s7 offen")
            A("buffer_store_dword v54, v6, s[48:51], s7 offen offset:128")
        self.flush_stamps(15)
        A("s_endpgm")

    def nearfar(self, tag, store):
        A = self.A
        if self.fast:
            A("s_cmp_eq_u32 s57, 0")
            A(f"s_cbranch_scc0 L_{tag}_far")
            A(store)
            A(f"s_branch L_{tag}_fin")
            A(f"L_{tag}_far:")
        A(store + " sc1")
        A(f"L_{tag}_fin:")

    def tagcheck(self, regs, t0=3, t1=7):
        A = self.A
        r = list(regs)
        if len(r) == 2:
            A(f"v_cmp_ne_u32 vcc, s54, v{r[0]}")
            A(f"v_cmp_ne_u32 s[44:45], s54, v{r[1]}")
        else:
            A(f"v_and_b32 v{t0}, v{r[0]}, v{r[1]}")
            A(f"v_or_b32 v{t1}, v{r[0]}, v{r[1]}")
            for i in range(2, len(r), 2):
                A(f"v_bitop3_b32 v{t0}, v{t0}, v{r[i]}, v{r[i+1]} bitop3:0x80")
                A(f"v_or3_b32 v{t1}, v{t1}, v{r[i]}, v{r[i+1]}")
            A(f"v_cmp_ne_u32 vcc, s54, v{t0}")
            A(f"v_cmp_ne_u32 s[44:45], s54, v{t1}")
        A("s_add_u32 s47, s47, 1")
        A("s_or_b64 vcc, vcc, s[44:45]")

    def tpoll(self, label, loads, tags, sleep=0, first=None, issued=False):
        A = self.A
        A("s_mov_b32 s47, 0")
        if not issued:
            for t in loads:
                A(t)
        if first:
            first()
        A(f"{label}:")
        A("s_waitcnt vmcnt(0)")
        self.tagcheck(tags)
        A(f"s_cbranch_scc0 {label}_ok")
        A("s_mov_b64 exec, vcc")
        if sleep:
            A(f"s_sleep {sleep}")
        for t in loads:
            A(t)
        A("s_cmp_lt_u32 s47, 0x40000")
        A(f"s_cbranch_scc1 {label}")
        A(f"{label}_ok:")
        A("s_mov_b64 exec, -1")

    def pack(self, tagreg):
        A = self.A
        A("s_mov_b32 s44, 0"); A("s_mov_b32 s45, -1")
        A(f"v_mov_b32 v25, s{tagreg}")
        A(f"v_mov_b32 v27, s{tagreg}")
        A("v_cndmask_b32 v24, v28, v30, s[44:45]")
        A("v_cndmask_b32 v26, v29, v31, s[44:45]")

    def gather8(self, label, R, sleep, lowmask, pre=None):
        A = self.A
        A("s_mov_b32 s47, 0")
        A(f"{label}:")
        if pre:
            pre()
        A("s_add_u32 s43, s41, 4096")
        for c in range(8):
            A(f"buffer_load_dwordx4 v[{R+4*c}:{R+3+4*c}], v228, s[48:51], s{41 if c < 4 else 43} offen offset:{1024*(c%4)} sc1")
        for c in range(8):
            A(f"s_waitcnt vmcnt({7-c})")
            if c == 0:
                A(f"v_and_b32 v6, v{R+1}, v{R+3}")
                A(f"v_or_b32 v7, v{R+1}, v{R+3}")
            else:
                A(f"v_bitop3_b32 v6, v6, v{R+4*c+1}, v{R+4*c+3} bitop3:0x80")
                A(f"v_or3_b32 v7, v7, v{R+4*c+1}, v{R+4*c+3}")
                A(f"v_add_f32 v{R}, v{R}, v{R+4*c}")
                A(f"v_add_f32 v{R+2}, v{R+2}, v{R+4*c+2}")
        A("v_xor_b32 v8, s54, v6")
        A("v_xor_b32 v9, s54, v7")
        A(f"v_cmp_lt_u32 vcc, {lowmask}, v8")
        A(f"v_cmp_lt_u32 s[44:45], {lowmask}, v9")
        A("s_add_u32 s47, s47, 1")
        A("s_or_b64 vcc, vcc, s[44:45]")
        A(f"s_cbranch_scc0 {label}_ok")
        if sleep:
            A(f"s_sleep {sleep}")
        A("s_cmp_lt_u32 s47, 0x40000")
        A(f"s_cbranch_scc1 {label}")
        A(f"{label}_ok:")

    def colsum(self, R):
        A = self.A
        A(f"v_add_f32 v{R}, v{R}, v{R+4}")
        A(f"v_add_f32 v{R+2}, v{R+2}, v{R+6}")
        A(f"v_add_f32 v{R+8}, v{R+8}, v{R+12}")
        A(f"v_add_f32 v{R+10}, v{R+10}, v{R+14}")
        A(f"v_add_f32 v{R}, v{R}, v{R+8}")
        A(f"v_add_f32 v{R+2}, v{R+2}, v{R+10}")
        self.nop(2)
        A(f"v_permlane32_swap_b32 v{R}, v{R+2}")
        self.nop(1)
        A(f"v_add_f32 v{R}, v{R}, v{R+2}")
        self.nop(1)
        A(f"v_mov_b32 v{R+2}, v{R}")
        self.nop(2)
        A(f"v_permlane16_swap_b32 v{R}, v{R+2}")
        self.nop(1)
        A(f"v_add_f32 v{R}, v{R}, v{R+2}")
        self.nop(2)
        A(f"v_add_f32_dpp v{R}, v{R}, v{R} row_ror:8 {DPPF}")

    def helper(self):
        A = self.A
        W = self.W
        A("L_helper:")
        A("s_sub_u32 s40, s3, 4                  ; hw")
        A("s_mul_i32 s7, s5, 160")
        A("v_lshl_add_u32 v4, v2, 2, v1          ; 4j+s")
        A("v_lshlrev_b32 v4, 1, v4")
        A("v_lshlrev_b32 v3, 2, v0               ; lane*4")
        A("v_lshlrev_b32 v228, 4, v0             ; lane*16")
        A("s_cmp_eq_u32 s40, 0")
        A("s_cbranch_scc0 L_h_noq")
        A("v_lshlrev_b32 v8, 13, v1")
        A("v_lshl_add_u32 v8, v2, 4, v8          ; s*8192 + j*16")
        A("v_add_u32 v9, 0x8000, v8")
        A("v_add_u32 v10, 0x10000, v8")
        A("v_add_u32 v11, 0x18000, v8")
        A(f"s_mul_i32 s42, s5, {80*8192}")
        A("s_lshl_b32 s43, s4, 8")
        A("s_add_u32 s42, s42, s43")
        A("s_waitcnt lgkmcnt(0)")
        A(f"s_load_dword s54, s[38:39], {WS_E:#x}")
        self.srd(8, 16, 1280)
        self.srd(12, 22, 640 * 8192)
        self.x_issue()
        for n in range(20):
            sl = W + 4 * n
            A(f"buffer_load_dwordx4 v[{sl}:{sl+3}], v{8+n%4}, s[12:15], s42 offen {self.wflag}")
            if n % 4 == 3 and n < 19:
                A("s_add_u32 s42, s42, 0x20000")
        self.stamp(1)
        self.srd(48, 38, WS_SIZE)
        self.masks(12, 6, 44)
        self.gaddr()
        A("s_lshl_b32 s42, s6, 10")
        A(f"s_add_u32 s42, s42, {WS_QN}")
        A("s_and_b32 s41, s42, 0xffffe000")
        A("s_waitcnt vmcnt(20)")
        self.stamp(2)
        self.ln()
        self.stamp(3)
        for n in range(20):
            self.abuild(24, 21 + n // 16, 12, n % 16)
            A(f"s_waitcnt vmcnt({19-n})")
            self.nop(1)
            self.mfma(28, 24, W + 4 * n, None if n == 0 else 28)
        A("s_waitcnt lgkmcnt(0)")
        self.mktag()
        A("s_getreg_b32 s47, hwreg(HW_REG_XCC_ID, 0, 4)")
        A("s_or_b32 s47, s47, s54")
        self.pack(47)
        A("buffer_store_dwordx4 v[24:27], v231, s[48:51], s42 offen")
        A(f"s_add_u32 s42, s42, {WS_QF - WS_QN}")
        A("s_waitcnt vmcnt(0)")
        def pre():
            A(f"s_cmp_lt_u32 s47, {self.xfast}")
            A("s_cbranch_scc1 L_q_keep")
            A(f"s_xor_b32 s41, s41, {WS_QF ^ WS_QN}")
            A(f"s_cmp_eq_u32 s47, {self.xfast}")
            A("s_cbranch_scc0 L_q_keep")
            A("buffer_store_dwordx4 v[24:27], v231, s[48:51], s42 offen sc1")
            A("L_q_keep:")
        self.gather8("L_q_x", 160, self.qsleep, 15, pre)
        A("v_xor_b32 v7, v6, v7")
        A("v_cvt_pk_bf16_f32 v8, v160, v162")
        A(f"ds_write_b32 v3, v8 offset:{L_Q}")
        A("v_mov_b32 v6, s54")
        A("v_mov_b32 v8, 0")
        A(f"ds_write_b64 v8, v[6:7] offset:{L_TAG}")
        A("v_readfirstlane_b32 s57, v7")
        A("s_cmp_eq_u32 s57, 0")
        A("s_cbranch_scc1 L_q_near")
        A("buffer_store_dwordx4 v[24:27], v231, s[48:51], s42 offen sc1")
        A("L_q_near:")
        A("s_waitcnt lgkmcnt(0)")
        self.stamp(4)
        A("s_barrier")
        A("s_branch L_h_shadow")
        A("L_h_noq:")
        A("s_waitcnt lgkmcnt(0)")
        self.srd(8, 16, 1280)
        self.srd(48, 38, WS_SIZE)
        A("s_cmp_eq_u32 s40, 1")
        A("s_cbranch_scc1 L_ffn")
        A("L_h_shadow:")
        self.gaddr()
        A("s_mov_b32 s60, s24"); A("s_mov_b32 s61, s25"); A(f"s_mov_b32 s62, {4096*1280}"); A("s_mov_b32 s63, 0x20000")
        A("v_mul_u32_u24 v36, 10240, v1")
        A("v_lshl_add_u32 v36, v2, 4, v36")
        A("v_mov_b32 v37, 0x7fffffff")
        A("s_mov_b32 s44, 0x03ff03ff"); A("s_mov_b32 s45, 0x03ff03ff")
        A("v_cndmask_b32 v36, v37, v36, s[44:45]")
        A("s_lshl_b32 s46, s4, 2")
        A("s_add_u32 s46, s46, s40               ; 4h + hw")
        A(f"s_mul_i32 s41, s46, {32*1280}")
        A("s_mul_i32 s47, s5, 160")
        A("s_add_u32 s41, s41, s47")
        for e in range(8):
            sl = W + (16 if e & 1 else 0) + 4 * (e // 2)
            if e % 2 == 0 and e > 0:
                A("s_add_u32 s41, s41, 2560")
            A(f"buffer_load_dwordx4 v[{sl}:{sl+3}], v36, s[60:63], s41 offen offset:{1280*(e&1)} {self.wflag}")
        A("s_cmp_lt_u32 s40, 2")
        A("s_cbranch_scc1 L_h_nobar")
        A("s_barrier")
        self.gettag()
        A("L_h_nobar:")
        A("s_waitcnt vmcnt(0)")
        self.stamp(5)
        A("s_mov_b32 s44, 0x05040100")
        A("s_mov_b32 s45, 0x07060302")
        E = lambda i, c: W + 4 * i + c
        O = lambda i, c: W + 16 + 4 * i + c
        for i in range(4):
            A(f"v_perm_b32 v16, v{O(i,i)}, v{E(i,i)}, s44")
            A(f"v_perm_b32 v{O(i,i)}, v{O(i,i)}, v{E(i,i)}, s45")
            A(f"v_mov_b32 v{E(i,i)}, v16")
            for c in range(i + 1, 4):
                A(f"v_perm_b32 v16, v{O(i,c)}, v{E(i,c)}, s44")
                A(f"v_perm_b32 v17, v{O(i,c)}, v{E(i,c)}, s45")
                A(f"v_perm_b32 v{E(i,c)}, v{O(c,i)}, v{E(c,i)}, s44")
                A(f"v_perm_b32 v{O(i,c)}, v{O(c,i)}, v{E(c,i)}, s45")
                A(f"v_mov_b32 v{E(c,i)}, v16")
                A(f"v_mov_b32 v{O(c,i)}, v17")
        self.stamp(6)
        A("v_mov_b32 v227, 0")
        A("s_mov_b32 s55, 0")
        if self.fb:
            A("s_cmp_eq_u32 s40, 2")
            A("s_cbranch_scc1 L_pacer")
        A("s_cmp_eq_u32 s40, 3")
        A("s_cselect_b32 s41, s2, 0")
        A(f"s_cmp_ge_u32 s41, {CONS0}")
        A("s_cbranch_scc0 L_h_nocons")
        A("s_mov_b32 s55, 1")
        self.srd(60, 34, 1280)
        A(f"s_sub_u32 s52, s2, {CONS0}")
        A("s_lshl_b32 s53, s52, 5")
        A("v_and_b32 v6, 7, v0")
        A("v_lshrrev_b32 v7, 5, v0")
        A("v_lshl_add_u32 v229, v6, 1, v7")
        A("v_lshlrev_b32 v229, 1, v229           ; (2t + half)*2")
        A("v_lshrrev_b32 v230, 3, v0")
        A("v_mul_u32_u24 v230, 2560, v230")
        A("v_lshl_add_u32 v230, v6, 4, v230      ; g*2560 + t*16")
        A("s_mul_i32 s42, s52, 52")
        A("s_lshr_b32 s42, s42, 8")
        A(f"s_mul_i32 s42, s42, {32*640 - 640}")
        A("s_lshl_b32 s52, s52, 7")
        A("s_add_u32 s52, s52, s42")
        A(f"s_add_u32 s56, s52, {WS_GP}")
        A(f"s_add_u32 s52, s52, {WS_U}")
        gpl = [f"buffer_load_dwordx4 v[{8+4*i}:{11+4*i}], v230, s[48:51], s56 offen offset:{640*i} sc1" for i in range(4)]
        def gcalc():
            self.colsum(8)
            self.bfr(8, 8)
            A(f"v_mul_f32 v9, {LOG2E | 0x80000000:#x}, v8")
            A("v_exp_f32 v9, v9")
            self.nop(1)
            A("v_add_f32 v9, 1.0, v9")
            A("v_rcp_f32 v9, v9")
            self.nop(1)
            A("v_mul_f32 v8, v8, v9")
            self.bfr(224, 8)
        if not self.gplate or self.rwarm:
            self.lds_wait("L_h_trigA", 227, L_FLAG, "s_cmp_ge_u32", 1 if not self.gplate else 12, 100)
        A("buffer_load_ushort v225, v229, s[8:11], s53 offen")
        if self.rwarm:
            fl = self.rwarm.strip("_")
            for i in range(4):
                A(f"buffer_load_dwordx4 v[{128+4*i}:{131+4*i}], v230, s[48:51], s52 offen offset:{640*i} {fl}")
                A(f"buffer_load_dwordx4 v[{144+4*i}:{147+4*i}], v230, s[48:51], s56 offen offset:{640*i} {fl}")
        if not self.gplate:
            self.tpoll("L_c_gp", gpl, range(9, 24, 2), sleep=100)
            gcalc()
        A("s_waitcnt vmcnt(0)")
        A("v_lshlrev_b32 v225, 16, v225")
        A("L_h_nocons:")
        self.stamp(7)
        A("v_bfe_u32 v6, v0, 3, 2                ; w")
        A("v_and_b32 v7, 7, v0                   ; t")
        A("v_lshlrev_b32 v232, 9, v6")
        A("v_lshl_add_u32 v232, v7, 4, v232")
        A("s_lshl_b32 s7, s40, 7")
        A("v_add_u32 v232, s7, v232")
        A("v_lshlrev_b32 v233, 2, v6             ; w*4")
        A("v_lshl_add_u32 v234, v7, 1, v1")
        A("v_lshlrev_b32 v234, 4, v234")
        A("s_lshl_b32 s58, s6, 10")
        A("s_lshl_b32 s7, s40, 8")
        A("s_add_u32 s58, s58, s7")
        A("s_lshl_b32 s43, s4, 13")
        A("s_add_u32 s43, s43, s7")
        A("v_lshrrev_b32 v6, 2, v2               ; a")
        A("v_and_b32 v7, 3, v2                   ; b")
        A("v_lshlrev_b32 v235, 11, v6")
        A("v_lshl_add_u32 v235, v1, 6, v235")
        A("v_lshl_add_u32 v235, v7, 4, v235      ; a*2048 + s*64 + b*16")
        A("v_lshlrev_b32 v236, 5, v6             ; a*32")
        A("s_lshl_b32 s41, s4, 7")
        A(f"s_add_u32 s41, s41, {WS_ML}")
        A("v_lshl_add_u32 v237, v2, 1, v1")
        A("s_mul_i32 s7, s40, 320")
        A("v_lshl_add_u32 v237, v237, 4, s7")
        A("v_lshlrev_b32 v238, 3, v0             ; lane*8")
        A(f"s_mul_i32 s59, s5, {32*640}")
        A("s_mul_i32 s7, s4, 640")
        A("s_add_u32 s59, s59, s7")
        A(f"s_add_u32 s59, s59, {WS_U}")
        A("v_lshlrev_b32 v4, 2, v0")
        if self.warm:
            for r in range(4):
                A(f"v_not_b32 v{40+r}, s54")
            if self.warm & 1:
                A("s_cmp_eq_u32 s40, 0")
                A("s_cbranch_scc0 L_h_nowarm")
                A("s_mov_b32 exec_hi, 0xff")
                A("buffer_store_dwordx4 v[40:43], v228, s[48:51], s59 offen sc1")
                A("s_mov_b64 exec, -1")
                A("L_h_nowarm:")
            A("s_waitcnt vmcnt(0)")
        A("s_mov_b32 s47, 0")
        A("L_h_trigB:")
        A(f"ds_read_b128 v[8:11], v227 offset:{L_FLAG}")
        A("s_waitcnt lgkmcnt(0)")
        A("v_min_u32 v8, v8, v9")
        A("v_min3_u32 v8, v8, v10, v11")
        A("s_add_u32 s47, s47, 1")
        A("v_readfirstlane_b32 s42, v8")
        A("s_cmp_ge_u32 s42, 16")
        A("s_cbranch_scc1 L_h_trigB_ok")
        A("s_sleep 6")
        A("s_cmp_lt_u32 s47, 0x100000")
        A("s_cbranch_scc1 L_h_trigB")
        A("L_h_trigB_ok:")
        A(f"ds_read_b128 v[8:11], v227 offset:{L_MW}")
        A(f"ds_read_b32 v19, v233 offset:{L_MW}")
        for w in range(4):
            A(f"ds_read_b32 v{12+w}, v4 offset:{L_LL+256*w}")
        A("s_waitcnt lgkmcnt(0)")
        A("v_max3_f32 v20, v8, v9, v10")
        A("v_max_f32 v20, v20, v11")
        A("v_sub_f32 v19, v19, v20")
        A(f"v_mul_f32 v19, {LOG2E:#x}, v19")
        A("v_exp_f32 v19, v19")
        A("s_cmp_eq_u32 s40, 1")
        A("s_cbranch_scc0 L_h_noml")
        for w in range(4):
            A(f"v_sub_f32 v{8+w}, v{8+w}, v20")
            A(f"v_mul_f32 v{8+w}, {LOG2E:#x}, v{8+w}")
            A(f"v_exp_f32 v{8+w}, v{8+w}")
        A("v_mul_f32 v22, v8, v12")
        for w in range(1, 4):
            A(f"v_fmac_f32 v22, v{8+w}, v{12+w}")
        self.wave_reduce("v_add_f32", 22, 21)
        A("v_mov_b32 v21, s54")
        A("v_mov_b32 v23, s54")
        A("s_lshl_b32 s7, s6, 4")
        A(f"s_add_u32 s7, s7, {WS_ML}")
        A("s_mov_b64 exec, 1")
        self.nearfar("ml", "buffer_store_dwordx4 v[20:23], off, s[48:51], s7")
        A("s_mov_b64 exec, -1")
        A("L_h_noml:")
        self.stamp(8)
        A("v_mov_b32 v41, s54")
        A("v_mov_b32 v43, s54")
        self.stamp(9)
        A("s_barrier")
        self.stamp(10)
        A(f"ds_read_b128 v[8:11], v232 offset:{L_O}")
        mll = [f"buffer_load_dwordx4 v[{24+4*x}:{27+4*x}], v236, s[48:51], s41 offen offset:{16*x} sc1" for x in range(2)]
        ol = [f"buffer_load_dwordx4 v[{32+4*x}:{35+4*x}], v235, s[48:51], s43 offen offset:{1024*x} sc1" for x in range(2)]
        for t in mll:
            A(t)
        A("s_waitcnt lgkmcnt(0)")
        for r in range(4):
            A(f"v_mul_f32 v{8+r}, v19, v{8+r}")
        for r in range(4):
            A(f"v_add_f32_dpp v{8+r}, v{8+r}, v{8+r} row_ror:8 {DPPF}")
        A("s_mov_b32 s44, 0x00ff00ff")
        A("s_mov_b32 s45, 0")
        A("v_permlane16_swap_b32 v8, v10")
        A("v_permlane16_swap_b32 v9, v11")
        self.nop(1)
        A("v_add_f32 v40, v8, v10")
        A("v_add_f32 v42, v9, v11")
        A("s_mov_b64 exec, s[44:45]")
        self.nearfar("o", "buffer_store_dwordx4 v[40:43], v234, s[48:51], s58 offen")
        A("s_mov_b64 exec, -1")
        for t in ol:
            A(t)
        def weights():
            A("s_waitcnt vmcnt(3)")
            self.tagcheck([25, 27, 29, 31])
            A("v_max_f32 v18, v24, v28")
            A("s_cbranch_scc1 L_h_mlwait")
            A("L_h_mlok:")
            for r in (4, 8):
                self.nop(2 if r > 4 else 1)
                A(f"v_max_f32_dpp v18, v18, v18 row_ror:{r} {DPPF}")
            A("v_sub_f32 v16, v24, v18")
            A("v_sub_f32 v17, v28, v18")
            A(f"v_mul_f32 v16, {LOG2E:#x}, v16")
            A(f"v_mul_f32 v17, {LOG2E:#x}, v17")
            A("v_exp_f32 v16, v16")
            A("v_exp_f32 v17, v17")
            A("v_mul_f32 v18, v26, v16")
            A("v_fmac_f32 v18, v30, v17")
            for r in (4, 8):
                self.nop(2)
                A(f"v_add_f32_dpp v18, v18, v18 row_ror:{r} {DPPF}")
            A("v_rcp_f32 v18, v18")
            A("s_mov_b32 s47, 0")
            A("v_mul_f32 v16, v16, v18")
            A("v_mul_f32 v17, v17, v18")
        self.tpoll("L_h_o", ol, [33, 35, 37, 39], sleep=self.osleep, first=weights, issued=True)
        self.stamp(11)
        if self.gplate:
            A("s_cmp_eq_u32 s40, 1")
            A("s_cbranch_scc1 L_h_gpst")
            A("L_h_gpst_done:")
        A("v_mul_f32 v32, v16, v32")
        A("v_mul_f32 v34, v16, v34")
        A("v_fmac_f32 v32, v17, v36")
        A("v_fmac_f32 v34, v17, v38")
        for r in (4, 8):
            self.nop(1)
            A(f"v_add_f32_dpp v32, v32, v32 row_ror:{r} {DPPF}")
            A(f"v_add_f32_dpp v34, v34, v34 row_ror:{r} {DPPF}")
        A("v_cvt_pk_bf16_f32 v32, v32, v34")
        A("s_mov_b32 s44, 0xffff0000"); A("s_mov_b32 s45, 0xffff0000")
        for r in range(4):
            A(f"v_mov_b32_dpp v{28+r}, v32 quad_perm:[{r},{r},{r},{r}] {DPPF}")
        self.nop(2)
        B = lambda t: W + (16 if t & 1 else 0) + 4 * (t // 2)
        for t in (0, 4, 1, 5, 2, 6, 3, 7):
            self.mfma(96 + 4 * t, 28, B(t), None)
        A("s_mov_b32 exec_lo, 0x03ff03ff")
        A("s_mov_b32 exec_hi, 0")
        for t in range(4):
            if t > 0:
                self.nop(1)
            A(f"v_cndmask_b32 v{20+t}, v{96+4*t}, v{112+4*t}, s[44:45]")
        A(f"ds_write_b128 v237, v[20:23] offset:{L_X}")
        A("s_mov_b64 exec, -1")
        A("s_waitcnt lgkmcnt(0)")
        A("s_barrier")
        A("s_cmp_eq_u32 s40, 0")
        A("s_cbranch_scc0 L_h_nou")
        for k in range(4):
            A(f"ds_read_b64 v[{8+2*k}:{9+2*k}], v238 offset:{L_X+320*k}")
        A("s_mov_b32 exec_lo, -1")
        A("s_mov_b32 exec_hi, 0xff")
        A("s_waitcnt lgkmcnt(2)")
        A("v_add_f32 v8, v8, v10")
        A("v_add_f32 v9, v9, v11")
        A("s_waitcnt lgkmcnt(0)")
        A("v_add_f32 v12, v12, v14")
        A("v_add_f32 v13, v13, v15")
        A("v_add_f32 v40, v8, v12")
        A("v_add_f32 v42, v9, v13")
        A(f"buffer_store_dwordx4 v[40:43], v228, s[48:51], s59 offen {self.uflag}")
        A("L_h_nou:")
        self.stamp(12)
        A("s_cmp_eq_u32 s55, 1")
        A("s_cbranch_scc0 L_h_end")
        NP = self.npipe
        SZ = 32 if self.gplate else 16
        NL = SZ // 4
        def uload(p):
            for i in range(4):
                A(f"buffer_load_dwordx4 v[{128+SZ*p+4*i}:{131+SZ*p+4*i}], v230, s[48:51], s52 offen offset:{640*i} sc1")
            if self.gplate:
                for i in range(4):
                    A(f"buffer_load_dwordx4 v[{144+SZ*p+4*i}:{147+SZ*p+4*i}], v230, s[48:51], s56 offen offset:{640*i} sc1")
        A("s_mov_b32 s47, 0")
        for p in range(NP):
            uload(p)
            if p < NP - 1 and self.gap:
                A(f"s_sleep {self.gap}")
        A("L_c_u:")
        for p in range(NP):
            A(f"s_waitcnt vmcnt({NL*(NP-1)})")
            self.tagcheck(range(129 + SZ * p, 128 + SZ * (p + 1), 2))
            A(f"s_cbranch_scc0 L_c_u{p}")
            if NP == 1 and self.usleep:
                A(f"s_sleep {self.usleep}")
            uload(p)
        A("s_cmp_lt_u32 s47, 0x40000")
        A("s_cbranch_scc1 L_c_u")
        for p in range(NP - 1, -1, -1):
            A(f"L_c_u{p}:")
            self.stamp(13)
            R = 128 + SZ * p
            if self.gplate:
                G = R + 16
                for X in (G, R):
                    A(f"v_add_f32 v{X}, v{X}, v{X+4}")
                    A(f"v_add_f32 v{X+2}, v{X+2}, v{X+6}")
                    A(f"v_add_f32 v{X+8}, v{X+8}, v{X+12}")
                    A(f"v_add_f32 v{X+10}, v{X+10}, v{X+14}")
                    A(f"v_add_f32 v{X}, v{X}, v{X+8}")
                    A(f"v_add_f32 v{X+2}, v{X+2}, v{X+10}")
                A(f"v_permlane32_swap_b32 v{G}, v{G+2}")
                self.nop(1)
                A(f"v_permlane32_swap_b32 v{R}, v{R+2}")
                A(f"v_add_f32 v{G}, v{G}, v{G+2}")
                A(f"v_add_f32 v{R}, v{R}, v{R+2}")
                self.nop(2)
                A(f"v_permlane16_swap_b32 v{G}, v{R}")
                self.nop(1)
                A(f"v_add_f32 v{G}, v{G}, v{R}")
                self.nop(2)
                A(f"v_add_f32_dpp v{G}, v{G}, v{G} row_ror:8 {DPPF}")
                self.bfr(8, G)
                A(f"v_mul_f32 v9, {LOG2E | 0x80000000:#x}, v8")
                A("v_mov_b32 v24, v8")
                A("v_exp_f32 v9, v9")
                A("v_mov_b32 v25, v8")
                A("v_add_f32 v9, 1.0, v9")
                A("v_rcp_f32 v9, v9")
                A("v_permlane16_swap_b32 v25, v24")
                A("v_mul_f32 v8, v8, v9")
                self.bfr(224, 8)
            else:
                self.colsum(R)
                self.bfr(24, R)
            A("v_mul_f32 v24, v24, v224")
            self.bfr(24, 24)
            A("v_add_f32 v24, v24, v225")
            A("v_cvt_pk_bf16_f32 v24, v24, v24")
            A("s_mov_b32 exec_lo, 0xff")
            A("s_mov_b32 exec_hi, 0xff")
            A("buffer_store_short v24, v229, s[60:63], s53 offen")
            if p > 0:
                A("s_branch L_c_fin")
        A("L_c_fin:")
        A(f"s_cmp_eq_u32 s2, {CONS0}")
        A("s_cbranch_scc0 L_h_end")
        A(f"s_mov_b32 s47, {WS_E:#x}")
        A("s_mov_b64 exec, 1")
        A("buffer_store_dword v41, off, s[48:51], s47 sc1")
        A("L_h_end:")
        self.stamp(14)
        if self.diag:
            for _ in range(3):
                A("s_sleep 127")
        self.flush_stamps(15)
        A("s_endpgm")
        if self.gplate:
            A("L_h_gpst:")
            A("s_mov_b32 exec_lo, 0x03ff03ff")
            A("s_mov_b32 exec_hi, 0x03ff03ff")
            A("buffer_store_dwordx4 v[240:243], v231, s[48:51], s56 offen sc1")
            A("s_mov_b64 exec, -1")
            A("s_branch L_h_gpst_done")
        A("L_h_mlwait:")
        self.tpoll("L_h_ml", mll, [25, 27, 29, 31], sleep=self.mlsleep)
        for t in ol:
            A(t)
        A("v_max_f32 v18, v24, v28")
        A("s_branch L_h_mlok")
        self.ffn()
        if self.fb:
            self.pacer()

    def gaddr(self):
        A = self.A
        A("v_lshrrev_b32 v6, 1, v1")
        A("v_and_b32 v7, 1, v1")
        A("v_lshl_add_u32 v6, v7, 1, v6")
        A("v_lshl_add_u32 v6, v2, 2, v6")
        A("v_lshlrev_b32 v231, 4, v6")

    def gettag(self):
        A = self.A
        A("v_mov_b32 v6, 0")
        A(f"ds_read_b64 v[6:7], v6 offset:{L_TAG}")
        A("s_waitcnt lgkmcnt(0)")
        A("v_readfirstlane_b32 s54, v6")
        A("v_readfirstlane_b32 s57, v7")

    def ffn(self):
        A = self.A
        W = self.W
        A("L_ffn:")
        self.gaddr()
        A(f"s_mul_i32 s56, s5, {32*640}")
        A("s_mul_i32 s47, s4, 640")
        A("s_add_u32 s56, s56, s47")
        A(f"s_add_u32 s56, s56, {WS_GP}")
        A(f"s_cmp_lt_u32 s4, {NFH}")
        A("s_cbranch_scc1 L_f_go")
        A("s_barrier")
        self.gettag()
        for r in range(4):
            A(f"v_mov_b32 v{28+r}, 0")
        A("s_branch L_f_pub")
        A("L_f_go:")
        self.x_issue()
        A("s_mov_b32 s44, 0xff00ff00"); A("s_mov_b32 s45, 0xff00ff00")
        A("v_mov_b32 v38, s28"); A("v_mov_b32 v39, s29")
        A("v_mov_b32 v8, s30"); A("v_mov_b32 v9, s31")
        A("v_cndmask_b32 v38, v38, v8, s[44:45]")
        A("v_cndmask_b32 v39, v39, v9, s[44:45]")
        A("v_and_b32 v8, 7, v0")
        A("v_lshlrev_b32 v8, 4, v8")
        A("v_mul_u32_u24 v9, 3456, v1")
        A("v_add_u32 v8, v8, v9")
        A(f"s_mul_i32 s47, s5, {80*3456}")
        A("s_lshl_b32 s41, s4, 7")
        A("s_add_u32 s47, s47, s41")
        A("v_add_u32 v8, s47, v8")
        A("v_mov_b32 v9, 0")
        A("v_lshl_add_u64 v[38:39], v[38:39], 0, v[8:9]")
        A("s_mov_b32 s42, 13824"); A("s_mov_b32 s43, 0")
        for i in range(20):
            sl = W + 4 * i
            A(f"global_load_dwordx4 v[{sl}:{sl+3}], v[38:39], off {self.wflag}")
            A("v_lshl_add_u64 v[38:39], v[38:39], 0, s[42:43]")
        self.srd(12, 32, 1728 * 1280)
        A("v_mul_u32_u24 v36, 1280, v1")
        A("v_lshl_add_u32 v36, v2, 4, v36")
        A("v_mov_b32 v37, 0x7fffffff")
        A("s_mov_b32 s44, 0x03ff03ff"); A("s_mov_b32 s45, 0x03ff03ff")
        A("v_cndmask_b32 v36, v37, v36, s[44:45]")
        A(f"s_mul_i32 s46, s4, {64*1280}")
        A("s_add_u32 s46, s46, s7")
        for n in range(16):
            sl = 144 + 4 * n
            A(f"buffer_load_dwordx4 v[{sl}:{sl+3}], v36, s[12:15], s46 offen {self.wflag}")
            A(f"s_add_u32 s46, s46, {4*1280}")
        A("s_barrier")
        self.gettag()
        self.masks(12, 6, 44)
        A("s_waitcnt vmcnt(36)")
        self.ln()
        for n in range(20):
            self.abuild(24, 21 + n // 16, 12, n % 16)
            A(f"s_waitcnt vmcnt({35-n})")
            self.nop(1)
            self.mfma(28, 24, W + 4 * n, None if n == 0 else 28)
        A("s_lshl_b32 s42, s6, 10")
        A(f"s_add_u32 s42, s42, {WS_FX}")
        A("s_and_b32 s41, s42, 0xffffe000")
        self.nop(2)
        self.pack(54)
        self.nearfar("fx", "buffer_store_dwordx4 v[24:27], v231, s[48:51], s42 offen")
        A("s_waitcnt vmcnt(0)")
        A("s_sleep 16")
        R = 64
        self.gather8("L_f_x", R, 16, 0)
        self.bfr(R, R)
        self.bfr(R + 2, R + 2)
        A(f"v_mov_b32 v{R+1}, v{R}")
        A(f"v_mov_b32 v{R+3}, v{R+2}")
        self.nop(2)
        A(f"v_permlane32_swap_b32 v{R}, v{R+1}")
        A(f"v_permlane32_swap_b32 v{R+2}, v{R+3}")
        self.nop(1)
        A(f"v_max_f32 v{R}, 0, v{R}")
        A(f"v_max_f32 v{R+2}, 0, v{R+2}")
        A(f"v_mul_f32 v{R}, v{R}, v{R+1}")
        A(f"v_mul_f32 v{R+2}, v{R+2}, v{R+3}")
        A(f"v_cvt_pk_bf16_f32 v{R}, v{R}, v{R}")
        A(f"v_cvt_pk_bf16_f32 v{R+1}, v{R+2}, v{R+2}")
        A("v_lshlrev_b32 v6, 3, v0")
        A("v_and_b32 v6, 0xff, v6                ; (lane&31)*8")
        A(f"ds_write_b64 v6, v[{R}:{R+1}] offset:{L_H}")
        A("v_lshlrev_b32 v6, 1, v4               ; (4j+s)*4")
        A(f"ds_read_b32 v21, v6 offset:{L_H}")
        A("s_waitcnt lgkmcnt(0)")
        for n in range(16):
            self.abuild(24, 21, 12, n)
            self.nop(2)
            self.mfma(28, 24, 144 + 4 * n, None if n == 0 else 28)
        self.nop(4)
        A("L_f_pub:")
        self.pack(54)
        if self.gplate:
            for r in range(4):
                A(f"v_mov_b32 v{240+r}, v{24+r}")
            A("s_branch L_h_shadow")
            return
        A("s_mov_b32 exec_lo, 0x03ff03ff")
        A("s_mov_b32 exec_hi, 0x03ff03ff")
        A("buffer_store_dwordx4 v[24:27], v231, s[48:51], s56 offen sc1")
        A("s_mov_b64 exec, -1")
        A("s_branch L_h_shadow")


if __name__ == "__main__":
    out = sys.argv[1]
    kw = eval("dict(" + (sys.argv[2] if len(sys.argv) > 2 else "") + ")")
    open(out, "w").write(Gen(**kw).gen())
```

```python
import sys
from gen_kernel import NAME, LOG2E, SCALE, DPPF
from gen6 import Gen as G6

WS_O = 0
WS_ML = 0x40000
WS_U = 0x50000
WS_GP = 0x80000
WS_TS = 0xF8000
WS_E = 0xFC000
WS_QN = 0x200000
WS_QF = 0x240000
WS_FX = 0x280000
WS_SIZE = 0x300000
L_Q = 16640
L_MW = L_Q + 256
L_FLAG = L_MW + 16
L_TAG = L_FLAG + 16
L_PROG = L_TAG + 8
L_ANCH = L_PROG + 8
L_LL = L_ANCH + 16
L_O = L_LL + 1024
L_X = L_O + 2048
L_H = L_X + 1280
L_END = L_H + 512
NFH = 27
CONS0 = 216
import gen6
gen6.L_ANCH, gen6.L_PROG = L_ANCH, L_PROG


class Gen(G6):
    def __init__(self, npipe=3, gap=2, warm=0, uflag='sc1', gplate=False, rwarm='', lflag='sc1', xl='sc1 nt', perm=0, ol='sc1 nt', nst='', ewarm=3, comp=False, lay=True, wolate=6, bsleep=3, pad=True, **kw):
        kw.setdefault("N1", 24); kw.setdefault("N0", 30); kw.setdefault("xfast", 6); kw.setdefault("flagstep", 8); kw.setdefault("DL", 4); kw.setdefault("theta2", -70)
        super().__init__(**kw)
        self.npipe, self.gap, self.warm, self.uflag = npipe, gap, warm, uflag
        self.gplate, self.rwarm, self.lflag, self.xl, self.perm = gplate, rwarm, lflag, xl, perm
        self.ol, self.nst, self.ewarm = ol, nst, ewarm
        self.comp = comp
        self.lay = lay
        self.pad = pad
        self.steady = False
        self.wolate, self.bsleep = wolate, bsleep
        if lay:
            self.NB = self.NS

    def gen(self):
        txt = super().gen()
        if self.pad:
            a = txt.index("L_streamer:\n"); b = txt.index("  s_branch L_post\n") + len("  s_branch L_post\n")
            blk = txt[a:b]
            txt = txt[:a] + txt[b:]
            f = txt.index("L_ffn:\n")
            txt = txt[:f] + blk + txt[f:]
        if self.perm == 1:
            txt = txt.replace("L_go:\n", "L_go:\n  s_lshl_b32 s4, s2, 3\n  s_lshr_b32 s2, s2, 5\n  s_or_b32 s2, s2, s4\n  s_and_b32 s2, s2, 255\n", 1)
        if self.perm == 2:
            txt = txt.replace("L_go:\n", "L_go:\n  s_lshr_b32 s4, s2, 3\n  s_and_b32 s4, s4, 1\n  s_xor_b32 s2, s2, s4\n", 1)
        return txt.replace(f"lds={gen6.L_END}", f"lds={L_END}")

    def setdeep(self, sreg, fb=False, base=0):
        A = self.A
        if not (fb and self.fb) or self.LA == self.D:
            return super().setdeep(sreg, fb, base)
        st = self.tau / 16.0
        A("s_waitcnt lgkmcnt(0)")
        A("v_readfirstlane_b32 s66, v59")
        A(f"s_add_u32 s67, s15, {base}")
        A(f"s_mul_i32 s68, s67, {self.tau}")
        A("s_sub_u32 s68, s64, s68")
        if self.comp:
            if self.DL:
                A(f"s_mul_i32 s69, s69, {round((self.D - self.DL) * st)}")
                A("s_sub_u32 s68, s68, s69")
            A(f"s_andn2_b32 s69, {round((self.LA - self.D) * st)}, vcc_lo")
            A("s_sub_u32 s68, s68, s69")
        A("v_mov_b32 v58, s67")
        A("v_mov_b32 v59, s68")
        A(f"ds_write_b64 v57, v[58:59] offset:{L_PROG}")
        A("s_sub_u32 s68, s68, s66")
        if self.DL:
            A(f"s_add_u32 s69, s68, 2000")
            A(f"s_cmp_lt_u32 s69, {2000 + self.theta2}")
            A("s_cselect_b32 s69, 1, 0")
        else:
            A("s_mov_b32 s69, 0")
        A(f"s_cmp_gt_i32 s68, {self.theta}")
        A("s_cselect_b64 vcc, -1, 0")
        if self.kmask or self.vmask:
            A(f"s_bitcmp1_b32 s{sreg}, s15")
            A("s_cselect_b64 vcc, -1, vcc")
        if self.diag:
            A("s_mov_b32 m0, s67")
            A("v_writelane_b32 v55, s64, m0")
            A("s_and_b32 s66, vcc_lo, 2")
            A("s_or_b32 s66, s66, s69")
            A("v_writelane_b32 v54, s66, m0")
        if self.DL:
            A("s_cmp_eq_u32 s69, 0")

    def dwait(self):
        A = self.A
        if not self.steady:
            A(f"s_waitcnt vmcnt({self.D-1})")
            return
        self.uid += 1
        A(f"s_waitcnt vmcnt({self.LA-1})")
        A(f"s_cbranch_vccnz L_dw{self.uid}")
        A(f"s_waitcnt vmcnt({self.D-1})")
        if self.DL:
            A(f"s_cbranch_scc1 L_dw{self.uid}")
            A(f"s_waitcnt vmcnt({self.DL-1})")
        A(f"L_dw{self.uid}:")

    def sload(self, n, switch=None, steady=False):
        super().sload(n, switch, steady)
        if steady and n % 8 == 0 and self.DL:
            self.A("s_cmp_eq_u32 s69, 0")

    def setup1(self):
        A = self.A
        if self.diag:
            self.srd(48, 38, WS_SIZE)
        A("v_and_b32 v6, 3, v2")
        A("v_lshl_add_u32 v6, v1, 2, v6          ; rho*4 + (j&3)")
        A("v_lshlrev_b32 v53, 4, v6")
        A("v_and_b32 v6, 1, v1")
        A("v_lshl_add_u32 v6, v2, 1, v6")
        A("s_lshl_b32 s7, s3, 9")
        A("v_lshl_add_u32 v60, v6, 4, s7")
        self.masks(12, 6, 40)
        A("s_mov_b32 s40, 0xaaaaaaaa"); A("s_mov_b32 s41, 0xaaaaaaaa")
        A("s_mov_b32 s42, 0xcccccccc"); A("s_mov_b32 s43, 0xcccccccc")
        A(f"s_mov_b32 s57, {self.kmask:#x}"); A(f"s_mov_b32 s58, {self.vmask:#x}")

    def streamer_issue(self):
        if self.lay:
            mark = len(self.L)
            super().streamer_issue()
            body = self.L[mark:]
            del self.L[mark:]
            k = [i for i, t in enumerate(body) if "lgkmcnt(0)" in t][0]
            self.L += body[:k]
            d = self.diag
            self.diag = False
            self.setup1()
            self.diag = d
            self.L += body[k:]
            if d:
                self.srd(48, 38, WS_SIZE)
        else:
            super().streamer_issue()

    def streamer(self):
        A = self.A
        D, LA, N0, Dp = self.D, self.LA, self.N0, self.Dp
        if self.lay and not self.pad:
            self.L.append(".p2align 12")
        A("L_streamer:")
        if not self.lay:
            self.setup1()
        A("s_mov_b32 s69, 0")
        A("s_lshl_b32 s7, s3, 2")
        A("v_mov_b32 v61, s7                     ; w*4")
        A("v_mov_b32 v6, 0")
        A(f"ds_write_b32 v61, v6 offset:{L_FLAG}")
        if self.fb:
            A("s_memrealtime s[64:65]")
            A("v_mov_b32 v56, 0")
            A("v_mov_b32 v7, 0")
            A(f"ds_write_b64 v56, v[6:7] offset:{L_PROG}")
            A("s_cmp_eq_u32 s3, 1")
            A(f"s_cselect_b32 s7, 0, {L_H - L_PROG + 256}")
            A("v_mov_b32 v57, s7")
            A("s_waitcnt lgkmcnt(0)")
            A("s_add_u32 s64, s64, 0x100000")
            A("v_mov_b32 v7, s64")
            A(f"ds_write_b32 v56, v7 offset:{L_ANCH}")
        A("s_lshl_b32 s7, s3, 8")
        A("v_lshl_add_u32 v62, v0, 2, s7")
        A("s_lshl_b32 s7, s3, 12")
        A("v_and_b32 v8, 60, v0")
        A("v_add_u32 v8, s7, v8")
        A("v_mov_b32 v5, 0xff800000")
        A("s_mov_b32 s15, 0")
        N1, Dp2 = self.N1, self.Dp2
        def pf(n):
            d = Dp if n < self.n1 else Dp2
            A(f"s_waitcnt vmcnt({d-1})")
            if (n - Dp) % 4 == 0 and (n - Dp) // 4 < 8:
                self.stamp(7 + (n - Dp) // 4)
            self.sload(n)
        for n in range(Dp, N1):
            pf(n)
        if self.pad:
            A("s_branch L_post")
            self.L.append(".p2align 12")
            A("L_pad:")
            A("s_branch L_pad_ret")
            A("L_post:")
        A("s_waitcnt lgkmcnt(0)")
        self.stamp(1)
        A("s_barrier")
        self.stamp(2)
        A(f"ds_read_b128 v[44:47], v53 offset:{L_Q}")
        rest = list(range(N1, N0))
        if rest:
            pf(rest.pop(0))
        A("s_waitcnt lgkmcnt(0)")
        for g in range(4):
            pat = (0xf << (4 * g)) * 0x00010001
            A(f"s_mov_b32 s44, {pat:#x}"); A(f"s_mov_b32 s45, {pat:#x}")
            for r in range(4):
                A(f"v_cndmask_b32 v{16+4*g+r}, 0, v{44+r}, s[44:45]")
            if rest:
                pf(rest.pop(0))
        for n in rest:
            pf(n)
        self.nop(2)
        self.stamp(3)
        NB = self.NB
        issued, landed = N0, N0 - Dp2
        last_mfma = {}
        A("s_mov_b64 vcc, 0")
        for n in range(NB):
            G, g = n // 4, n % 4
            if n % 16 == 0 and self.diag and self.fb:
                A("s_memrealtime s[64:65]")
                A("s_waitcnt lgkmcnt(0)")
                A(f"v_writelane_b32 v55, s64, {n//16}")
                A(f"v_writelane_b32 v54, 0, {n//16}")
            want = issued - n <= LA or (n >= 1 and (n <= D or n % self.cu == 0))
            if want and issued < NB + LA:
                prev = issued - self.NS if issued < self.NS + 16 else issued - 16
                if prev < n:
                    self.dwait()
                    landed = max(landed, issued - (LA - 1))
                    self.sload(issued)
                    issued += 1
            if landed <= n:
                A(f"s_waitcnt vmcnt({issued - n - 1})")
                landed = n + 1
            dreg = 32 + 4 * (G & 1)
            self.mfma(dreg, 16 + 4 * g, self.slot(n), None if g == 0 else dreg)
            last_mfma[G] = len(self.L)
            if g == 2 and G > 0:
                since = sum(1 for t in self.L[last_mfma[G - 1]:] if not t.endswith(":") and "vmcnt" not in t and "cbranch" not in t and "s69" not in t)
                self.kstep_post(n, since)
            if n % 16 == 15:
                A("v_add_u32 v8, 256, v8")
        assert issued == NB + LA, (issued, NB + LA)
        A(f"s_mov_b32 s15, {NB//16}")
        self.fb_sample()
        self.steady = True
        A("L_kloop:")
        self.setdeep(57, True, 0)
        for n in range(16):
            G, g = n // 4, n % 4
            self.dwait()
            self.sload(n + LA, "KV", True)
            dreg = 32 + 4 * (G & 1)
            self.mfma(dreg, 16 + 4 * g, self.slot(n, True), None if g == 0 else dreg)
            self.kstep_post(n, 9)
            if n == 14:
                self.fb_sample()
        A("v_add_u32 v8, 256, v8")
        A("s_add_u32 s15, s15, 1")
        A("s_cmp_lt_u32 s15, 16")
        A("s_cbranch_scc1 L_kloop")
        self.nop(6)
        self.kpost(36, 0)
        self.stamp(4)
        A("s_lshl_b32 s7, s3, 12")
        A("v_lshl_add_u32 v8, v2, 2, v1          ; 4j+s")
        A("v_lshlrev_b32 v8, 2, v8")
        A("v_add_u32 v8, s7, v8")
        A("ds_read_b32 v11, v8 offset:64")
        self.wave_reduce("v_max_f32", 5, 6, rors=(4, 8))
        self.bfr(9, 5)
        A(f"v_mul_f32 v9, {SCALE:#x}, v9")
        self.bfr(9, 9)
        A(f"ds_write_b32 v61, v9 offset:{L_MW}")
        A("v_mov_b32 v5, 0                       ; l")
        A("v_mov_b32 v63, 0")
        for r in range(4):
            A(f"v_mov_b32 v{40+r}, 0")
        A("s_mov_b32 s15, 0")
        A("L_vloop:")
        self.setdeep(58, True, 16)
        A("s_waitcnt lgkmcnt(0)")
        self.pcalc()
        for n in range(16):
            self.abuild(16, 10, 12, n)
            self.dwait()
            self.sload(n + LA, "END", True)
            self.mfma(40, 16, self.slot(n, True), 40)
            if n == 14:
                self.fb_sample()
            if n == self.flagstep:
                A("v_add_u32 v63, 1, v63")
                A(f"ds_write_b32 v62, v5 offset:{L_LL}")
                A(f"ds_write_b32 v61, v63 offset:{L_FLAG}")
        A("s_add_u32 s15, s15, 1")
        A("s_cmp_lt_u32 s15, 16")
        A("s_cbranch_scc1 L_vloop")
        self.stamp(5)
        self.exec_lo()
        self.nop(3)
        A(f"ds_write_b128 v60, v[40:43] offset:{L_O}")
        A("s_waitcnt lgkmcnt(0)")
        A("s_barrier")
        self.stamp(6)
        if self.diag:
            A("s_barrier")
            for _ in range(3):
                A("s_sleep 127")
        if self.diag and self.fb:
            A("s_lshl_b32 s7, s2, 2"); A("s_add_u32 s7, s7, s3"); A("s_lshl_b32 s7, s7, 8"); A("s_add_u32 s7, s7, 0x140000")
            A("v_lshlrev_b32 v6, 2, v0")
            A("buffer_store_dword v55, v6, s[48:51], s7 offen")
            A("buffer_store_dword v54, v6, s[48:51], s7 offen offset:128")
        self.flush_stamps(15)
        A("s_endpgm")

    def nearfar(self, tag, store):
        A = self.A
        if self.fast:
            A("s_cmp_eq_u32 s57, 0")
            A(f"s_cbranch_scc0 L_{tag}_far")
            A(store + " " + self.nst)
            A(f"s_branch L_{tag}_fin")
            A(f"L_{tag}_far:")
        A(store + " sc1")
        A(f"L_{tag}_fin:")

    def tagcheck(self, regs, t0=3, t1=7):
        A = self.A
        r = list(regs)
        if len(r) == 2:
            A(f"v_cmp_ne_u32 vcc, s54, v{r[0]}")
            A(f"v_cmp_ne_u32 s[44:45], s54, v{r[1]}")
        else:
            A(f"v_and_b32 v{t0}, v{r[0]}, v{r[1]}")
            A(f"v_or_b32 v{t1}, v{r[0]}, v{r[1]}")
            for i in range(2, len(r), 2):
                A(f"v_bitop3_b32 v{t0}, v{t0}, v{r[i]}, v{r[i+1]} bitop3:0x80")
                A(f"v_or3_b32 v{t1}, v{t1}, v{r[i]}, v{r[i+1]}")
            A(f"v_cmp_ne_u32 vcc, s54, v{t0}")
            A(f"v_cmp_ne_u32 s[44:45], s54, v{t1}")
        A("s_add_u32 s47, s47, 1")
        A("s_or_b64 vcc, vcc, s[44:45]")

    def tpoll(self, label, loads, tags, sleep=0, first=None, issued=False):
        A = self.A
        A("s_mov_b32 s47, 0")
        if not issued:
            for t in loads:
                A(t)
        if first:
            first()
        A(f"{label}:")
        A("s_waitcnt vmcnt(0)")
        self.tagcheck(tags)
        A(f"s_cbranch_scc0 {label}_ok")
        A("s_mov_b64 exec, vcc")
        if sleep:
            A(f"s_sleep {sleep}")
        for t in loads:
            A(t)
        A("s_cmp_lt_u32 s47, 0x40000")
        A(f"s_cbranch_scc1 {label}")
        A(f"{label}_ok:")
        A("s_mov_b64 exec, -1")

    def pack(self, tagreg):
        A = self.A
        A("s_mov_b32 s44, 0"); A("s_mov_b32 s45, -1")
        A(f"v_mov_b32 v25, s{tagreg}")
        A(f"v_mov_b32 v27, s{tagreg}")
        A("v_cndmask_b32 v24, v28, v30, s[44:45]")
        A("v_cndmask_b32 v26, v29, v31, s[44:45]")

    def gather8(self, label, R, sleep, lowmask, pre=None):
        A = self.A
        A("s_mov_b32 s47, 0")
        A(f"{label}:")
        if pre:
            pre()
        A("s_add_u32 s43, s41, 4096")
        for c in range(8):
            A(f"buffer_load_dwordx4 v[{R+4*c}:{R+3+4*c}], v228, s[48:51], s{41 if c < 4 else 43} offen offset:{1024*(c%4)} {self.xl}")
        for c in range(8):
            A(f"s_waitcnt vmcnt({7-c})")
            if c == 0:
                A(f"v_and_b32 v6, v{R+1}, v{R+3}")
                A(f"v_or_b32 v7, v{R+1}, v{R+3}")
            else:
                A(f"v_bitop3_b32 v6, v6, v{R+4*c+1}, v{R+4*c+3} bitop3:0x80")
                A(f"v_or3_b32 v7, v7, v{R+4*c+1}, v{R+4*c+3}")
                A(f"v_add_f32 v{R}, v{R}, v{R+4*c}")
                A(f"v_add_f32 v{R+2}, v{R+2}, v{R+4*c+2}")
        A("v_xor_b32 v8, s54, v6")
        A("v_xor_b32 v9, s54, v7")
        A(f"v_cmp_lt_u32 vcc, {lowmask}, v8")
        A(f"v_cmp_lt_u32 s[44:45], {lowmask}, v9")
        A("s_add_u32 s47, s47, 1")
        A("s_or_b64 vcc, vcc, s[44:45]")
        A(f"s_cbranch_scc0 {label}_ok")
        if sleep:
            A(f"s_sleep {sleep}")
        A("s_cmp_lt_u32 s47, 0x40000")
        A(f"s_cbranch_scc1 {label}")
        A(f"{label}_ok:")

    def colsum(self, R):
        A = self.A
        A(f"v_add_f32 v{R}, v{R}, v{R+4}")
        A(f"v_add_f32 v{R+2}, v{R+2}, v{R+6}")
        A(f"v_add_f32 v{R+8}, v{R+8}, v{R+12}")
        A(f"v_add_f32 v{R+10}, v{R+10}, v{R+14}")
        A(f"v_add_f32 v{R}, v{R}, v{R+8}")
        A(f"v_add_f32 v{R+2}, v{R+2}, v{R+10}")
        self.nop(2)
        A(f"v_permlane32_swap_b32 v{R}, v{R+2}")
        self.nop(1)
        A(f"v_add_f32 v{R}, v{R}, v{R+2}")
        self.nop(1)
        A(f"v_mov_b32 v{R+2}, v{R}")
        self.nop(2)
        A(f"v_permlane16_swap_b32 v{R}, v{R+2}")
        self.nop(1)
        A(f"v_add_f32 v{R}, v{R}, v{R+2}")
        self.nop(2)
        A(f"v_add_f32_dpp v{R}, v{R}, v{R} row_ror:8 {DPPF}")

    def helper(self):
        A = self.A
        W = self.W
        A("L_helper:")
        A("s_sub_u32 s40, s3, 4                  ; hw")
        A("s_mul_i32 s7, s5, 160")
        A("v_lshl_add_u32 v4, v2, 2, v1          ; 4j+s")
        A("v_lshlrev_b32 v4, 1, v4")
        A("v_lshlrev_b32 v3, 2, v0               ; lane*4")
        A("v_lshlrev_b32 v228, 4, v0             ; lane*16")
        A("s_cmp_eq_u32 s40, 0")
        A("s_cbranch_scc0 L_h_noq")
        A("v_lshlrev_b32 v8, 13, v1")
        A("v_lshl_add_u32 v8, v2, 4, v8          ; s*8192 + j*16")
        A("v_add_u32 v9, 0x8000, v8")
        A("v_add_u32 v10, 0x10000, v8")
        A("v_add_u32 v11, 0x18000, v8")
        A(f"s_mul_i32 s42, s5, {80*8192}")
        A("s_lshl_b32 s43, s4, 8")
        A("s_add_u32 s42, s42, s43")
        A("s_waitcnt lgkmcnt(0)")
        A(f"s_load_dword s54, s[38:39], {WS_E:#x}")
        self.srd(8, 16, 1280)
        self.srd(12, 22, 640 * 8192)
        self.x_issue()
        for n in range(20):
            sl = W + 4 * n
            A(f"buffer_load_dwordx4 v[{sl}:{sl+3}], v{8+n%4}, s[12:15], s42 offen {self.wflag}")
            if n % 4 == 3 and n < 19:
                A("s_add_u32 s42, s42, 0x20000")
        self.stamp(1)
        self.srd(48, 38, WS_SIZE)
        self.masks(12, 6, 44)
        self.gaddr()
        A("s_lshl_b32 s42, s6, 10")
        A(f"s_add_u32 s42, s42, {WS_QN}")
        A("s_and_b32 s41, s42, 0xffffe000")
        A("s_waitcnt vmcnt(20)")
        self.stamp(2)
        self.ln()
        self.stamp(3)
        for n in range(20):
            self.abuild(24, 21 + n // 16, 12, n % 16)
            A(f"s_waitcnt vmcnt({19-n})")
            self.nop(1)
            self.mfma(28, 24, W + 4 * n, None if n == 0 else 28)
        A("s_waitcnt lgkmcnt(0)")
        self.mktag()
        A("s_getreg_b32 s47, hwreg(HW_REG_XCC_ID, 0, 4)")
        A("s_or_b32 s47, s47, s54")
        self.pack(47)
        A(f"buffer_store_dwordx4 v[24:27], v231, s[48:51], s42 offen {self.nst}")
        A(f"s_add_u32 s42, s42, {WS_QF - WS_QN}")
        A("s_waitcnt vmcnt(0)")
        def pre():
            A(f"s_cmp_lt_u32 s47, {self.xfast}")
            A("s_cbranch_scc1 L_q_keep")
            A(f"s_xor_b32 s41, s41, {WS_QF ^ WS_QN}")
            A(f"s_cmp_eq_u32 s47, {self.xfast}")
            A("s_cbranch_scc0 L_q_keep")
            A("buffer_store_dwordx4 v[24:27], v231, s[48:51], s42 offen sc1")
            A("L_q_keep:")
        self.gather8("L_q_x", 160, self.qsleep, 15, pre)
        A("v_xor_b32 v7, v6, v7")
        A("v_cvt_pk_bf16_f32 v8, v160, v162")
        A(f"ds_write_b32 v3, v8 offset:{L_Q}")
        A("v_mov_b32 v6, s54")
        A("v_mov_b32 v8, 0")
        A(f"ds_write_b64 v8, v[6:7] offset:{L_TAG}")
        A("v_readfirstlane_b32 s57, v7")
        A("s_cmp_eq_u32 s57, 0")
        A("s_cbranch_scc1 L_q_near")
        A("buffer_store_dwordx4 v[24:27], v231, s[48:51], s42 offen sc1")
        A("L_q_near:")
        A("s_waitcnt lgkmcnt(0)")
        self.stamp(4)
        A("s_barrier")
        A("s_branch L_h_shadow")
        A("L_h_noq:")
        if self.pad:
            A("s_cmp_eq_u32 s40, 2")
            A("s_cbranch_scc1 L_pad")
            A("L_pad_ret:")
        A("s_waitcnt lgkmcnt(0)")
        self.srd(8, 16, 1280)
        self.srd(48, 38, WS_SIZE)
        A("s_cmp_eq_u32 s40, 1")
        A("s_cbranch_scc1 L_ffn")
        if self.ewarm:
            A("s_cmp_eq_u32 s40, 3")
            A("s_cbranch_scc0 L_h_shadow")
            A(f"s_mul_i32 s59, s5, {32*640}")
            A("s_mul_i32 s41, s4, 640")
            A("s_add_u32 s59, s59, s41")
            A(f"s_add_u32 s41, s59, {WS_GP}")
            A(f"s_add_u32 s59, s59, {WS_U}")
            A("s_mov_b32 exec_hi, 0xff")
            A("buffer_load_dwordx4 v[8:11], v228, s[48:51], s59 offen")
            if self.ewarm & 2:
                A("buffer_load_dwordx4 v[12:15], v228, s[48:51], s41 offen")
            A("s_mov_b64 exec, -1")
        A("L_h_shadow:")
        self.gaddr()
        self.srd(12, 24, 4096 * 1280)
        A("v_mul_u32_u24 v36, 10240, v1")
        A("v_lshl_add_u32 v36, v2, 4, v36")
        A("v_mov_b32 v37, 0x7fffffff")
        A("s_mov_b32 s44, 0x03ff03ff"); A("s_mov_b32 s45, 0x03ff03ff")
        A("v_cndmask_b32 v239, v37, v36, s[44:45]")
        A("s_lshl_b32 s46, s4, 2")
        A("s_add_u32 s46, s46, s40               ; 4h + hw")
        A(f"s_mul_i32 s46, s46, {32*1280}")
        A("s_mul_i32 s47, s5, 160")
        A("s_add_u32 s46, s46, s47")
        def wo_issue(lo, hi, full):
            for e in range(lo, hi):
                sl = W + (16 if e & 1 else 0) + 4 * (e // 2)
                if e % 2 == 0 and e > 0:
                    A("s_add_u32 s46, s46, 2560")
                A(f"buffer_load_dwordx4 v[{sl}:{sl+3}], v239, s[12:15], s46 offen offset:{1280*(e&1)} {self.wflag}")
        def wo_perm():
            A("s_mov_b32 s44, 0x05040100")
            A("s_mov_b32 s45, 0x07060302")
            E = lambda i, c: W + 4 * i + c
            O = lambda i, c: W + 16 + 4 * i + c
            if self.wolate:
                for c in range(4):
                    for i in range(4):
                        A(f"v_perm_b32 v{192+4*c+i}, v{O(i,c)}, v{E(i,c)}, s44")
                        A(f"v_perm_b32 v{208+4*c+i}, v{O(i,c)}, v{E(i,c)}, s45")
                return
            for i in range(4):
                A(f"v_perm_b32 v16, v{O(i,i)}, v{E(i,i)}, s44")
                A(f"v_perm_b32 v{O(i,i)}, v{O(i,i)}, v{E(i,i)}, s45")
                A(f"v_mov_b32 v{E(i,i)}, v16")
                for c in range(i + 1, 4):
                    A(f"v_perm_b32 v16, v{O(i,c)}, v{E(i,c)}, s44")
                    A(f"v_perm_b32 v17, v{O(i,c)}, v{E(i,c)}, s45")
                    A(f"v_perm_b32 v{E(i,c)}, v{O(c,i)}, v{E(c,i)}, s44")
                    A(f"v_perm_b32 v{O(i,c)}, v{O(c,i)}, v{E(c,i)}, s45")
                    A(f"v_mov_b32 v{E(c,i)}, v16")
                    A(f"v_mov_b32 v{O(c,i)}, v17")
        NE = 8 - self.wolate
        wo_issue(0, NE, True)
        A("s_cmp_lt_u32 s40, 2")
        A("s_cbranch_scc1 L_h_nobar")
        A("s_barrier")
        self.gettag()
        A("L_h_nobar:")
        A("s_waitcnt vmcnt(0)")
        self.stamp(5)
        if not self.wolate:
            wo_perm()
        self.stamp(6)
        A("v_mov_b32 v227, 0")
        A("s_mov_b32 s55, 0")
        if self.fb:
            A("s_cmp_eq_u32 s40, 2")
            A("s_cbranch_scc1 L_pacer")
        A("s_cmp_eq_u32 s40, 3")
        A("s_cselect_b32 s41, s2, 0")
        A(f"s_cmp_ge_u32 s41, {CONS0}")
        A("s_cbranch_scc0 L_h_nocons")
        A("s_mov_b32 s55, 1")
        self.srd(60, 34, 1280)
        A(f"s_sub_u32 s52, s2, {CONS0}")
        A("s_lshl_b32 s53, s52, 5")
        A("v_and_b32 v6, 7, v0")
        A("v_lshrrev_b32 v7, 5, v0")
        A("v_lshl_add_u32 v229, v6, 1, v7")
        A("v_lshlrev_b32 v229, 1, v229           ; (2t + half)*2")
        A("v_lshrrev_b32 v230, 3, v0")
        A("v_mul_u32_u24 v230, 2560, v230")
        A("v_lshl_add_u32 v230, v6, 4, v230      ; g*2560 + t*16")
        A("s_mul_i32 s42, s52, 52")
        A("s_lshr_b32 s42, s42, 8")
        A(f"s_mul_i32 s42, s42, {32*640 - 640}")
        A("s_lshl_b32 s52, s52, 7")
        A("s_add_u32 s52, s52, s42")
        A(f"s_add_u32 s56, s52, {WS_GP}")
        A(f"s_add_u32 s52, s52, {WS_U}")
        gpl = [f"buffer_load_dwordx4 v[{8+4*i}:{11+4*i}], v230, s[48:51], s56 offen offset:{640*i} sc1" for i in range(4)]
        def gcalc():
            self.colsum(8)
            self.bfr(8, 8)
            A(f"v_mul_f32 v9, {LOG2E | 0x80000000:#x}, v8")
            A("v_exp_f32 v9, v9")
            self.nop(1)
            A("v_add_f32 v9, 1.0, v9")
            A("v_rcp_f32 v9, v9")
            self.nop(1)
            A("v_mul_f32 v8, v8, v9")
            self.bfr(224, 8)
        if not self.gplate or self.rwarm:
            self.lds_wait("L_h_trigA", 227, L_FLAG, "s_cmp_ge_u32", 1 if not self.gplate else 12, 100)
        A("buffer_load_ushort v225, v229, s[8:11], s53 offen")
        if self.rwarm:
            fl = self.rwarm.strip("_")
            for i in range(4):
                A(f"buffer_load_dwordx4 v[{128+4*i}:{131+4*i}], v230, s[48:51], s52 offen offset:{640*i} {fl}")
                A(f"buffer_load_dwordx4 v[{144+4*i}:{147+4*i}], v230, s[48:51], s56 offen offset:{640*i} {fl}")
        if not self.gplate:
            self.tpoll("L_c_gp", gpl, range(9, 24, 2), sleep=100)
            gcalc()
        A("s_waitcnt vmcnt(0)")
        A("v_lshlrev_b32 v225, 16, v225")
        A("L_h_nocons:")
        self.stamp(7)
        A("v_bfe_u32 v6, v0, 3, 2                ; w")
        A("v_and_b32 v7, 7, v0                   ; t")
        A("v_lshlrev_b32 v232, 9, v6")
        A("v_lshl_add_u32 v232, v7, 4, v232")
        A("s_lshl_b32 s7, s40, 7")
        A("v_add_u32 v232, s7, v232")
        A("v_lshlrev_b32 v233, 2, v6             ; w*4")
        A("v_lshl_add_u32 v234, v7, 1, v1")
        A("v_lshlrev_b32 v234, 4, v234")
        A("s_lshl_b32 s58, s6, 10")
        A("s_lshl_b32 s7, s40, 8")
        A("s_add_u32 s58, s58, s7")
        A("s_lshl_b32 s43, s4, 13")
        A("s_add_u32 s43, s43, s7")
        A("v_lshrrev_b32 v6, 2, v2               ; a")
        A("v_and_b32 v7, 3, v2                   ; b")
        A("v_lshlrev_b32 v235, 11, v6")
        A("v_lshl_add_u32 v235, v1, 6, v235")
        A("v_lshl_add_u32 v235, v7, 4, v235      ; a*2048 + s*64 + b*16")
        A("v_lshlrev_b32 v236, 5, v6             ; a*32")
        A("s_lshl_b32 s41, s4, 7")
        A(f"s_add_u32 s41, s41, {WS_ML}")
        A("v_lshl_add_u32 v237, v2, 1, v1")
        A("s_mul_i32 s7, s40, 320")
        A("v_lshl_add_u32 v237, v237, 4, s7")
        A("v_lshlrev_b32 v238, 3, v0             ; lane*8")
        A(f"s_mul_i32 s59, s5, {32*640}")
        A("s_mul_i32 s7, s4, 640")
        A("s_add_u32 s59, s59, s7")
        A(f"s_add_u32 s59, s59, {WS_U}")
        A("v_lshlrev_b32 v4, 2, v0")
        if self.warm:
            for r in range(4):
                A(f"v_not_b32 v{40+r}, s54")
            if self.warm & 1:
                A("s_cmp_eq_u32 s40, 0")
                A("s_cbranch_scc0 L_h_nowarm")
                A("s_mov_b32 exec_hi, 0xff")
                A("buffer_store_dwordx4 v[40:43], v228, s[48:51], s59 offen sc1")
                A("s_mov_b64 exec, -1")
                A("L_h_nowarm:")
            A("s_waitcnt vmcnt(0)")
        A("s_mov_b32 s47, 0")
        A("L_h_trigB:")
        A(f"ds_read_b128 v[8:11], v227 offset:{L_FLAG}")
        A("s_waitcnt lgkmcnt(0)")
        A("v_min_u32 v8, v8, v9")
        A("v_min3_u32 v8, v8, v10, v11")
        A("s_add_u32 s47, s47, 1")
        A("v_readfirstlane_b32 s42, v8")
        A("s_cmp_ge_u32 s42, 16")
        A("s_cbranch_scc1 L_h_trigB_ok")
        A(f"s_sleep {self.bsleep}")
        A("s_cmp_lt_u32 s47, 0x100000")
        A("s_cbranch_scc1 L_h_trigB")
        A("L_h_trigB_ok:")
        wo_issue(NE, 8, True)
        A(f"ds_read_b128 v[8:11], v227 offset:{L_MW}")
        A(f"ds_read_b32 v19, v233 offset:{L_MW}")
        for w in range(4):
            A(f"ds_read_b32 v{12+w}, v4 offset:{L_LL+256*w}")
        A("s_waitcnt lgkmcnt(0)")
        A("v_max3_f32 v20, v8, v9, v10")
        A("v_max_f32 v20, v20, v11")
        A("v_sub_f32 v19, v19, v20")
        A(f"v_mul_f32 v19, {LOG2E:#x}, v19")
        A("v_exp_f32 v19, v19")
        A("s_cmp_eq_u32 s40, 1")
        A("s_cbranch_scc0 L_h_noml")
        for w in range(4):
            A(f"v_sub_f32 v{8+w}, v{8+w}, v20")
            A(f"v_mul_f32 v{8+w}, {LOG2E:#x}, v{8+w}")
            A(f"v_exp_f32 v{8+w}, v{8+w}")
        A("v_mul_f32 v22, v8, v12")
        for w in range(1, 4):
            A(f"v_fmac_f32 v22, v{8+w}, v{12+w}")
        self.wave_reduce("v_add_f32", 22, 21)
        A("v_mov_b32 v21, s54")
        A("v_mov_b32 v23, s54")
        A("s_lshl_b32 s7, s6, 4")
        A(f"s_add_u32 s7, s7, {WS_ML}")
        A("s_mov_b64 exec, 1")
        self.nearfar("ml", "buffer_store_dwordx4 v[20:23], off, s[48:51], s7")
        A("s_mov_b64 exec, -1")
        A("L_h_noml:")
        self.stamp(8)
        A("v_mov_b32 v41, s54")
        A("v_mov_b32 v43, s54")
        self.stamp(9)
        A("s_barrier")
        self.stamp(10)
        A(f"ds_read_b128 v[8:11], v232 offset:{L_O}")
        mll = [f"buffer_load_dwordx4 v[{24+4*x}:{27+4*x}], v236, s[48:51], s41 offen offset:{16*x} {self.ol}" for x in range(2)]
        ol = [f"buffer_load_dwordx4 v[{32+4*x}:{35+4*x}], v235, s[48:51], s43 offen offset:{1024*x} {self.ol}" for x in range(2)]
        for t in mll:
            A(t)
        A("s_waitcnt lgkmcnt(0)")
        for r in range(4):
            A(f"v_mul_f32 v{8+r}, v19, v{8+r}")
        for r in range(4):
            A(f"v_add_f32_dpp v{8+r}, v{8+r}, v{8+r} row_ror:8 {DPPF}")
        A("s_mov_b32 s44, 0x00ff00ff")
        A("s_mov_b32 s45, 0")
        A("v_permlane16_swap_b32 v8, v10")
        A("v_permlane16_swap_b32 v9, v11")
        self.nop(1)
        A("v_add_f32 v40, v8, v10")
        A("v_add_f32 v42, v9, v11")
        A("s_mov_b64 exec, s[44:45]")
        self.nearfar("o", "buffer_store_dwordx4 v[40:43], v234, s[48:51], s58 offen")
        A("s_mov_b64 exec, -1")
        for t in ol:
            A(t)
        def weights():
            if self.wolate:
                A("s_waitcnt vmcnt(5)")
                wo_perm()
            A("s_waitcnt vmcnt(3)")
            self.tagcheck([25, 27, 29, 31])
            A("v_max_f32 v18, v24, v28")
            A("s_cbranch_scc1 L_h_mlwait")
            A("L_h_mlok:")
            for r in (4, 8):
                self.nop(2 if r > 4 else 1)
                A(f"v_max_f32_dpp v18, v18, v18 row_ror:{r} {DPPF}")
            A("v_sub_f32 v16, v24, v18")
            A("v_sub_f32 v17, v28, v18")
            A(f"v_mul_f32 v16, {LOG2E:#x}, v16")
            A(f"v_mul_f32 v17, {LOG2E:#x}, v17")
            A("v_exp_f32 v16, v16")
            A("v_exp_f32 v17, v17")
            A("v_mul_f32 v18, v26, v16")
            A("v_fmac_f32 v18, v30, v17")
            for r in (4, 8):
                self.nop(2)
                A(f"v_add_f32_dpp v18, v18, v18 row_ror:{r} {DPPF}")
            A("v_rcp_f32 v18, v18")
            A("s_mov_b32 s47, 0")
            A("v_mul_f32 v16, v16, v18")
            A("v_mul_f32 v17, v17, v18")
        self.tpoll("L_h_o", ol, [33, 35, 37, 39], sleep=self.osleep, first=weights, issued=True)
        self.stamp(11)
        if self.gplate:
            A("s_cmp_eq_u32 s40, 1")
            A("s_cbranch_scc1 L_h_gpst")
            A("L_h_gpst_done:")
        A("v_mul_f32 v32, v16, v32")
        A("v_mul_f32 v34, v16, v34")
        A("v_fmac_f32 v32, v17, v36")
        A("v_fmac_f32 v34, v17, v38")
        for r in (4, 8):
            self.nop(1)
            A(f"v_add_f32_dpp v32, v32, v32 row_ror:{r} {DPPF}")
            A(f"v_add_f32_dpp v34, v34, v34 row_ror:{r} {DPPF}")
        A("v_cvt_pk_bf16_f32 v32, v32, v34")
        A("s_mov_b32 s44, 0xffff0000"); A("s_mov_b32 s45, 0xffff0000")
        for r in range(4):
            A(f"v_mov_b32_dpp v{28+r}, v32 quad_perm:[{r},{r},{r},{r}] {DPPF}")
        self.nop(2)
        B = lambda t: (192 if self.wolate else W) + (16 if t & 1 else 0) + 4 * (t // 2)
        for t in (0, 4, 1, 5, 2, 6, 3, 7):
            self.mfma(96 + 4 * t, 28, B(t), None)
        A("s_mov_b32 exec_lo, 0x03ff03ff")
        A("s_mov_b32 exec_hi, 0")
        for t in range(4):
            if t > 0:
                self.nop(1)
            A(f"v_cndmask_b32 v{20+t}, v{96+4*t}, v{112+4*t}, s[44:45]")
        A(f"ds_write_b128 v237, v[20:23] offset:{L_X}")
        A("s_mov_b64 exec, -1")
        A("s_waitcnt lgkmcnt(0)")
        A("s_barrier")
        A("s_cmp_eq_u32 s40, 0")
        A("s_cbranch_scc0 L_h_nou")
        for k in range(4):
            A(f"ds_read_b64 v[{8+2*k}:{9+2*k}], v238 offset:{L_X+320*k}")
        A("s_mov_b32 exec_lo, -1")
        A("s_mov_b32 exec_hi, 0xff")
        A("s_waitcnt lgkmcnt(2)")
        A("v_add_f32 v8, v8, v10")
        A("v_add_f32 v9, v9, v11")
        A("s_waitcnt lgkmcnt(0)")
        A("v_add_f32 v12, v12, v14")
        A("v_add_f32 v13, v13, v15")
        A("v_add_f32 v40, v8, v12")
        A("v_add_f32 v42, v9, v13")
        A(f"buffer_store_dwordx4 v[40:43], v228, s[48:51], s59 offen {self.uflag}")
        A("L_h_nou:")
        self.stamp(12)
        A("s_cmp_eq_u32 s55, 1")
        A("s_cbranch_scc0 L_h_end")
        NP = self.npipe
        SZ = 32 if self.gplate else 16
        NL = SZ // 4
        def uload(p):
            for i in range(4):
                A(f"buffer_load_dwordx4 v[{128+SZ*p+4*i}:{131+SZ*p+4*i}], v230, s[48:51], s52 offen offset:{640*i} {self.lflag}")
            if self.gplate:
                for i in range(4):
                    A(f"buffer_load_dwordx4 v[{144+SZ*p+4*i}:{147+SZ*p+4*i}], v230, s[48:51], s56 offen offset:{640*i} sc1")
        A("s_mov_b32 s47, 0")
        for p in range(NP):
            uload(p)
            if p < NP - 1 and self.gap:
                A(f"s_sleep {self.gap}")
        A("L_c_u:")
        for p in range(NP):
            A(f"s_waitcnt vmcnt({NL*(NP-1)})")
            self.tagcheck(range(129 + SZ * p, 128 + SZ * (p + 1), 2))
            A(f"s_cbranch_scc0 L_c_u{p}")
            if NP == 1 and self.usleep:
                A(f"s_sleep {self.usleep}")
            uload(p)
        A("s_cmp_lt_u32 s47, 0x40000")
        A("s_cbranch_scc1 L_c_u")
        for p in range(NP - 1, -1, -1):
            A(f"L_c_u{p}:")
            self.stamp(13)
            R = 128 + SZ * p
            if self.gplate:
                G = R + 16
                for X in (G, R):
                    A(f"v_add_f32 v{X}, v{X}, v{X+4}")
                    A(f"v_add_f32 v{X+2}, v{X+2}, v{X+6}")
                    A(f"v_add_f32 v{X+8}, v{X+8}, v{X+12}")
                    A(f"v_add_f32 v{X+10}, v{X+10}, v{X+14}")
                    A(f"v_add_f32 v{X}, v{X}, v{X+8}")
                    A(f"v_add_f32 v{X+2}, v{X+2}, v{X+10}")
                A(f"v_permlane32_swap_b32 v{G}, v{G+2}")
                self.nop(1)
                A(f"v_permlane32_swap_b32 v{R}, v{R+2}")
                A(f"v_add_f32 v{G}, v{G}, v{G+2}")
                A(f"v_add_f32 v{R}, v{R}, v{R+2}")
                self.nop(2)
                A(f"v_permlane16_swap_b32 v{G}, v{R}")
                self.nop(1)
                A(f"v_add_f32 v{G}, v{G}, v{R}")
                self.nop(2)
                A(f"v_add_f32_dpp v{G}, v{G}, v{G} row_ror:8 {DPPF}")
                self.bfr(8, G)
                A(f"v_mul_f32 v9, {LOG2E | 0x80000000:#x}, v8")
                A("v_mov_b32 v24, v8")
                A("v_exp_f32 v9, v9")
                A("v_mov_b32 v25, v8")
                A("v_add_f32 v9, 1.0, v9")
                A("v_rcp_f32 v9, v9")
                A("v_permlane16_swap_b32 v25, v24")
                A("v_mul_f32 v8, v8, v9")
                self.bfr(224, 8)
            else:
                self.colsum(R)
                self.bfr(24, R)
            A("v_mul_f32 v24, v24, v224")
            self.bfr(24, 24)
            A("v_add_f32 v24, v24, v225")
            A("v_cvt_pk_bf16_f32 v24, v24, v24")
            A("s_mov_b32 exec_lo, 0xff")
            A("s_mov_b32 exec_hi, 0xff")
            A("buffer_store_short v24, v229, s[60:63], s53 offen")
            if p > 0:
                A("s_branch L_c_fin")
        A("L_c_fin:")
        A(f"s_cmp_eq_u32 s2, {CONS0}")
        A("s_cbranch_scc0 L_h_end")
        A(f"s_mov_b32 s47, {WS_E:#x}")
        A("s_mov_b64 exec, 1")
        A("buffer_store_dword v41, off, s[48:51], s47 sc1")
        A("L_h_end:")
        self.stamp(14)
        if self.diag:
            for _ in range(3):
                A("s_sleep 127")
        self.flush_stamps(15)
        A("s_endpgm")
        if self.gplate:
            A("L_h_gpst:")
            A("s_mov_b32 exec_lo, 0x03ff03ff")
            A("s_mov_b32 exec_hi, 0x03ff03ff")
            A("buffer_store_dwordx4 v[240:243], v231, s[48:51], s56 offen sc1")
            A("s_mov_b64 exec, -1")
            A("s_branch L_h_gpst_done")
        A("L_h_mlwait:")
        self.tpoll("L_h_ml", mll, [25, 27, 29, 31], sleep=self.mlsleep)
        for t in ol:
            A(t)
        A("v_max_f32 v18, v24, v28")
        A("s_branch L_h_mlok")
        self.ffn()
        if self.fb:
            self.pacer()

    def gaddr(self):
        A = self.A
        A("v_lshrrev_b32 v6, 1, v1")
        A("v_and_b32 v7, 1, v1")
        A("v_lshl_add_u32 v6, v7, 1, v6")
        A("v_lshl_add_u32 v6, v2, 2, v6")
        A("v_lshlrev_b32 v231, 4, v6")

    def gettag(self):
        A = self.A
        A("v_mov_b32 v6, 0")
        A(f"ds_read_b64 v[6:7], v6 offset:{L_TAG}")
        A("s_waitcnt lgkmcnt(0)")
        A("v_readfirstlane_b32 s54, v6")
        A("v_readfirstlane_b32 s57, v7")

    def ffn(self):
        A = self.A
        W = self.W
        A("L_ffn:")
        self.gaddr()
        A(f"s_mul_i32 s56, s5, {32*640}")
        A("s_mul_i32 s47, s4, 640")
        A("s_add_u32 s56, s56, s47")
        A(f"s_add_u32 s56, s56, {WS_GP}")
        A(f"s_cmp_lt_u32 s4, {NFH}")
        A("s_cbranch_scc1 L_f_go")
        A("s_barrier")
        self.gettag()
        for r in range(4):
            A(f"v_mov_b32 v{28+r}, 0")
        A("s_branch L_f_pub")
        A("L_f_go:")
        self.x_issue()
        A("s_mov_b32 s44, 0xff00ff00"); A("s_mov_b32 s45, 0xff00ff00")
        A("v_mov_b32 v38, s28"); A("v_mov_b32 v39, s29")
        A("v_mov_b32 v8, s30"); A("v_mov_b32 v9, s31")
        A("v_cndmask_b32 v38, v38, v8, s[44:45]")
        A("v_cndmask_b32 v39, v39, v9, s[44:45]")
        A("v_and_b32 v8, 7, v0")
        A("v_lshlrev_b32 v8, 4, v8")
        A("v_mul_u32_u24 v9, 3456, v1")
        A("v_add_u32 v8, v8, v9")
        A(f"s_mul_i32 s47, s5, {80*3456}")
        A("s_lshl_b32 s41, s4, 7")
        A("s_add_u32 s47, s47, s41")
        A("v_add_u32 v8, s47, v8")
        A("v_mov_b32 v9, 0")
        A("v_lshl_add_u64 v[38:39], v[38:39], 0, v[8:9]")
        A("s_mov_b32 s42, 13824"); A("s_mov_b32 s43, 0")
        for i in range(20):
            sl = W + 4 * i
            A(f"global_load_dwordx4 v[{sl}:{sl+3}], v[38:39], off {self.wflag}")
            A("v_lshl_add_u64 v[38:39], v[38:39], 0, s[42:43]")
        self.srd(12, 32, 1728 * 1280)
        A("v_mul_u32_u24 v36, 1280, v1")
        A("v_lshl_add_u32 v36, v2, 4, v36")
        A("v_mov_b32 v37, 0x7fffffff")
        A("s_mov_b32 s44, 0x03ff03ff"); A("s_mov_b32 s45, 0x03ff03ff")
        A("v_cndmask_b32 v36, v37, v36, s[44:45]")
        A(f"s_mul_i32 s46, s4, {64*1280}")
        A("s_add_u32 s46, s46, s7")
        for n in range(16):
            sl = 144 + 4 * n
            A(f"buffer_load_dwordx4 v[{sl}:{sl+3}], v36, s[12:15], s46 offen {self.wflag}")
            A(f"s_add_u32 s46, s46, {4*1280}")
        A("s_barrier")
        self.gettag()
        self.masks(12, 6, 44)
        A("s_waitcnt vmcnt(36)")
        self.ln()
        for n in range(20):
            self.abuild(24, 21 + n // 16, 12, n % 16)
            A(f"s_waitcnt vmcnt({35-n})")
            self.nop(1)
            self.mfma(28, 24, W + 4 * n, None if n == 0 else 28)
        A("s_lshl_b32 s42, s6, 10")
        A(f"s_add_u32 s42, s42, {WS_FX}")
        A("s_and_b32 s41, s42, 0xffffe000")
        self.nop(2)
        self.pack(54)
        self.nearfar("fx", "buffer_store_dwordx4 v[24:27], v231, s[48:51], s42 offen")
        A("s_waitcnt vmcnt(0)")
        A("s_sleep 16")
        R = 64
        self.gather8("L_f_x", R, 16, 0)
        self.bfr(R, R)
        self.bfr(R + 2, R + 2)
        A(f"v_mov_b32 v{R+1}, v{R}")
        A(f"v_mov_b32 v{R+3}, v{R+2}")
        self.nop(2)
        A(f"v_permlane32_swap_b32 v{R}, v{R+1}")
        A(f"v_permlane32_swap_b32 v{R+2}, v{R+3}")
        self.nop(1)
        A(f"v_max_f32 v{R}, 0, v{R}")
        A(f"v_max_f32 v{R+2}, 0, v{R+2}")
        A(f"v_mul_f32 v{R}, v{R}, v{R+1}")
        A(f"v_mul_f32 v{R+2}, v{R+2}, v{R+3}")
        A(f"v_cvt_pk_bf16_f32 v{R}, v{R}, v{R}")
        A(f"v_cvt_pk_bf16_f32 v{R+1}, v{R+2}, v{R+2}")
        A("v_lshlrev_b32 v6, 3, v0")
        A("v_and_b32 v6, 0xff, v6                ; (lane&31)*8")
        A(f"ds_write_b64 v6, v[{R}:{R+1}] offset:{L_H}")
        A("v_lshlrev_b32 v6, 1, v4               ; (4j+s)*4")
        A(f"ds_read_b32 v21, v6 offset:{L_H}")
        A("s_waitcnt lgkmcnt(0)")
        for n in range(16):
            self.abuild(24, 21, 12, n)
            self.nop(2)
            self.mfma(28, 24, 144 + 4 * n, None if n == 0 else 28)
        self.nop(4)
        A("L_f_pub:")
        self.pack(54)
        if self.gplate:
            for r in range(4):
                A(f"v_mov_b32 v{240+r}, v{24+r}")
            A("s_branch L_h_shadow")
            return
        A("s_mov_b32 exec_lo, 0x03ff03ff")
        A("s_mov_b32 exec_hi, 0x03ff03ff")
        A("buffer_store_dwordx4 v[24:27], v231, s[48:51], s56 offen sc1")
        A("s_mov_b64 exec, -1")
        A("s_branch L_h_shadow")


if __name__ == "__main__":
    out = sys.argv[1]
    kw = eval("dict(" + (sys.argv[2] if len(sys.argv) > 2 else "") + ")")
    open(out, "w").write(Gen(**kw).gen())
```

```python
import sys
from gen_kernel import NAME, LOG2E, SCALE, DPPF
from gen6 import Gen as G6

WS_O = 0
WS_ML = 0x40000
WS_U = 0x50000
WS_GP = 0x80000
WS_TS = 0xF8000
WS_E = 0xFC000
WS_QN = 0x200000
WS_QF = 0x240000
WS_FX = 0x280000
WS_SIZE = 0x300000
L_Q = 16640
L_MW = L_Q + 256
L_FLAG = L_MW + 16
L_TAG = L_FLAG + 16
L_PROG = L_TAG + 8
L_ANCH = L_PROG + 8
L_LL = L_ANCH + 16
L_O = L_LL + 1024
L_X = L_O + 2048
L_H = L_X + 1280
L_END = L_H + 512
NFH = 27
CONS0 = 216
import gen6
gen6.L_ANCH, gen6.L_PROG = L_ANCH, L_PROG


class Gen(G6):
    def __init__(self, npipe=3, gap=2, warm=0, uflag='sc1', gplate=False, rwarm='', lflag='sc1', xl='sc1 nt', perm=0, ol='sc1 nt', nst='', ewarm=3, comp=False, lay=True, wolate=6, bsleep=3, pad=True, **kw):
        kw.setdefault("N1", 24); kw.setdefault("N0", 30); kw.setdefault("xfast", 6); kw.setdefault("flagstep", 8); kw.setdefault("DL", 4); kw.setdefault("theta2", -70)
        super().__init__(**kw)
        self.npipe, self.gap, self.warm, self.uflag = npipe, gap, warm, uflag
        self.gplate, self.rwarm, self.lflag, self.xl, self.perm = gplate, rwarm, lflag, xl, perm
        self.ol, self.nst, self.ewarm = ol, nst, ewarm
        self.comp = comp
        self.lay = lay
        self.pad = pad
        self.steady = False
        self.wolate, self.bsleep = wolate, bsleep
        if lay:
            self.NB = self.NS

    def gen(self):
        txt = super().gen()
        if self.pad:
            a = txt.index("L_streamer:\n"); b = txt.index("  s_branch L_post\n") + len("  s_branch L_post\n")
            blk = txt[a:b]
            txt = txt[:a] + txt[b:]
            f = txt.index("L_ffn:\n")
            txt = txt[:f] + blk + txt[f:]
        ld = "  s_load_dwordx16 s[16:31], s[0:1], 0\n  s_load_dwordx8 s[32:39], s[0:1], 64\n"
        txt = txt.replace(ld, "", 1)
        txt = txt.replace("  s_cmp_ge_u32 s2, 256\n", ld + "  s_cmp_ge_u32 s2, 256\n", 1)
        if self.perm == 1:
            txt = txt.replace("L_go:\n", "L_go:\n  s_lshl_b32 s4, s2, 3\n  s_lshr_b32 s2, s2, 5\n  s_or_b32 s2, s2, s4\n  s_and_b32 s2, s2, 255\n", 1)
        if self.perm == 2:
            txt = txt.replace("L_go:\n", "L_go:\n  s_lshr_b32 s4, s2, 3\n  s_and_b32 s4, s4, 1\n  s_xor_b32 s2, s2, s4\n", 1)
        return txt.replace(f"lds={gen6.L_END}", f"lds={L_END}")

    def setdeep(self, sreg, fb=False, base=0):
        A = self.A
        if not (fb and self.fb) or self.LA == self.D:
            return super().setdeep(sreg, fb, base)
        st = self.tau / 16.0
        A("s_waitcnt lgkmcnt(0)")
        A("v_readfirstlane_b32 s66, v59")
        A(f"s_add_u32 s67, s15, {base}")
        A(f"s_mul_i32 s68, s67, {self.tau}")
        A("s_sub_u32 s68, s64, s68")
        if self.comp:
            if self.DL:
                A(f"s_mul_i32 s69, s69, {round((self.D - self.DL) * st)}")
                A("s_sub_u32 s68, s68, s69")
            A(f"s_andn2_b32 s69, {round((self.LA - self.D) * st)}, vcc_lo")
            A("s_sub_u32 s68, s68, s69")
        A("v_mov_b32 v58, s67")
        A("v_mov_b32 v59, s68")
        A(f"ds_write_b64 v57, v[58:59] offset:{L_PROG}")
        A("s_sub_u32 s68, s68, s66")
        if self.DL:
            A(f"s_add_u32 s69, s68, 2000")
            A(f"s_cmp_lt_u32 s69, {2000 + self.theta2}")
            A("s_cselect_b32 s69, 1, 0")
        else:
            A("s_mov_b32 s69, 0")
        A(f"s_cmp_gt_i32 s68, {self.theta}")
        A("s_cselect_b64 vcc, -1, 0")
        if self.kmask or self.vmask:
            A(f"s_bitcmp1_b32 s{sreg}, s15")
            A("s_cselect_b64 vcc, -1, vcc")
        if self.diag:
            A("s_mov_b32 m0, s67")
            A("v_writelane_b32 v55, s64, m0")
            A("s_and_b32 s66, vcc_lo, 2")
            A("s_or_b32 s66, s66, s69")
            A("v_writelane_b32 v54, s66, m0")
        if self.DL:
            A("s_cmp_eq_u32 s69, 0")

    def dwait(self):
        A = self.A
        if not self.steady:
            A(f"s_waitcnt vmcnt({self.D-1})")
            return
        self.uid += 1
        A(f"s_waitcnt vmcnt({self.LA-1})")
        A(f"s_cbranch_vccnz L_dw{self.uid}")
        A(f"s_waitcnt vmcnt({self.D-1})")
        if self.DL:
            A(f"s_cbranch_scc1 L_dw{self.uid}")
            A(f"s_waitcnt vmcnt({self.DL-1})")
        A(f"L_dw{self.uid}:")

    def sload(self, n, switch=None, steady=False):
        super().sload(n, switch, steady)
        if steady and n % 8 == 0 and self.DL:
            self.A("s_cmp_eq_u32 s69, 0")

    def setup1(self):
        A = self.A
        if self.diag:
            self.srd(48, 38, WS_SIZE)
        A("v_and_b32 v6, 3, v2")
        A("v_lshl_add_u32 v6, v1, 2, v6          ; rho*4 + (j&3)")
        A("v_lshlrev_b32 v53, 4, v6")
        A("v_and_b32 v6, 1, v1")
        A("v_lshl_add_u32 v6, v2, 1, v6")
        A("s_lshl_b32 s7, s3, 9")
        A("v_lshl_add_u32 v60, v6, 4, s7")
        self.masks(12, 6, 40)
        A("s_mov_b32 s40, 0xaaaaaaaa"); A("s_mov_b32 s41, 0xaaaaaaaa")
        A("s_mov_b32 s42, 0xcccccccc"); A("s_mov_b32 s43, 0xcccccccc")
        A(f"s_mov_b32 s57, {self.kmask:#x}"); A(f"s_mov_b32 s58, {self.vmask:#x}")

    def streamer_issue(self):
        if self.lay:
            mark = len(self.L)
            super().streamer_issue()
            body = self.L[mark:]
            del self.L[mark:]
            k = [i for i, t in enumerate(body) if "lgkmcnt(0)" in t][0]
            self.L += body[:k]
            d = self.diag
            self.diag = False
            self.setup1()
            self.diag = d
            self.L += body[k:]
            if d:
                self.srd(48, 38, WS_SIZE)
        else:
            super().streamer_issue()

    def streamer(self):
        A = self.A
        D, LA, N0, Dp = self.D, self.LA, self.N0, self.Dp
        if self.lay and not self.pad:
            self.L.append(".p2align 12")
        A("L_streamer:")
        if not self.lay:
            self.setup1()
        A("s_mov_b32 s69, 0")
        A("s_lshl_b32 s7, s3, 2")
        A("v_mov_b32 v61, s7                     ; w*4")
        A("v_mov_b32 v6, 0")
        A(f"ds_write_b32 v61, v6 offset:{L_FLAG}")
        if self.fb:
            A("s_memrealtime s[64:65]")
            A("v_mov_b32 v56, 0")
            A("v_mov_b32 v7, 0")
            A(f"ds_write_b64 v56, v[6:7] offset:{L_PROG}")
            A("s_cmp_eq_u32 s3, 1")
            A(f"s_cselect_b32 s7, 0, {L_H - L_PROG + 256}")
            A("v_mov_b32 v57, s7")
            A("s_waitcnt lgkmcnt(0)")
            A("s_add_u32 s64, s64, 0x100000")
            A("v_mov_b32 v7, s64")
            A(f"ds_write_b32 v56, v7 offset:{L_ANCH}")
        A("s_lshl_b32 s7, s3, 8")
        A("v_lshl_add_u32 v62, v0, 2, s7")
        A("s_lshl_b32 s7, s3, 12")
        A("v_and_b32 v8, 60, v0")
        A("v_add_u32 v8, s7, v8")
        A("v_mov_b32 v5, 0xff800000")
        A("s_mov_b32 s15, 0")
        N1, Dp2 = self.N1, self.Dp2
        def pf(n):
            d = Dp if n < self.n1 else Dp2
            A(f"s_waitcnt vmcnt({d-1})")
            if (n - Dp) % 4 == 0 and (n - Dp) // 4 < 8:
                self.stamp(7 + (n - Dp) // 4)
            self.sload(n)
        for n in range(Dp, N1):
            pf(n)
        if self.pad:
            A("s_branch L_post")
            self.L.append(".p2align 12")
            A("L_pad:")
            A("s_branch L_pad_ret")
            A("L_post:")
        A("s_waitcnt lgkmcnt(0)")
        self.stamp(1)
        A("s_barrier")
        self.stamp(2)
        A(f"ds_read_b128 v[44:47], v53 offset:{L_Q}")
        rest = list(range(N1, N0))
        if rest:
            pf(rest.pop(0))
        A("s_waitcnt lgkmcnt(0)")
        for g in range(4):
            pat = (0xf << (4 * g)) * 0x00010001
            A(f"s_mov_b32 s44, {pat:#x}"); A(f"s_mov_b32 s45, {pat:#x}")
            for r in range(4):
                A(f"v_cndmask_b32 v{16+4*g+r}, 0, v{44+r}, s[44:45]")
            if rest:
                pf(rest.pop(0))
        for n in rest:
            pf(n)
        self.nop(2)
        self.stamp(3)
        NB = self.NB
        issued, landed = N0, N0 - Dp2
        last_mfma = {}
        A("s_mov_b64 vcc, 0")
        for n in range(NB):
            G, g = n // 4, n % 4
            if n % 16 == 0 and self.diag and self.fb:
                A("s_memrealtime s[64:65]")
                A("s_waitcnt lgkmcnt(0)")
                A(f"v_writelane_b32 v55, s64, {n//16}")
                A(f"v_writelane_b32 v54, 0, {n//16}")
            want = issued - n <= LA or (n >= 1 and (n <= D or n % self.cu == 0))
            if want and issued < NB + LA:
                prev = issued - self.NS if issued < self.NS + 16 else issued - 16
                if prev < n:
                    self.dwait()
                    landed = max(landed, issued - (LA - 1))
                    self.sload(issued)
                    issued += 1
            if landed <= n:
                A(f"s_waitcnt vmcnt({issued - n - 1})")
                landed = n + 1
            dreg = 32 + 4 * (G & 1)
            self.mfma(dreg, 16 + 4 * g, self.slot(n), None if g == 0 else dreg)
            last_mfma[G] = len(self.L)
            if g == 2 and G > 0:
                since = sum(1 for t in self.L[last_mfma[G - 1]:] if not t.endswith(":") and "vmcnt" not in t and "cbranch" not in t and "s69" not in t)
                self.kstep_post(n, since)
            if n % 16 == 15:
                A("v_add_u32 v8, 256, v8")
        assert issued == NB + LA, (issued, NB + LA)
        A(f"s_mov_b32 s15, {NB//16}")
        self.fb_sample()
        self.steady = True
        A("L_kloop:")
        self.setdeep(57, True, 0)
        for n in range(16):
            G, g = n // 4, n % 4
            self.dwait()
            self.sload(n + LA, "KV", True)
            dreg = 32 + 4 * (G & 1)
            self.mfma(dreg, 16 + 4 * g, self.slot(n, True), None if g == 0 else dreg)
            self.kstep_post(n, 9)
            if n == 14:
                self.fb_sample()
        A("v_add_u32 v8, 256, v8")
        A("s_add_u32 s15, s15, 1")
        A("s_cmp_lt_u32 s15, 16")
        A("s_cbranch_scc1 L_kloop")
        self.nop(6)
        self.kpost(36, 0)
        self.stamp(4)
        A("s_lshl_b32 s7, s3, 12")
        A("v_lshl_add_u32 v8, v2, 2, v1          ; 4j+s")
        A("v_lshlrev_b32 v8, 2, v8")
        A("v_add_u32 v8, s7, v8")
        A("ds_read_b32 v11, v8 offset:64")
        self.wave_reduce("v_max_f32", 5, 6, rors=(4, 8))
        self.bfr(9, 5)
        A(f"v_mul_f32 v9, {SCALE:#x}, v9")
        self.bfr(9, 9)
        A(f"ds_write_b32 v61, v9 offset:{L_MW}")
        A("v_mov_b32 v5, 0                       ; l")
        A("v_mov_b32 v63, 0")
        for r in range(4):
            A(f"v_mov_b32 v{40+r}, 0")
        A("s_mov_b32 s15, 0")
        A("L_vloop:")
        self.setdeep(58, True, 16)
        A("s_waitcnt lgkmcnt(0)")
        self.pcalc()
        for n in range(16):
            self.abuild(16, 10, 12, n)
            self.dwait()
            self.sload(n + LA, "END", True)
            self.mfma(40, 16, self.slot(n, True), 40)
            if n == 14:
                self.fb_sample()
            if n == self.flagstep:
                A("v_add_u32 v63, 1, v63")
                A(f"ds_write_b32 v62, v5 offset:{L_LL}")
                A(f"ds_write_b32 v61, v63 offset:{L_FLAG}")
        A("s_add_u32 s15, s15, 1")
        A("s_cmp_lt_u32 s15, 16")
        A("s_cbranch_scc1 L_vloop")
        self.stamp(5)
        self.exec_lo()
        self.nop(3)
        A(f"ds_write_b128 v60, v[40:43] offset:{L_O}")
        A("s_waitcnt lgkmcnt(0)")
        A("s_barrier")
        self.stamp(6)
        if self.diag:
            A("s_barrier")
            for _ in range(3):
                A("s_sleep 127")
        if self.diag and self.fb:
            A("s_lshl_b32 s7, s2, 2"); A("s_add_u32 s7, s7, s3"); A("s_lshl_b32 s7, s7, 8"); A("s_add_u32 s7, s7, 0x140000")
            A("v_lshlrev_b32 v6, 2, v0")
            A("buffer_store_dword v55, v6, s[48:51], s7 offen")
            A("buffer_store_dword v54, v6, s[48:51], s7 offen offset:128")
        self.flush_stamps(15)
        A("s_endpgm")

    def nearfar(self, tag, store):
        A = self.A
        if self.fast:
            A("s_cmp_eq_u32 s57, 0")
            A(f"s_cbranch_scc0 L_{tag}_far")
            A(store + " " + self.nst)
            A(f"s_branch L_{tag}_fin")
            A(f"L_{tag}_far:")
        A(store + " sc1")
        A(f"L_{tag}_fin:")

    def tagcheck(self, regs, t0=3, t1=7):
        A = self.A
        r = list(regs)
        if len(r) == 2:
            A(f"v_cmp_ne_u32 vcc, s54, v{r[0]}")
            A(f"v_cmp_ne_u32 s[44:45], s54, v{r[1]}")
        else:
            A(f"v_and_b32 v{t0}, v{r[0]}, v{r[1]}")
            A(f"v_or_b32 v{t1}, v{r[0]}, v{r[1]}")
            for i in range(2, len(r), 2):
                A(f"v_bitop3_b32 v{t0}, v{t0}, v{r[i]}, v{r[i+1]} bitop3:0x80")
                A(f"v_or3_b32 v{t1}, v{t1}, v{r[i]}, v{r[i+1]}")
            A(f"v_cmp_ne_u32 vcc, s54, v{t0}")
            A(f"v_cmp_ne_u32 s[44:45], s54, v{t1}")
        A("s_add_u32 s47, s47, 1")
        A("s_or_b64 vcc, vcc, s[44:45]")

    def tpoll(self, label, loads, tags, sleep=0, first=None, issued=False):
        A = self.A
        A("s_mov_b32 s47, 0")
        if not issued:
            for t in loads:
                A(t)
        if first:
            first()
        A(f"{label}:")
        A("s_waitcnt vmcnt(0)")
        self.tagcheck(tags)
        A(f"s_cbranch_scc0 {label}_ok")
        A("s_mov_b64 exec, vcc")
        if sleep:
            A(f"s_sleep {sleep}")
        for t in loads:
            A(t)
        A("s_cmp_lt_u32 s47, 0x40000")
        A(f"s_cbranch_scc1 {label}")
        A(f"{label}_ok:")
        A("s_mov_b64 exec, -1")

    def pack(self, tagreg):
        A = self.A
        A("s_mov_b32 s44, 0"); A("s_mov_b32 s45, -1")
        A(f"v_mov_b32 v25, s{tagreg}")
        A(f"v_mov_b32 v27, s{tagreg}")
        A("v_cndmask_b32 v24, v28, v30, s[44:45]")
        A("v_cndmask_b32 v26, v29, v31, s[44:45]")

    def gather8(self, label, R, sleep, lowmask, pre=None):
        A = self.A
        A("s_mov_b32 s47, 0")
        A(f"{label}:")
        if pre:
            pre()
        A("s_add_u32 s43, s41, 4096")
        for c in range(8):
            A(f"buffer_load_dwordx4 v[{R+4*c}:{R+3+4*c}], v228, s[48:51], s{41 if c < 4 else 43} offen offset:{1024*(c%4)} {self.xl}")
        for c in range(8):
            A(f"s_waitcnt vmcnt({7-c})")
            if c == 0:
                A(f"v_and_b32 v6, v{R+1}, v{R+3}")
                A(f"v_or_b32 v7, v{R+1}, v{R+3}")
            else:
                A(f"v_bitop3_b32 v6, v6, v{R+4*c+1}, v{R+4*c+3} bitop3:0x80")
                A(f"v_or3_b32 v7, v7, v{R+4*c+1}, v{R+4*c+3}")
                A(f"v_add_f32 v{R}, v{R}, v{R+4*c}")
                A(f"v_add_f32 v{R+2}, v{R+2}, v{R+4*c+2}")
        A("v_xor_b32 v8, s54, v6")
        A("v_xor_b32 v9, s54, v7")
        A(f"v_cmp_lt_u32 vcc, {lowmask}, v8")
        A(f"v_cmp_lt_u32 s[44:45], {lowmask}, v9")
        A("s_add_u32 s47, s47, 1")
        A("s_or_b64 vcc, vcc, s[44:45]")
        A(f"s_cbranch_scc0 {label}_ok")
        if sleep:
            A(f"s_sleep {sleep}")
        A("s_cmp_lt_u32 s47, 0x40000")
        A(f"s_cbranch_scc1 {label}")
        A(f"{label}_ok:")

    def colsum(self, R):
        A = self.A
        A(f"v_add_f32 v{R}, v{R}, v{R+4}")
        A(f"v_add_f32 v{R+2}, v{R+2}, v{R+6}")
        A(f"v_add_f32 v{R+8}, v{R+8}, v{R+12}")
        A(f"v_add_f32 v{R+10}, v{R+10}, v{R+14}")
        A(f"v_add_f32 v{R}, v{R}, v{R+8}")
        A(f"v_add_f32 v{R+2}, v{R+2}, v{R+10}")
        self.nop(2)
        A(f"v_permlane32_swap_b32 v{R}, v{R+2}")
        self.nop(1)
        A(f"v_add_f32 v{R}, v{R}, v{R+2}")
        self.nop(1)
        A(f"v_mov_b32 v{R+2}, v{R}")
        self.nop(2)
        A(f"v_permlane16_swap_b32 v{R}, v{R+2}")
        self.nop(1)
        A(f"v_add_f32 v{R}, v{R}, v{R+2}")
        self.nop(2)
        A(f"v_add_f32_dpp v{R}, v{R}, v{R} row_ror:8 {DPPF}")

    def helper(self):
        A = self.A
        W = self.W
        A("L_helper:")
        A("s_sub_u32 s40, s3, 4                  ; hw")
        A("s_mul_i32 s7, s5, 160")
        A("v_lshl_add_u32 v4, v2, 2, v1          ; 4j+s")
        A("v_lshlrev_b32 v4, 1, v4")
        A("v_lshlrev_b32 v3, 2, v0               ; lane*4")
        A("v_lshlrev_b32 v228, 4, v0             ; lane*16")
        A("s_cmp_eq_u32 s40, 0")
        A("s_cbranch_scc0 L_h_noq")
        A("v_lshlrev_b32 v8, 13, v1")
        A("v_lshl_add_u32 v8, v2, 4, v8          ; s*8192 + j*16")
        A("v_add_u32 v9, 0x8000, v8")
        A("v_add_u32 v10, 0x10000, v8")
        A("v_add_u32 v11, 0x18000, v8")
        A(f"s_mul_i32 s42, s5, {80*8192}")
        A("s_lshl_b32 s43, s4, 8")
        A("s_add_u32 s42, s42, s43")
        A("s_waitcnt lgkmcnt(0)")
        A(f"s_load_dword s54, s[38:39], {WS_E:#x}")
        self.srd(8, 16, 1280)
        self.srd(12, 22, 640 * 8192)
        self.x_issue()
        for n in range(20):
            sl = W + 4 * n
            A(f"buffer_load_dwordx4 v[{sl}:{sl+3}], v{8+n%4}, s[12:15], s42 offen {self.wflag}")
            if n % 4 == 3 and n < 19:
                A("s_add_u32 s42, s42, 0x20000")
        self.stamp(1)
        self.srd(48, 38, WS_SIZE)
        self.masks(12, 6, 44)
        self.gaddr()
        A("s_lshl_b32 s42, s6, 10")
        A(f"s_add_u32 s42, s42, {WS_QN}")
        A("s_and_b32 s41, s42, 0xffffe000")
        A("s_waitcnt vmcnt(20)")
        self.stamp(2)
        self.ln()
        self.stamp(3)
        for n in range(20):
            self.abuild(24, 21 + n // 16, 12, n % 16)
            A(f"s_waitcnt vmcnt({19-n})")
            self.nop(1)
            self.mfma(28, 24, W + 4 * n, None if n == 0 else 28)
        A("s_waitcnt lgkmcnt(0)")
        self.mktag()
        A("s_getreg_b32 s47, hwreg(HW_REG_XCC_ID, 0, 4)")
        A("s_or_b32 s47, s47, s54")
        self.pack(47)
        A(f"buffer_store_dwordx4 v[24:27], v231, s[48:51], s42 offen {self.nst}")
        A(f"s_add_u32 s42, s42, {WS_QF - WS_QN}")
        A("s_waitcnt vmcnt(0)")
        def pre():
            A(f"s_cmp_lt_u32 s47, {self.xfast}")
            A("s_cbranch_scc1 L_q_keep")
            A(f"s_xor_b32 s41, s41, {WS_QF ^ WS_QN}")
            A(f"s_cmp_eq_u32 s47, {self.xfast}")
            A("s_cbranch_scc0 L_q_keep")
            A("buffer_store_dwordx4 v[24:27], v231, s[48:51], s42 offen sc1")
            A("L_q_keep:")
        self.gather8("L_q_x", 160, self.qsleep, 15, pre)
        A("v_xor_b32 v7, v6, v7")
        A("v_cvt_pk_bf16_f32 v8, v160, v162")
        A(f"ds_write_b32 v3, v8 offset:{L_Q}")
        A("v_mov_b32 v6, s54")
        A("v_mov_b32 v8, 0")
        A(f"ds_write_b64 v8, v[6:7] offset:{L_TAG}")
        A("v_readfirstlane_b32 s57, v7")
        A("s_cmp_eq_u32 s57, 0")
        A("s_cbranch_scc1 L_q_near")
        A("buffer_store_dwordx4 v[24:27], v231, s[48:51], s42 offen sc1")
        A("L_q_near:")
        A("s_waitcnt lgkmcnt(0)")
        self.stamp(4)
        A("s_barrier")
        A("s_branch L_h_shadow")
        A("L_h_noq:")
        if self.pad:
            A("s_cmp_eq_u32 s40, 2")
            A("s_cbranch_scc1 L_pad")
            A("L_pad_ret:")
        A("s_waitcnt lgkmcnt(0)")
        self.srd(8, 16, 1280)
        self.srd(48, 38, WS_SIZE)
        A("s_cmp_eq_u32 s40, 1")
        A("s_cbranch_scc1 L_ffn")
        if self.ewarm:
            A("s_cmp_eq_u32 s40, 3")
            A("s_cbranch_scc0 L_h_shadow")
            A(f"s_mul_i32 s59, s5, {32*640}")
            A("s_mul_i32 s41, s4, 640")
            A("s_add_u32 s59, s59, s41")
            A(f"s_add_u32 s41, s59, {WS_GP}")
            A(f"s_add_u32 s59, s59, {WS_U}")
            A("s_mov_b32 exec_hi, 0xff")
            A("buffer_load_dwordx4 v[8:11], v228, s[48:51], s59 offen")
            if self.ewarm & 2:
                A("buffer_load_dwordx4 v[12:15], v228, s[48:51], s41 offen")
            A("s_mov_b64 exec, -1")
        A("L_h_shadow:")
        self.gaddr()
        self.srd(12, 24, 4096 * 1280)
        A("v_mul_u32_u24 v36, 10240, v1")
        A("v_lshl_add_u32 v36, v2, 4, v36")
        A("v_mov_b32 v37, 0x7fffffff")
        A("s_mov_b32 s44, 0x03ff03ff"); A("s_mov_b32 s45, 0x03ff03ff")
        A("v_cndmask_b32 v239, v37, v36, s[44:45]")
        A("s_lshl_b32 s46, s4, 2")
        A("s_add_u32 s46, s46, s40               ; 4h + hw")
        A(f"s_mul_i32 s46, s46, {32*1280}")
        A("s_mul_i32 s47, s5, 160")
        A("s_add_u32 s46, s46, s47")
        def wo_issue(lo, hi, full):
            for e in range(lo, hi):
                sl = W + (16 if e & 1 else 0) + 4 * (e // 2)
                if e % 2 == 0 and e > 0:
                    A("s_add_u32 s46, s46, 2560")
                A(f"buffer_load_dwordx4 v[{sl}:{sl+3}], v239, s[12:15], s46 offen offset:{1280*(e&1)} {self.wflag}")
        def wo_perm():
            A("s_mov_b32 s44, 0x05040100")
            A("s_mov_b32 s45, 0x07060302")
            E = lambda i, c: W + 4 * i + c
            O = lambda i, c: W + 16 + 4 * i + c
            if self.wolate:
                for c in range(4):
                    for i in range(4):
                        A(f"v_perm_b32 v{192+4*c+i}, v{O(i,c)}, v{E(i,c)}, s44")
                        A(f"v_perm_b32 v{208+4*c+i}, v{O(i,c)}, v{E(i,c)}, s45")
                return
            for i in range(4):
                A(f"v_perm_b32 v16, v{O(i,i)}, v{E(i,i)}, s44")
                A(f"v_perm_b32 v{O(i,i)}, v{O(i,i)}, v{E(i,i)}, s45")
                A(f"v_mov_b32 v{E(i,i)}, v16")
                for c in range(i + 1, 4):
                    A(f"v_perm_b32 v16, v{O(i,c)}, v{E(i,c)}, s44")
                    A(f"v_perm_b32 v17, v{O(i,c)}, v{E(i,c)}, s45")
                    A(f"v_perm_b32 v{E(i,c)}, v{O(c,i)}, v{E(c,i)}, s44")
                    A(f"v_perm_b32 v{O(i,c)}, v{O(c,i)}, v{E(c,i)}, s45")
                    A(f"v_mov_b32 v{E(c,i)}, v16")
                    A(f"v_mov_b32 v{O(c,i)}, v17")
        NE = 8 - self.wolate
        wo_issue(0, NE, True)
        A("s_cmp_lt_u32 s40, 2")
        A("s_cbranch_scc1 L_h_nobar")
        A("s_barrier")
        self.gettag()
        A("L_h_nobar:")
        A("s_waitcnt vmcnt(0)")
        self.stamp(5)
        if not self.wolate:
            wo_perm()
        self.stamp(6)
        A("v_mov_b32 v227, 0")
        A("s_mov_b32 s55, 0")
        if self.fb:
            A("s_cmp_eq_u32 s40, 2")
            A("s_cbranch_scc1 L_pacer")
        A("s_cmp_eq_u32 s40, 3")
        A("s_cselect_b32 s41, s2, 0")
        A(f"s_cmp_ge_u32 s41, {CONS0}")
        A("s_cbranch_scc0 L_h_nocons")
        A("s_mov_b32 s55, 1")
        self.srd(60, 34, 1280)
        A(f"s_sub_u32 s52, s2, {CONS0}")
        A("s_lshl_b32 s53, s52, 5")
        A("v_and_b32 v6, 7, v0")
        A("v_lshrrev_b32 v7, 5, v0")
        A("v_lshl_add_u32 v229, v6, 1, v7")
        A("v_lshlrev_b32 v229, 1, v229           ; (2t + half)*2")
        A("v_lshrrev_b32 v230, 3, v0")
        A("v_mul_u32_u24 v230, 2560, v230")
        A("v_lshl_add_u32 v230, v6, 4, v230      ; g*2560 + t*16")
        A("s_mul_i32 s42, s52, 52")
        A("s_lshr_b32 s42, s42, 8")
        A(f"s_mul_i32 s42, s42, {32*640 - 640}")
        A("s_lshl_b32 s52, s52, 7")
        A("s_add_u32 s52, s52, s42")
        A(f"s_add_u32 s56, s52, {WS_GP}")
        A(f"s_add_u32 s52, s52, {WS_U}")
        gpl = [f"buffer_load_dwordx4 v[{8+4*i}:{11+4*i}], v230, s[48:51], s56 offen offset:{640*i} sc1" for i in range(4)]
        def gcalc():
            self.colsum(8)
            self.bfr(8, 8)
            A(f"v_mul_f32 v9, {LOG2E | 0x80000000:#x}, v8")
            A("v_exp_f32 v9, v9")
            self.nop(1)
            A("v_add_f32 v9, 1.0, v9")
            A("v_rcp_f32 v9, v9")
            self.nop(1)
            A("v_mul_f32 v8, v8, v9")
            self.bfr(224, 8)
        if not self.gplate or self.rwarm:
            self.lds_wait("L_h_trigA", 227, L_FLAG, "s_cmp_ge_u32", 1 if not self.gplate else 12, 100)
        A("buffer_load_ushort v225, v229, s[8:11], s53 offen")
        if self.rwarm:
            fl = self.rwarm.strip("_")
            for i in range(4):
                A(f"buffer_load_dwordx4 v[{128+4*i}:{131+4*i}], v230, s[48:51], s52 offen offset:{640*i} {fl}")
                A(f"buffer_load_dwordx4 v[{144+4*i}:{147+4*i}], v230, s[48:51], s56 offen offset:{640*i} {fl}")
        if not self.gplate:
            self.tpoll("L_c_gp", gpl, range(9, 24, 2), sleep=100)
            gcalc()
        A("s_waitcnt vmcnt(0)")
        A("v_lshlrev_b32 v225, 16, v225")
        A("L_h_nocons:")
        self.stamp(7)
        A("v_bfe_u32 v6, v0, 3, 2                ; w")
        A("v_and_b32 v7, 7, v0                   ; t")
        A("v_lshlrev_b32 v232, 9, v6")
        A("v_lshl_add_u32 v232, v7, 4, v232")
        A("s_lshl_b32 s7, s40, 7")
        A("v_add_u32 v232, s7, v232")
        A("v_lshlrev_b32 v233, 2, v6             ; w*4")
        A("v_lshl_add_u32 v234, v7, 1, v1")
        A("v_lshlrev_b32 v234, 4, v234")
        A("s_lshl_b32 s58, s6, 10")
        A("s_lshl_b32 s7, s40, 8")
        A("s_add_u32 s58, s58, s7")
        A("s_lshl_b32 s43, s4, 13")
        A("s_add_u32 s43, s43, s7")
        A("v_lshrrev_b32 v6, 2, v2               ; a")
        A("v_and_b32 v7, 3, v2                   ; b")
        A("v_lshlrev_b32 v235, 11, v6")
        A("v_lshl_add_u32 v235, v1, 6, v235")
        A("v_lshl_add_u32 v235, v7, 4, v235      ; a*2048 + s*64 + b*16")
        A("v_lshlrev_b32 v236, 5, v6             ; a*32")
        A("s_lshl_b32 s41, s4, 7")
        A(f"s_add_u32 s41, s41, {WS_ML}")
        A("v_lshl_add_u32 v237, v2, 1, v1")
        A("s_mul_i32 s7, s40, 320")
        A("v_lshl_add_u32 v237, v237, 4, s7")
        A("v_lshlrev_b32 v238, 3, v0             ; lane*8")
        A(f"s_mul_i32 s59, s5, {32*640}")
        A("s_mul_i32 s7, s4, 640")
        A("s_add_u32 s59, s59, s7")
        A(f"s_add_u32 s59, s59, {WS_U}")
        A("v_lshlrev_b32 v4, 2, v0")
        if self.warm:
            for r in range(4):
                A(f"v_not_b32 v{40+r}, s54")
            if self.warm & 1:
                A("s_cmp_eq_u32 s40, 0")
                A("s_cbranch_scc0 L_h_nowarm")
                A("s_mov_b32 exec_hi, 0xff")
                A("buffer_store_dwordx4 v[40:43], v228, s[48:51], s59 offen sc1")
                A("s_mov_b64 exec, -1")
                A("L_h_nowarm:")
            A("s_waitcnt vmcnt(0)")
        A("s_mov_b32 s47, 0")
        A("L_h_trigB:")
        A(f"ds_read_b128 v[8:11], v227 offset:{L_FLAG}")
        A("s_waitcnt lgkmcnt(0)")
        A("v_min_u32 v8, v8, v9")
        A("v_min3_u32 v8, v8, v10, v11")
        A("s_add_u32 s47, s47, 1")
        A("v_readfirstlane_b32 s42, v8")
        A("s_cmp_ge_u32 s42, 16")
        A("s_cbranch_scc1 L_h_trigB_ok")
        A(f"s_sleep {self.bsleep}")
        A("s_cmp_lt_u32 s47, 0x100000")
        A("s_cbranch_scc1 L_h_trigB")
        A("L_h_trigB_ok:")
        wo_issue(NE, 8, True)
        A(f"ds_read_b128 v[8:11], v227 offset:{L_MW}")
        A(f"ds_read_b32 v19, v233 offset:{L_MW}")
        for w in range(4):
            A(f"ds_read_b32 v{12+w}, v4 offset:{L_LL+256*w}")
        A("s_waitcnt lgkmcnt(0)")
        A("v_max3_f32 v20, v8, v9, v10")
        A("v_max_f32 v20, v20, v11")
        A("v_sub_f32 v19, v19, v20")
        A(f"v_mul_f32 v19, {LOG2E:#x}, v19")
        A("v_exp_f32 v19, v19")
        A("s_cmp_eq_u32 s40, 1")
        A("s_cbranch_scc0 L_h_noml")
        for w in range(4):
            A(f"v_sub_f32 v{8+w}, v{8+w}, v20")
            A(f"v_mul_f32 v{8+w}, {LOG2E:#x}, v{8+w}")
            A(f"v_exp_f32 v{8+w}, v{8+w}")
        A("v_mul_f32 v22, v8, v12")
        for w in range(1, 4):
            A(f"v_fmac_f32 v22, v{8+w}, v{12+w}")
        self.wave_reduce("v_add_f32", 22, 21)
        A("v_mov_b32 v21, s54")
        A("v_mov_b32 v23, s54")
        A("s_lshl_b32 s7, s6, 4")
        A(f"s_add_u32 s7, s7, {WS_ML}")
        A("s_mov_b64 exec, 1")
        self.nearfar("ml", "buffer_store_dwordx4 v[20:23], off, s[48:51], s7")
        A("s_mov_b64 exec, -1")
        A("L_h_noml:")
        self.stamp(8)
        A("v_mov_b32 v41, s54")
        A("v_mov_b32 v43, s54")
        self.stamp(9)
        A("s_barrier")
        self.stamp(10)
        A(f"ds_read_b128 v[8:11], v232 offset:{L_O}")
        mll = [f"buffer_load_dwordx4 v[{24+4*x}:{27+4*x}], v236, s[48:51], s41 offen offset:{16*x} {self.ol}" for x in range(2)]
        ol = [f"buffer_load_dwordx4 v[{32+4*x}:{35+4*x}], v235, s[48:51], s43 offen offset:{1024*x} {self.ol}" for x in range(2)]
        for t in mll:
            A(t)
        A("s_waitcnt lgkmcnt(0)")
        for r in range(4):
            A(f"v_mul_f32 v{8+r}, v19, v{8+r}")
        for r in range(4):
            A(f"v_add_f32_dpp v{8+r}, v{8+r}, v{8+r} row_ror:8 {DPPF}")
        A("s_mov_b32 s44, 0x00ff00ff")
        A("s_mov_b32 s45, 0")
        A("v_permlane16_swap_b32 v8, v10")
        A("v_permlane16_swap_b32 v9, v11")
        self.nop(1)
        A("v_add_f32 v40, v8, v10")
        A("v_add_f32 v42, v9, v11")
        A("s_mov_b64 exec, s[44:45]")
        self.nearfar("o", "buffer_store_dwordx4 v[40:43], v234, s[48:51], s58 offen")
        A("s_mov_b64 exec, -1")
        for t in ol:
            A(t)
        def weights():
            if self.wolate:
                A("s_waitcnt vmcnt(5)")
                wo_perm()
            A("s_waitcnt vmcnt(3)")
            self.tagcheck([25, 27, 29, 31])
            A("v_max_f32 v18, v24, v28")
            A("s_cbranch_scc1 L_h_mlwait")
            A("L_h_mlok:")
            for r in (4, 8):
                self.nop(2 if r > 4 else 1)
                A(f"v_max_f32_dpp v18, v18, v18 row_ror:{r} {DPPF}")
            A("v_sub_f32 v16, v24, v18")
            A("v_sub_f32 v17, v28, v18")
            A(f"v_mul_f32 v16, {LOG2E:#x}, v16")
            A(f"v_mul_f32 v17, {LOG2E:#x}, v17")
            A("v_exp_f32 v16, v16")
            A("v_exp_f32 v17, v17")
            A("v_mul_f32 v18, v26, v16")
            A("v_fmac_f32 v18, v30, v17")
            for r in (4, 8):
                self.nop(2)
                A(f"v_add_f32_dpp v18, v18, v18 row_ror:{r} {DPPF}")
            A("v_rcp_f32 v18, v18")
            A("s_mov_b32 s47, 0")
            A("v_mul_f32 v16, v16, v18")
            A("v_mul_f32 v17, v17, v18")
        self.tpoll("L_h_o", ol, [33, 35, 37, 39], sleep=self.osleep, first=weights, issued=True)
        self.stamp(11)
        if self.gplate:
            A("s_cmp_eq_u32 s40, 1")
            A("s_cbranch_scc1 L_h_gpst")
            A("L_h_gpst_done:")
        A("v_mul_f32 v32, v16, v32")
        A("v_mul_f32 v34, v16, v34")
        A("v_fmac_f32 v32, v17, v36")
        A("v_fmac_f32 v34, v17, v38")
        for r in (4, 8):
            self.nop(1)
            A(f"v_add_f32_dpp v32, v32, v32 row_ror:{r} {DPPF}")
            A(f"v_add_f32_dpp v34, v34, v34 row_ror:{r} {DPPF}")
        A("v_cvt_pk_bf16_f32 v32, v32, v34")
        A("s_mov_b32 s44, 0xffff0000"); A("s_mov_b32 s45, 0xffff0000")
        for r in range(4):
            A(f"v_mov_b32_dpp v{28+r}, v32 quad_perm:[{r},{r},{r},{r}] {DPPF}")
        self.nop(2)
        B = lambda t: (192 if self.wolate else W) + (16 if t & 1 else 0) + 4 * (t // 2)
        for t in (0, 4, 1, 5, 2, 6, 3, 7):
            self.mfma(96 + 4 * t, 28, B(t), None)
        A("s_mov_b32 exec_lo, 0x03ff03ff")
        A("s_mov_b32 exec_hi, 0")
        for t in range(4):
            if t > 0:
                self.nop(1)
            A(f"v_cndmask_b32 v{20+t}, v{96+4*t}, v{112+4*t}, s[44:45]")
        A(f"ds_write_b128 v237, v[20:23] offset:{L_X}")
        A("s_mov_b64 exec, -1")
        A("s_waitcnt lgkmcnt(0)")
        A("s_barrier")
        A("s_cmp_eq_u32 s40, 0")
        A("s_cbranch_scc0 L_h_nou")
        for k in range(4):
            A(f"ds_read_b64 v[{8+2*k}:{9+2*k}], v238 offset:{L_X+320*k}")
        A("s_mov_b32 exec_lo, -1")
        A("s_mov_b32 exec_hi, 0xff")
        A("s_waitcnt lgkmcnt(2)")
        A("v_add_f32 v8, v8, v10")
        A("v_add_f32 v9, v9, v11")
        A("s_waitcnt lgkmcnt(0)")
        A("v_add_f32 v12, v12, v14")
        A("v_add_f32 v13, v13, v15")
        A("v_add_f32 v40, v8, v12")
        A("v_add_f32 v42, v9, v13")
        A(f"buffer_store_dwordx4 v[40:43], v228, s[48:51], s59 offen {self.uflag}")
        A("L_h_nou:")
        self.stamp(12)
        A("s_cmp_eq_u32 s55, 1")
        A("s_cbranch_scc0 L_h_end")
        NP = self.npipe
        SZ = 32 if self.gplate else 16
        NL = SZ // 4
        def uload(p):
            for i in range(4):
                A(f"buffer_load_dwordx4 v[{128+SZ*p+4*i}:{131+SZ*p+4*i}], v230, s[48:51], s52 offen offset:{640*i} {self.lflag}")
            if self.gplate:
                for i in range(4):
                    A(f"buffer_load_dwordx4 v[{144+SZ*p+4*i}:{147+SZ*p+4*i}], v230, s[48:51], s56 offen offset:{640*i} sc1")
        A("s_mov_b32 s47, 0")
        for p in range(NP):
            uload(p)
            if p < NP - 1 and self.gap:
                A(f"s_sleep {self.gap}")
        A("L_c_u:")
        for p in range(NP):
            A(f"s_waitcnt vmcnt({NL*(NP-1)})")
            self.tagcheck(range(129 + SZ * p, 128 + SZ * (p + 1), 2))
            A(f"s_cbranch_scc0 L_c_u{p}")
            if NP == 1 and self.usleep:
                A(f"s_sleep {self.usleep}")
            uload(p)
        A("s_cmp_lt_u32 s47, 0x40000")
        A("s_cbranch_scc1 L_c_u")
        for p in range(NP - 1, -1, -1):
            A(f"L_c_u{p}:")
            self.stamp(13)
            R = 128 + SZ * p
            if self.gplate:
                G = R + 16
                for X in (G, R):
                    A(f"v_add_f32 v{X}, v{X}, v{X+4}")
                    A(f"v_add_f32 v{X+2}, v{X+2}, v{X+6}")
                    A(f"v_add_f32 v{X+8}, v{X+8}, v{X+12}")
                    A(f"v_add_f32 v{X+10}, v{X+10}, v{X+14}")
                    A(f"v_add_f32 v{X}, v{X}, v{X+8}")
                    A(f"v_add_f32 v{X+2}, v{X+2}, v{X+10}")
                A(f"v_permlane32_swap_b32 v{G}, v{G+2}")
                self.nop(1)
                A(f"v_permlane32_swap_b32 v{R}, v{R+2}")
                A(f"v_add_f32 v{G}, v{G}, v{G+2}")
                A(f"v_add_f32 v{R}, v{R}, v{R+2}")
                self.nop(2)
                A(f"v_permlane16_swap_b32 v{G}, v{R}")
                self.nop(1)
                A(f"v_add_f32 v{G}, v{G}, v{R}")
                self.nop(2)
                A(f"v_add_f32_dpp v{G}, v{G}, v{G} row_ror:8 {DPPF}")
                self.bfr(8, G)
                A(f"v_mul_f32 v9, {LOG2E | 0x80000000:#x}, v8")
                A("v_mov_b32 v24, v8")
                A("v_exp_f32 v9, v9")
                A("v_mov_b32 v25, v8")
                A("v_add_f32 v9, 1.0, v9")
                A("v_rcp_f32 v9, v9")
                A("v_permlane16_swap_b32 v25, v24")
                A("v_mul_f32 v8, v8, v9")
                self.bfr(224, 8)
            else:
                self.colsum(R)
                self.bfr(24, R)
            A("v_mul_f32 v24, v24, v224")
            self.bfr(24, 24)
            A("v_add_f32 v24, v24, v225")
            A("v_cvt_pk_bf16_f32 v24, v24, v24")
            A("s_mov_b32 exec_lo, 0xff")
            A("s_mov_b32 exec_hi, 0xff")
            A("buffer_store_short v24, v229, s[60:63], s53 offen")
            if p > 0:
                A("s_branch L_c_fin")
        A("L_c_fin:")
        A(f"s_cmp_eq_u32 s2, {CONS0}")
        A("s_cbranch_scc0 L_h_end")
        A(f"s_mov_b32 s47, {WS_E:#x}")
        A("s_mov_b64 exec, 1")
        A("buffer_store_dword v41, off, s[48:51], s47 sc1")
        A("L_h_end:")
        if self.spin is not None:
            A(f"s_cmp_eq_u32 s2, {self.spin}")
            A("s_cbranch_scc0 L_nospin")
            A("L_spin:")
            A("s_memrealtime s[98:99]")
            A("s_waitcnt lgkmcnt(0)")
            A("s_sub_u32 s98, s98, s100")
            A("s_cmp_lt_u32 s98, 10000")
            A("s_cbranch_scc1 L_spin")
            A("L_nospin:")
        self.stamp(14)
        if self.diag:
            for _ in range(3):
                A("s_sleep 127")
        self.flush_stamps(15)
        A("s_endpgm")
        if self.gplate:
            A("L_h_gpst:")
            A("s_mov_b32 exec_lo, 0x03ff03ff")
            A("s_mov_b32 exec_hi, 0x03ff03ff")
            A("buffer_store_dwordx4 v[240:243], v231, s[48:51], s56 offen sc1")
            A("s_mov_b64 exec, -1")
            A("s_branch L_h_gpst_done")
        A("L_h_mlwait:")
        self.tpoll("L_h_ml", mll, [25, 27, 29, 31], sleep=self.mlsleep)
        for t in ol:
            A(t)
        A("v_max_f32 v18, v24, v28")
        A("s_branch L_h_mlok")
        self.ffn()
        if self.fb:
            self.pacer()

    def pacer(self):
        A = self.A
        A("L_pacer:")
        A("v_mov_b32 v4, 0")
        A(f"s_mov_b32 s52, {self.cp0}")
        A(f"s_mov_b32 s53, {WS_TS}")
        A("v_mov_b32 v9, s54")
        A("L_p_loop:")
        self.lds_wait("L_p_w0", 4, L_PROG, "s_cmp_ge_u32", "s52", 8)
        A(f"ds_read_b32 v8, v4 offset:{L_PROG+4}")
        A("s_lshl_b32 s41, s2, 3")
        A("s_add_u32 s41, s41, s53")
        A(f"s_add_u32 s52, s52, {self.cplag}")
        A("s_waitcnt lgkmcnt(0)")
        A("v_readfirstlane_b32 s43, v8")
        A("s_cmp_lt_u32 s2, 32")
        A("s_cbranch_scc0 L_p_nopub")
        A("s_mov_b64 exec, 1")
        A("buffer_store_dwordx2 v[8:9], off, s[48:51], s41 sc1")
        A("s_mov_b64 exec, -1")
        A("L_p_nopub:")
        self.lds_wait("L_p_w1", 4, L_PROG, "s_cmp_ge_u32", "s52", 8)
        A("s_mov_b32 s44, 0")
        A("L_p_sum:")
        A("s_load_dwordx16 s[16:31], s[38:39], s53")
        A("s_add_u32 s53, s53, 64")
        A("s_waitcnt lgkmcnt(0)")
        for i in range(8):
            A(f"s_sub_u32 s41, s{16+2*i}, s43")
            A(f"s_cmp_eq_u32 s{17+2*i}, s54")
            A(f"s_cselect_b32 s41, s41, {self.cplag * self.tau}")
            A("s_add_u32 s44, s44, s41")
        A("s_and_b32 s41, s53, 0xff")
        A("s_cbranch_scc1 L_p_sum")
        A("s_ashr_i32 s44, s44, 5")
        A("s_add_u32 s44, s44, s43")
        A("v_mov_b32 v7, s44")
        A(f"ds_write_b32 v4, v7 offset:{L_ANCH}")
        A(f"s_add_u32 s52, s52, {self.cpd - self.cplag}")
        A(f"s_cmp_lt_u32 s52, {self.cp0 + self.ncp * self.cpd}")
        A("s_cbranch_scc1 L_p_loop")
        A("s_branch L_h_nocons")

    def gaddr(self):
        A = self.A
        A("v_lshrrev_b32 v6, 1, v1")
        A("v_and_b32 v7, 1, v1")
        A("v_lshl_add_u32 v6, v7, 1, v6")
        A("v_lshl_add_u32 v6, v2, 2, v6")
        A("v_lshlrev_b32 v231, 4, v6")

    def gettag(self):
        A = self.A
        A("v_mov_b32 v6, 0")
        A(f"ds_read_b64 v[6:7], v6 offset:{L_TAG}")
        A("s_waitcnt lgkmcnt(0)")
        A("v_readfirstlane_b32 s54, v6")
        A("v_readfirstlane_b32 s57, v7")

    def ffn(self):
        A = self.A
        W = self.W
        A("L_ffn:")
        self.gaddr()
        A(f"s_mul_i32 s56, s5, {32*640}")
        A("s_mul_i32 s47, s4, 640")
        A("s_add_u32 s56, s56, s47")
        A(f"s_add_u32 s56, s56, {WS_GP}")
        A(f"s_cmp_lt_u32 s4, {NFH}")
        A("s_cbranch_scc1 L_f_go")
        A("s_barrier")
        self.gettag()
        for r in range(4):
            A(f"v_mov_b32 v{28+r}, 0")
        A("s_branch L_f_pub")
        A("L_f_go:")
        self.x_issue()
        A("s_mov_b32 s44, 0xff00ff00"); A("s_mov_b32 s45, 0xff00ff00")
        A("v_mov_b32 v38, s28"); A("v_mov_b32 v39, s29")
        A("v_mov_b32 v8, s30"); A("v_mov_b32 v9, s31")
        A("v_cndmask_b32 v38, v38, v8, s[44:45]")
        A("v_cndmask_b32 v39, v39, v9, s[44:45]")
        A("v_and_b32 v8, 7, v0")
        A("v_lshlrev_b32 v8, 4, v8")
        A("v_mul_u32_u24 v9, 3456, v1")
        A("v_add_u32 v8, v8, v9")
        A(f"s_mul_i32 s47, s5, {80*3456}")
        A("s_lshl_b32 s41, s4, 7")
        A("s_add_u32 s47, s47, s41")
        A("v_add_u32 v8, s47, v8")
        A("v_mov_b32 v9, 0")
        A("v_lshl_add_u64 v[38:39], v[38:39], 0, v[8:9]")
        A("s_mov_b32 s42, 13824"); A("s_mov_b32 s43, 0")
        for i in range(20):
            sl = W + 4 * i
            A(f"global_load_dwordx4 v[{sl}:{sl+3}], v[38:39], off {self.wflag}")
            A("v_lshl_add_u64 v[38:39], v[38:39], 0, s[42:43]")
        self.srd(12, 32, 1728 * 1280)
        A("v_mul_u32_u24 v36, 1280, v1")
        A("v_lshl_add_u32 v36, v2, 4, v36")
        A("v_mov_b32 v37, 0x7fffffff")
        A("s_mov_b32 s44, 0x03ff03ff"); A("s_mov_b32 s45, 0x03ff03ff")
        A("v_cndmask_b32 v36, v37, v36, s[44:45]")
        A(f"s_mul_i32 s46, s4, {64*1280}")
        A("s_add_u32 s46, s46, s7")
        for n in range(16):
            sl = 144 + 4 * n
            A(f"buffer_load_dwordx4 v[{sl}:{sl+3}], v36, s[12:15], s46 offen {self.wflag}")
            A(f"s_add_u32 s46, s46, {4*1280}")
        A("s_barrier")
        self.gettag()
        self.masks(12, 6, 44)
        A("s_waitcnt vmcnt(36)")
        self.ln()
        for n in range(20):
            self.abuild(24, 21 + n // 16, 12, n % 16)
            A(f"s_waitcnt vmcnt({35-n})")
            self.nop(1)
            self.mfma(28, 24, W + 4 * n, None if n == 0 else 28)
        A("s_lshl_b32 s42, s6, 10")
        A(f"s_add_u32 s42, s42, {WS_FX}")
        A("s_and_b32 s41, s42, 0xffffe000")
        self.nop(2)
        self.pack(54)
        self.nearfar("fx", "buffer_store_dwordx4 v[24:27], v231, s[48:51], s42 offen")
        A("s_waitcnt vmcnt(0)")
        A("s_sleep 16")
        R = 64
        self.gather8("L_f_x", R, 16, 0)
        self.bfr(R, R)
        self.bfr(R + 2, R + 2)
        A(f"v_mov_b32 v{R+1}, v{R}")
        A(f"v_mov_b32 v{R+3}, v{R+2}")
        self.nop(2)
        A(f"v_permlane32_swap_b32 v{R}, v{R+1}")
        A(f"v_permlane32_swap_b32 v{R+2}, v{R+3}")
        self.nop(1)
        A(f"v_max_f32 v{R}, 0, v{R}")
        A(f"v_max_f32 v{R+2}, 0, v{R+2}")
        A(f"v_mul_f32 v{R}, v{R}, v{R+1}")
        A(f"v_mul_f32 v{R+2}, v{R+2}, v{R+3}")
        A(f"v_cvt_pk_bf16_f32 v{R}, v{R}, v{R}")
        A(f"v_cvt_pk_bf16_f32 v{R+1}, v{R+2}, v{R+2}")
        A("v_lshlrev_b32 v6, 3, v0")
        A("v_and_b32 v6, 0xff, v6                ; (lane&31)*8")
        A(f"ds_write_b64 v6, v[{R}:{R+1}] offset:{L_H}")
        A("v_lshlrev_b32 v6, 1, v4               ; (4j+s)*4")
        A(f"ds_read_b32 v21, v6 offset:{L_H}")
        A("s_waitcnt lgkmcnt(0)")
        for n in range(16):
            self.abuild(24, 21, 12, n)
            self.nop(2)
            self.mfma(28, 24, 144 + 4 * n, None if n == 0 else 28)
        self.nop(4)
        A("L_f_pub:")
        self.pack(54)
        if self.gplate:
            for r in range(4):
                A(f"v_mov_b32 v{240+r}, v{24+r}")
            A("s_branch L_h_shadow")
            return
        A("s_mov_b32 exec_lo, 0x03ff03ff")
        A("s_mov_b32 exec_hi, 0x03ff03ff")
        A("buffer_store_dwordx4 v[24:27], v231, s[48:51], s56 offen sc1")
        A("s_mov_b64 exec, -1")
        A("s_branch L_h_shadow")


if __name__ == "__main__":
    out = sys.argv[1]
    kw = eval("dict(" + (sys.argv[2] if len(sys.argv) > 2 else "") + ")")
    open(out, "w").write(Gen(**kw).gen())
```

```python
import sys
from gen_kernel import NAME, LOG2E, SCALE, DPPF
from gen6 import Gen as G6

WS_O = 0
WS_ML = 0x40000
WS_U = 0x50000
WS_GP = 0x80000
WS_TS = 0xF8000
WS_E = 0xFC000
WS_QN = 0x200000
WS_QF = 0x240000
WS_FX = 0x280000
WS_SIZE = 0x300000
L_Q = 16640
L_MW = L_Q + 256
L_FLAG = L_MW + 16
L_TAG = L_FLAG + 16
L_PROG = L_TAG + 8
L_ANCH = L_PROG + 8
L_LL = L_ANCH + 16
L_O = L_LL + 1024
L_X = L_O + 2048
L_H = L_X + 1280
L_END = L_H + 512
NFH = 27
CONS0 = 216
import gen6
gen6.L_ANCH, gen6.L_PROG = L_ANCH, L_PROG


class Gen(G6):
    def __init__(self, npipe=3, gap=2, warm=0, uflag='sc1', gplate=False, rwarm='', lflag='sc1', xl='sc1 nt', perm=0, ol='sc1 nt', nst='', ewarm=3, comp=False, lay=True, wolate=6, bsleep=3, pad=True, probe=None, **kw):
        kw.setdefault("N1", 24); kw.setdefault("N0", 30); kw.setdefault("xfast", 6); kw.setdefault("flagstep", 8); kw.setdefault("DL", 4); kw.setdefault("theta2", -70)
        super().__init__(**kw)
        self.npipe, self.gap, self.warm, self.uflag = npipe, gap, warm, uflag
        self.gplate, self.rwarm, self.lflag, self.xl, self.perm = gplate, rwarm, lflag, xl, perm
        self.ol, self.nst, self.ewarm = ol, nst, ewarm
        self.comp = comp
        self.lay = lay
        self.pad = pad
        self.probe = probe
        self.steady = False
        self.wolate, self.bsleep = wolate, bsleep
        if lay:
            self.NB = self.NS

    def gen(self):
        txt = super().gen()
        if self.pad:
            a = txt.index("L_streamer:\n"); b = txt.index("  s_branch L_post\n") + len("  s_branch L_post\n")
            blk = txt[a:b]
            txt = txt[:a] + txt[b:]
            f = txt.index("L_ffn:\n")
            txt = txt[:f] + blk + txt[f:]
        ld = "  s_load_dwordx16 s[16:31], s[0:1], 0\n  s_load_dwordx8 s[32:39], s[0:1], 64\n"
        txt = txt.replace(ld, "", 1)
        txt = txt.replace("  s_cmp_ge_u32 s2, 256\n", ld + "  s_cmp_ge_u32 s2, 256\n", 1)
        if self.perm == 1:
            txt = txt.replace("L_go:\n", "L_go:\n  s_lshl_b32 s4, s2, 3\n  s_lshr_b32 s2, s2, 5\n  s_or_b32 s2, s2, s4\n  s_and_b32 s2, s2, 255\n", 1)
        if self.perm == 2:
            txt = txt.replace("L_go:\n", "L_go:\n  s_lshr_b32 s4, s2, 3\n  s_and_b32 s4, s4, 1\n  s_xor_b32 s2, s2, s4\n", 1)
        return txt.replace(f"lds={gen6.L_END}", f"lds={L_END}")

    def setdeep(self, sreg, fb=False, base=0):
        A = self.A
        if not (fb and self.fb) or self.LA == self.D:
            return super().setdeep(sreg, fb, base)
        st = self.tau / 16.0
        A("s_waitcnt lgkmcnt(0)")
        A("v_readfirstlane_b32 s66, v59")
        A(f"s_add_u32 s67, s15, {base}")
        A(f"s_mul_i32 s68, s67, {self.tau}")
        A("s_sub_u32 s68, s64, s68")
        if self.comp:
            if self.DL:
                A(f"s_mul_i32 s69, s69, {round((self.D - self.DL) * st)}")
                A("s_sub_u32 s68, s68, s69")
            A(f"s_andn2_b32 s69, {round((self.LA - self.D) * st)}, vcc_lo")
            A("s_sub_u32 s68, s68, s69")
        A("v_mov_b32 v58, s67")
        A("v_mov_b32 v59, s68")
        A(f"ds_write_b64 v57, v[58:59] offset:{L_PROG}")
        A("s_sub_u32 s68, s68, s66")
        if self.DL:
            A(f"s_add_u32 s69, s68, 2000")
            A(f"s_cmp_lt_u32 s69, {2000 + self.theta2}")
            A("s_cselect_b32 s69, 1, 0")
        else:
            A("s_mov_b32 s69, 0")
        A(f"s_cmp_gt_i32 s68, {self.theta}")
        A("s_cselect_b64 vcc, -1, 0")
        if self.kmask or self.vmask:
            A(f"s_bitcmp1_b32 s{sreg}, s15")
            A("s_cselect_b64 vcc, -1, vcc")
        if self.diag:
            A("s_mov_b32 m0, s67")
            A("v_writelane_b32 v55, s64, m0")
            A("s_and_b32 s66, vcc_lo, 2")
            A("s_or_b32 s66, s66, s69")
            A("v_writelane_b32 v54, s66, m0")
        if self.DL:
            A("s_cmp_eq_u32 s69, 0")

    def stamp(self, i):
        if self.probe is not None and self.probe == i and getattr(self, "inhelper", False):
            self.A("s_memrealtime s[96:97]")
        super().stamp(i)

    def dwait(self):
        A = self.A
        if not self.steady:
            A(f"s_waitcnt vmcnt({self.D-1})")
            return
        self.uid += 1
        A(f"s_waitcnt vmcnt({self.LA-1})")
        A(f"s_cbranch_vccnz L_dw{self.uid}")
        A(f"s_waitcnt vmcnt({self.D-1})")
        if self.DL:
            A(f"s_cbranch_scc1 L_dw{self.uid}")
            A(f"s_waitcnt vmcnt({self.DL-1})")
        A(f"L_dw{self.uid}:")

    def sload(self, n, switch=None, steady=False):
        super().sload(n, switch, steady)
        if steady and n % 8 == 0 and self.DL:
            self.A("s_cmp_eq_u32 s69, 0")

    def setup1(self):
        A = self.A
        if self.diag:
            self.srd(48, 38, WS_SIZE)
        A("v_and_b32 v6, 3, v2")
        A("v_lshl_add_u32 v6, v1, 2, v6          ; rho*4 + (j&3)")
        A("v_lshlrev_b32 v53, 4, v6")
        A("v_and_b32 v6, 1, v1")
        A("v_lshl_add_u32 v6, v2, 1, v6")
        A("s_lshl_b32 s7, s3, 9")
        A("v_lshl_add_u32 v60, v6, 4, s7")
        self.masks(12, 6, 40)
        A("s_mov_b32 s40, 0xaaaaaaaa"); A("s_mov_b32 s41, 0xaaaaaaaa")
        A("s_mov_b32 s42, 0xcccccccc"); A("s_mov_b32 s43, 0xcccccccc")
        A(f"s_mov_b32 s57, {self.kmask:#x}"); A(f"s_mov_b32 s58, {self.vmask:#x}")

    def streamer_issue(self):
        if self.lay:
            mark = len(self.L)
            super().streamer_issue()
            body = self.L[mark:]
            del self.L[mark:]
            k = [i for i, t in enumerate(body) if "lgkmcnt(0)" in t][0]
            self.L += body[:k]
            d = self.diag
            self.diag = False
            self.setup1()
            self.diag = d
            self.L += body[k:]
            if d:
                self.srd(48, 38, WS_SIZE)
        else:
            super().streamer_issue()

    def streamer(self):
        A = self.A
        D, LA, N0, Dp = self.D, self.LA, self.N0, self.Dp
        self.inhelper = False
        if self.lay and not self.pad:
            self.L.append(".p2align 12")
        A("L_streamer:")
        if not self.lay:
            self.setup1()
        A("s_mov_b32 s69, 0")
        A("s_lshl_b32 s7, s3, 2")
        A("v_mov_b32 v61, s7                     ; w*4")
        A("v_mov_b32 v6, 0")
        A(f"ds_write_b32 v61, v6 offset:{L_FLAG}")
        if self.fb:
            A("s_memrealtime s[64:65]")
            A("v_mov_b32 v56, 0")
            A("v_mov_b32 v7, 0")
            A(f"ds_write_b64 v56, v[6:7] offset:{L_PROG}")
            A("s_cmp_eq_u32 s3, 1")
            A(f"s_cselect_b32 s7, 0, {L_H - L_PROG + 256}")
            A("v_mov_b32 v57, s7")
            A("s_waitcnt lgkmcnt(0)")
            A("s_add_u32 s64, s64, 0x100000")
            A("v_mov_b32 v7, s64")
            A(f"ds_write_b32 v56, v7 offset:{L_ANCH}")
        A("s_lshl_b32 s7, s3, 8")
        A("v_lshl_add_u32 v62, v0, 2, s7")
        A("s_lshl_b32 s7, s3, 12")
        A("v_and_b32 v8, 60, v0")
        A("v_add_u32 v8, s7, v8")
        A("v_mov_b32 v5, 0xff800000")
        A("s_mov_b32 s15, 0")
        N1, Dp2 = self.N1, self.Dp2
        def pf(n):
            d = Dp if n < self.n1 else Dp2
            A(f"s_waitcnt vmcnt({d-1})")
            if (n - Dp) % 4 == 0 and (n - Dp) // 4 < 8:
                self.stamp(7 + (n - Dp) // 4)
            self.sload(n)
        for n in range(Dp, N1):
            pf(n)
        if self.pad:
            A("s_branch L_post")
            self.L.append(".p2align 12")
            A("L_pad:")
            A("s_branch L_pad_ret")
            A("L_post:")
        A("s_waitcnt lgkmcnt(0)")
        self.stamp(1)
        A("s_barrier")
        self.stamp(2)
        A(f"ds_read_b128 v[44:47], v53 offset:{L_Q}")
        rest = list(range(N1, N0))
        if rest:
            pf(rest.pop(0))
        A("s_waitcnt lgkmcnt(0)")
        for g in range(4):
            pat = (0xf << (4 * g)) * 0x00010001
            A(f"s_mov_b32 s44, {pat:#x}"); A(f"s_mov_b32 s45, {pat:#x}")
            for r in range(4):
                A(f"v_cndmask_b32 v{16+4*g+r}, 0, v{44+r}, s[44:45]")
            if rest:
                pf(rest.pop(0))
        for n in rest:
            pf(n)
        self.nop(2)
        self.stamp(3)
        NB = self.NB
        issued, landed = N0, N0 - Dp2
        last_mfma = {}
        A("s_mov_b64 vcc, 0")
        for n in range(NB):
            G, g = n // 4, n % 4
            if n % 16 == 0 and self.diag and self.fb:
                A("s_memrealtime s[64:65]")
                A("s_waitcnt lgkmcnt(0)")
                A(f"v_writelane_b32 v55, s64, {n//16}")
                A(f"v_writelane_b32 v54, 0, {n//16}")
            want = issued - n <= LA or (n >= 1 and (n <= D or n % self.cu == 0))
            if want and issued < NB + LA:
                prev = issued - self.NS if issued < self.NS + 16 else issued - 16
                if prev < n:
                    self.dwait()
                    landed = max(landed, issued - (LA - 1))
                    self.sload(issued)
                    issued += 1
            if landed <= n:
                A(f"s_waitcnt vmcnt({issued - n - 1})")
                landed = n + 1
            dreg = 32 + 4 * (G & 1)
            self.mfma(dreg, 16 + 4 * g, self.slot(n), None if g == 0 else dreg)
            last_mfma[G] = len(self.L)
            if g == 2 and G > 0:
                since = sum(1 for t in self.L[last_mfma[G - 1]:] if not t.endswith(":") and "vmcnt" not in t and "cbranch" not in t and "s69" not in t)
                self.kstep_post(n, since)
            if n % 16 == 15:
                A("v_add_u32 v8, 256, v8")
        assert issued == NB + LA, (issued, NB + LA)
        A(f"s_mov_b32 s15, {NB//16}")
        self.fb_sample()
        self.steady = True
        A("L_kloop:")
        self.setdeep(57, True, 0)
        for n in range(16):
            G, g = n // 4, n % 4
            self.dwait()
            self.sload(n + LA, "KV", True)
            dreg = 32 + 4 * (G & 1)
            self.mfma(dreg, 16 + 4 * g, self.slot(n, True), None if g == 0 else dreg)
            self.kstep_post(n, 9)
            if n == 14:
                self.fb_sample()
        A("v_add_u32 v8, 256, v8")
        A("s_add_u32 s15, s15, 1")
        A("s_cmp_lt_u32 s15, 16")
        A("s_cbranch_scc1 L_kloop")
        self.nop(6)
        self.kpost(36, 0)
        self.stamp(4)
        A("s_lshl_b32 s7, s3, 12")
        A("v_lshl_add_u32 v8, v2, 2, v1          ; 4j+s")
        A("v_lshlrev_b32 v8, 2, v8")
        A("v_add_u32 v8, s7, v8")
        A("ds_read_b32 v11, v8 offset:64")
        self.wave_reduce("v_max_f32", 5, 6, rors=(4, 8))
        self.bfr(9, 5)
        A(f"v_mul_f32 v9, {SCALE:#x}, v9")
        self.bfr(9, 9)
        A(f"ds_write_b32 v61, v9 offset:{L_MW}")
        A("v_mov_b32 v5, 0                       ; l")
        A("v_mov_b32 v63, 0")
        for r in range(4):
            A(f"v_mov_b32 v{40+r}, 0")
        A("s_mov_b32 s15, 0")
        A("L_vloop:")
        self.setdeep(58, True, 16)
        A("s_waitcnt lgkmcnt(0)")
        self.pcalc()
        for n in range(16):
            self.abuild(16, 10, 12, n)
            self.dwait()
            self.sload(n + LA, "END", True)
            self.mfma(40, 16, self.slot(n, True), 40)
            if n == 14:
                self.fb_sample()
            if n == self.flagstep:
                A("v_add_u32 v63, 1, v63")
                A(f"ds_write_b32 v62, v5 offset:{L_LL}")
                A(f"ds_write_b32 v61, v63 offset:{L_FLAG}")
        A("s_add_u32 s15, s15, 1")
        A("s_cmp_lt_u32 s15, 16")
        A("s_cbranch_scc1 L_vloop")
        self.stamp(5)
        self.exec_lo()
        self.nop(3)
        A(f"ds_write_b128 v60, v[40:43] offset:{L_O}")
        A("s_waitcnt lgkmcnt(0)")
        A("s_barrier")
        self.stamp(6)
        if self.diag:
            A("s_barrier")
            for _ in range(3):
                A("s_sleep 127")
        if self.diag and self.fb:
            A("s_lshl_b32 s7, s2, 2"); A("s_add_u32 s7, s7, s3"); A("s_lshl_b32 s7, s7, 8"); A("s_add_u32 s7, s7, 0x140000")
            A("v_lshlrev_b32 v6, 2, v0")
            A("buffer_store_dword v55, v6, s[48:51], s7 offen")
            A("buffer_store_dword v54, v6, s[48:51], s7 offen offset:128")
        self.flush_stamps(15)
        A("s_endpgm")

    def nearfar(self, tag, store):
        A = self.A
        if self.fast:
            A("s_cmp_eq_u32 s57, 0")
            A(f"s_cbranch_scc0 L_{tag}_far")
            A(store + " " + self.nst)
            A(f"s_branch L_{tag}_fin")
            A(f"L_{tag}_far:")
        A(store + " sc1")
        A(f"L_{tag}_fin:")

    def tagcheck(self, regs, t0=3, t1=7):
        A = self.A
        r = list(regs)
        if len(r) == 2:
            A(f"v_cmp_ne_u32 vcc, s54, v{r[0]}")
            A(f"v_cmp_ne_u32 s[44:45], s54, v{r[1]}")
        else:
            A(f"v_and_b32 v{t0}, v{r[0]}, v{r[1]}")
            A(f"v_or_b32 v{t1}, v{r[0]}, v{r[1]}")
            for i in range(2, len(r), 2):
                A(f"v_bitop3_b32 v{t0}, v{t0}, v{r[i]}, v{r[i+1]} bitop3:0x80")
                A(f"v_or3_b32 v{t1}, v{t1}, v{r[i]}, v{r[i+1]}")
            A(f"v_cmp_ne_u32 vcc, s54, v{t0}")
            A(f"v_cmp_ne_u32 s[44:45], s54, v{t1}")
        A("s_add_u32 s47, s47, 1")
        A("s_or_b64 vcc, vcc, s[44:45]")

    def tpoll(self, label, loads, tags, sleep=0, first=None, issued=False):
        A = self.A
        A("s_mov_b32 s47, 0")
        if not issued:
            for t in loads:
                A(t)
        if first:
            first()
        A(f"{label}:")
        A("s_waitcnt vmcnt(0)")
        self.tagcheck(tags)
        A(f"s_cbranch_scc0 {label}_ok")
        A("s_mov_b64 exec, vcc")
        if sleep:
            A(f"s_sleep {sleep}")
        for t in loads:
            A(t)
        A("s_cmp_lt_u32 s47, 0x40000")
        A(f"s_cbranch_scc1 {label}")
        A(f"{label}_ok:")
        A("s_mov_b64 exec, -1")

    def pack(self, tagreg):
        A = self.A
        A("s_mov_b32 s44, 0"); A("s_mov_b32 s45, -1")
        A(f"v_mov_b32 v25, s{tagreg}")
        A(f"v_mov_b32 v27, s{tagreg}")
        A("v_cndmask_b32 v24, v28, v30, s[44:45]")
        A("v_cndmask_b32 v26, v29, v31, s[44:45]")

    def gather8(self, label, R, sleep, lowmask, pre=None):
        A = self.A
        A("s_mov_b32 s47, 0")
        A(f"{label}:")
        if pre:
            pre()
        A("s_add_u32 s43, s41, 4096")
        for c in range(8):
            A(f"buffer_load_dwordx4 v[{R+4*c}:{R+3+4*c}], v228, s[48:51], s{41 if c < 4 else 43} offen offset:{1024*(c%4)} {self.xl}")
        for c in range(8):
            A(f"s_waitcnt vmcnt({7-c})")
            if c == 0:
                A(f"v_and_b32 v6, v{R+1}, v{R+3}")
                A(f"v_or_b32 v7, v{R+1}, v{R+3}")
            else:
                A(f"v_bitop3_b32 v6, v6, v{R+4*c+1}, v{R+4*c+3} bitop3:0x80")
                A(f"v_or3_b32 v7, v7, v{R+4*c+1}, v{R+4*c+3}")
                A(f"v_add_f32 v{R}, v{R}, v{R+4*c}")
                A(f"v_add_f32 v{R+2}, v{R+2}, v{R+4*c+2}")
        A("v_xor_b32 v8, s54, v6")
        A("v_xor_b32 v9, s54, v7")
        A(f"v_cmp_lt_u32 vcc, {lowmask}, v8")
        A(f"v_cmp_lt_u32 s[44:45], {lowmask}, v9")
        A("s_add_u32 s47, s47, 1")
        A("s_or_b64 vcc, vcc, s[44:45]")
        A(f"s_cbranch_scc0 {label}_ok")
        if sleep:
            A(f"s_sleep {sleep}")
        A("s_cmp_lt_u32 s47, 0x40000")
        A(f"s_cbranch_scc1 {label}")
        A(f"{label}_ok:")

    def colsum(self, R):
        A = self.A
        A(f"v_add_f32 v{R}, v{R}, v{R+4}")
        A(f"v_add_f32 v{R+2}, v{R+2}, v{R+6}")
        A(f"v_add_f32 v{R+8}, v{R+8}, v{R+12}")
        A(f"v_add_f32 v{R+10}, v{R+10}, v{R+14}")
        A(f"v_add_f32 v{R}, v{R}, v{R+8}")
        A(f"v_add_f32 v{R+2}, v{R+2}, v{R+10}")
        self.nop(2)
        A(f"v_permlane32_swap_b32 v{R}, v{R+2}")
        self.nop(1)
        A(f"v_add_f32 v{R}, v{R}, v{R+2}")
        self.nop(1)
        A(f"v_mov_b32 v{R+2}, v{R}")
        self.nop(2)
        A(f"v_permlane16_swap_b32 v{R}, v{R+2}")
        self.nop(1)
        A(f"v_add_f32 v{R}, v{R}, v{R+2}")
        self.nop(2)
        A(f"v_add_f32_dpp v{R}, v{R}, v{R} row_ror:8 {DPPF}")

    def helper(self):
        A = self.A
        W = self.W
        self.inhelper = True
        A("L_helper:")
        A("s_sub_u32 s40, s3, 4                  ; hw")
        A("s_mul_i32 s7, s5, 160")
        A("v_lshl_add_u32 v4, v2, 2, v1          ; 4j+s")
        A("v_lshlrev_b32 v4, 1, v4")
        A("v_lshlrev_b32 v3, 2, v0               ; lane*4")
        A("v_lshlrev_b32 v228, 4, v0             ; lane*16")
        A("s_cmp_eq_u32 s40, 0")
        A("s_cbranch_scc0 L_h_noq")
        A("v_lshlrev_b32 v8, 13, v1")
        A("v_lshl_add_u32 v8, v2, 4, v8          ; s*8192 + j*16")
        A("v_add_u32 v9, 0x8000, v8")
        A("v_add_u32 v10, 0x10000, v8")
        A("v_add_u32 v11, 0x18000, v8")
        A(f"s_mul_i32 s42, s5, {80*8192}")
        A("s_lshl_b32 s43, s4, 8")
        A("s_add_u32 s42, s42, s43")
        A("s_waitcnt lgkmcnt(0)")
        A(f"s_load_dword s54, s[38:39], {WS_E:#x}")
        self.srd(8, 16, 1280)
        self.srd(12, 22, 640 * 8192)
        self.x_issue()
        for n in range(20):
            sl = W + 4 * n
            A(f"buffer_load_dwordx4 v[{sl}:{sl+3}], v{8+n%4}, s[12:15], s42 offen {self.wflag}")
            if n % 4 == 3 and n < 19:
                A("s_add_u32 s42, s42, 0x20000")
        self.stamp(1)
        self.srd(48, 38, WS_SIZE)
        self.masks(12, 6, 44)
        self.gaddr()
        A("s_lshl_b32 s42, s6, 10")
        A(f"s_add_u32 s42, s42, {WS_QN}")
        A("s_and_b32 s41, s42, 0xffffe000")
        A("s_waitcnt vmcnt(20)")
        self.stamp(2)
        self.ln()
        self.stamp(3)
        for n in range(20):
            self.abuild(24, 21 + n // 16, 12, n % 16)
            A(f"s_waitcnt vmcnt({19-n})")
            self.nop(1)
            self.mfma(28, 24, W + 4 * n, None if n == 0 else 28)
        A("s_waitcnt lgkmcnt(0)")
        self.mktag()
        A("s_getreg_b32 s47, hwreg(HW_REG_XCC_ID, 0, 4)")
        A("s_or_b32 s47, s47, s54")
        self.pack(47)
        A(f"buffer_store_dwordx4 v[24:27], v231, s[48:51], s42 offen {self.nst}")
        A(f"s_add_u32 s42, s42, {WS_QF - WS_QN}")
        A("s_waitcnt vmcnt(0)")
        def pre():
            A(f"s_cmp_lt_u32 s47, {self.xfast}")
            A("s_cbranch_scc1 L_q_keep")
            A(f"s_xor_b32 s41, s41, {WS_QF ^ WS_QN}")
            A(f"s_cmp_eq_u32 s47, {self.xfast}")
            A("s_cbranch_scc0 L_q_keep")
            A("buffer_store_dwordx4 v[24:27], v231, s[48:51], s42 offen sc1")
            A("L_q_keep:")
        self.gather8("L_q_x", 160, self.qsleep, 15, pre)
        A("v_xor_b32 v7, v6, v7")
        A("v_cvt_pk_bf16_f32 v8, v160, v162")
        A(f"ds_write_b32 v3, v8 offset:{L_Q}")
        A("v_mov_b32 v6, s54")
        A("v_mov_b32 v8, 0")
        A(f"ds_write_b64 v8, v[6:7] offset:{L_TAG}")
        A("v_readfirstlane_b32 s57, v7")
        A("s_cmp_eq_u32 s57, 0")
        A("s_cbranch_scc1 L_q_near")
        A("buffer_store_dwordx4 v[24:27], v231, s[48:51], s42 offen sc1")
        A("L_q_near:")
        A("s_waitcnt lgkmcnt(0)")
        self.stamp(4)
        A("s_barrier")
        A("s_branch L_h_shadow")
        A("L_h_noq:")
        if self.pad:
            A("s_cmp_eq_u32 s40, 2")
            A("s_cbranch_scc1 L_pad")
            A("L_pad_ret:")
        A("s_waitcnt lgkmcnt(0)")
        self.srd(8, 16, 1280)
        self.srd(48, 38, WS_SIZE)
        A("s_cmp_eq_u32 s40, 1")
        A("s_cbranch_scc1 L_ffn")
        if self.ewarm:
            A("s_cmp_eq_u32 s40, 3")
            A("s_cbranch_scc0 L_h_shadow")
            A(f"s_mul_i32 s59, s5, {32*640}")
            A("s_mul_i32 s41, s4, 640")
            A("s_add_u32 s59, s59, s41")
            A(f"s_add_u32 s41, s59, {WS_GP}")
            A(f"s_add_u32 s59, s59, {WS_U}")
            A("s_mov_b32 exec_hi, 0xff")
            A("buffer_load_dwordx4 v[8:11], v228, s[48:51], s59 offen")
            if self.ewarm & 2:
                A("buffer_load_dwordx4 v[12:15], v228, s[48:51], s41 offen")
            A("s_mov_b64 exec, -1")
        A("L_h_shadow:")
        self.gaddr()
        self.srd(12, 24, 4096 * 1280)
        A("v_mul_u32_u24 v36, 10240, v1")
        A("v_lshl_add_u32 v36, v2, 4, v36")
        A("v_mov_b32 v37, 0x7fffffff")
        A("s_mov_b32 s44, 0x03ff03ff"); A("s_mov_b32 s45, 0x03ff03ff")
        A("v_cndmask_b32 v239, v37, v36, s[44:45]")
        A("s_lshl_b32 s46, s4, 2")
        A("s_add_u32 s46, s46, s40               ; 4h + hw")
        A(f"s_mul_i32 s46, s46, {32*1280}")
        A("s_mul_i32 s47, s5, 160")
        A("s_add_u32 s46, s46, s47")
        def wo_issue(lo, hi, full):
            for e in range(lo, hi):
                sl = W + (16 if e & 1 else 0) + 4 * (e // 2)
                if e % 2 == 0 and e > 0:
                    A("s_add_u32 s46, s46, 2560")
                A(f"buffer_load_dwordx4 v[{sl}:{sl+3}], v239, s[12:15], s46 offen offset:{1280*(e&1)} {self.wflag}")
        def wo_perm():
            A("s_mov_b32 s44, 0x05040100")
            A("s_mov_b32 s45, 0x07060302")
            E = lambda i, c: W + 4 * i + c
            O = lambda i, c: W + 16 + 4 * i + c
            if self.wolate:
                for c in range(4):
                    for i in range(4):
                        A(f"v_perm_b32 v{192+4*c+i}, v{O(i,c)}, v{E(i,c)}, s44")
                        A(f"v_perm_b32 v{208+4*c+i}, v{O(i,c)}, v{E(i,c)}, s45")
                return
            for i in range(4):
                A(f"v_perm_b32 v16, v{O(i,i)}, v{E(i,i)}, s44")
                A(f"v_perm_b32 v{O(i,i)}, v{O(i,i)}, v{E(i,i)}, s45")
                A(f"v_mov_b32 v{E(i,i)}, v16")
                for c in range(i + 1, 4):
                    A(f"v_perm_b32 v16, v{O(i,c)}, v{E(i,c)}, s44")
                    A(f"v_perm_b32 v17, v{O(i,c)}, v{E(i,c)}, s45")
                    A(f"v_perm_b32 v{E(i,c)}, v{O(c,i)}, v{E(c,i)}, s44")
                    A(f"v_perm_b32 v{O(i,c)}, v{O(c,i)}, v{E(c,i)}, s45")
                    A(f"v_mov_b32 v{E(c,i)}, v16")
                    A(f"v_mov_b32 v{O(c,i)}, v17")
        NE = 8 - self.wolate
        wo_issue(0, NE, True)
        A("s_cmp_lt_u32 s40, 2")
        A("s_cbranch_scc1 L_h_nobar")
        A("s_barrier")
        self.gettag()
        A("L_h_nobar:")
        A("s_waitcnt vmcnt(0)")
        self.stamp(5)
        if not self.wolate:
            wo_perm()
        self.stamp(6)
        A("v_mov_b32 v227, 0")
        A("s_mov_b32 s55, 0")
        if self.fb:
            A("s_cmp_eq_u32 s40, 2")
            A("s_cbranch_scc1 L_pacer")
        A("s_cmp_eq_u32 s40, 3")
        A("s_cselect_b32 s41, s2, 0")
        A(f"s_cmp_ge_u32 s41, {CONS0}")
        A("s_cbranch_scc0 L_h_nocons")
        A("s_mov_b32 s55, 1")
        self.srd(60, 34, 1280)
        A(f"s_sub_u32 s52, s2, {CONS0}")
        A("s_lshl_b32 s53, s52, 5")
        A("v_and_b32 v6, 7, v0")
        A("v_lshrrev_b32 v7, 5, v0")
        A("v_lshl_add_u32 v229, v6, 1, v7")
        A("v_lshlrev_b32 v229, 1, v229           ; (2t + half)*2")
        A("v_lshrrev_b32 v230, 3, v0")
        A("v_mul_u32_u24 v230, 2560, v230")
        A("v_lshl_add_u32 v230, v6, 4, v230      ; g*2560 + t*16")
        A("s_mul_i32 s42, s52, 52")
        A("s_lshr_b32 s42, s42, 8")
        A(f"s_mul_i32 s42, s42, {32*640 - 640}")
        A("s_lshl_b32 s52, s52, 7")
        A("s_add_u32 s52, s52, s42")
        A(f"s_add_u32 s56, s52, {WS_GP}")
        A(f"s_add_u32 s52, s52, {WS_U}")
        gpl = [f"buffer_load_dwordx4 v[{8+4*i}:{11+4*i}], v230, s[48:51], s56 offen offset:{640*i} sc1" for i in range(4)]
        def gcalc():
            self.colsum(8)
            self.bfr(8, 8)
            A(f"v_mul_f32 v9, {LOG2E | 0x80000000:#x}, v8")
            A("v_exp_f32 v9, v9")
            self.nop(1)
            A("v_add_f32 v9, 1.0, v9")
            A("v_rcp_f32 v9, v9")
            self.nop(1)
            A("v_mul_f32 v8, v8, v9")
            self.bfr(224, 8)
        if not self.gplate or self.rwarm:
            self.lds_wait("L_h_trigA", 227, L_FLAG, "s_cmp_ge_u32", 1 if not self.gplate else 12, 100)
        A("buffer_load_ushort v225, v229, s[8:11], s53 offen")
        if self.rwarm:
            fl = self.rwarm.strip("_")
            for i in range(4):
                A(f"buffer_load_dwordx4 v[{128+4*i}:{131+4*i}], v230, s[48:51], s52 offen offset:{640*i} {fl}")
                A(f"buffer_load_dwordx4 v[{144+4*i}:{147+4*i}], v230, s[48:51], s56 offen offset:{640*i} {fl}")
        if not self.gplate:
            self.tpoll("L_c_gp", gpl, range(9, 24, 2), sleep=100)
            gcalc()
        A("s_waitcnt vmcnt(0)")
        A("v_lshlrev_b32 v225, 16, v225")
        A("L_h_nocons:")
        self.stamp(7)
        A("v_bfe_u32 v6, v0, 3, 2                ; w")
        A("v_and_b32 v7, 7, v0                   ; t")
        A("v_lshlrev_b32 v232, 9, v6")
        A("v_lshl_add_u32 v232, v7, 4, v232")
        A("s_lshl_b32 s7, s40, 7")
        A("v_add_u32 v232, s7, v232")
        A("v_lshlrev_b32 v233, 2, v6             ; w*4")
        A("v_lshl_add_u32 v234, v7, 1, v1")
        A("v_lshlrev_b32 v234, 4, v234")
        A("s_lshl_b32 s58, s6, 10")
        A("s_lshl_b32 s7, s40, 8")
        A("s_add_u32 s58, s58, s7")
        A("s_lshl_b32 s43, s4, 13")
        A("s_add_u32 s43, s43, s7")
        A("v_lshrrev_b32 v6, 2, v2               ; a")
        A("v_and_b32 v7, 3, v2                   ; b")
        A("v_lshlrev_b32 v235, 11, v6")
        A("v_lshl_add_u32 v235, v1, 6, v235")
        A("v_lshl_add_u32 v235, v7, 4, v235      ; a*2048 + s*64 + b*16")
        A("v_lshlrev_b32 v236, 5, v6             ; a*32")
        A("s_lshl_b32 s41, s4, 7")
        A(f"s_add_u32 s41, s41, {WS_ML}")
        A("v_lshl_add_u32 v237, v2, 1, v1")
        A("s_mul_i32 s7, s40, 320")
        A("v_lshl_add_u32 v237, v237, 4, s7")
        A("v_lshlrev_b32 v238, 3, v0             ; lane*8")
        A(f"s_mul_i32 s59, s5, {32*640}")
        A("s_mul_i32 s7, s4, 640")
        A("s_add_u32 s59, s59, s7")
        A(f"s_add_u32 s59, s59, {WS_U}")
        A("v_lshlrev_b32 v4, 2, v0")
        if self.warm:
            for r in range(4):
                A(f"v_not_b32 v{40+r}, s54")
            if self.warm & 1:
                A("s_cmp_eq_u32 s40, 0")
                A("s_cbranch_scc0 L_h_nowarm")
                A("s_mov_b32 exec_hi, 0xff")
                A("buffer_store_dwordx4 v[40:43], v228, s[48:51], s59 offen sc1")
                A("s_mov_b64 exec, -1")
                A("L_h_nowarm:")
            A("s_waitcnt vmcnt(0)")
        A("s_mov_b32 s47, 0")
        A("L_h_trigB:")
        A(f"ds_read_b128 v[8:11], v227 offset:{L_FLAG}")
        A("s_waitcnt lgkmcnt(0)")
        A("v_min_u32 v8, v8, v9")
        A("v_min3_u32 v8, v8, v10, v11")
        A("s_add_u32 s47, s47, 1")
        A("v_readfirstlane_b32 s42, v8")
        A("s_cmp_ge_u32 s42, 16")
        A("s_cbranch_scc1 L_h_trigB_ok")
        A(f"s_sleep {self.bsleep}")
        A("s_cmp_lt_u32 s47, 0x100000")
        A("s_cbranch_scc1 L_h_trigB")
        A("L_h_trigB_ok:")
        wo_issue(NE, 8, True)
        A(f"ds_read_b128 v[8:11], v227 offset:{L_MW}")
        A(f"ds_read_b32 v19, v233 offset:{L_MW}")
        for w in range(4):
            A(f"ds_read_b32 v{12+w}, v4 offset:{L_LL+256*w}")
        A("s_waitcnt lgkmcnt(0)")
        A("v_max3_f32 v20, v8, v9, v10")
        A("v_max_f32 v20, v20, v11")
        A("v_sub_f32 v19, v19, v20")
        A(f"v_mul_f32 v19, {LOG2E:#x}, v19")
        A("v_exp_f32 v19, v19")
        A("s_cmp_eq_u32 s40, 1")
        A("s_cbranch_scc0 L_h_noml")
        for w in range(4):
            A(f"v_sub_f32 v{8+w}, v{8+w}, v20")
            A(f"v_mul_f32 v{8+w}, {LOG2E:#x}, v{8+w}")
            A(f"v_exp_f32 v{8+w}, v{8+w}")
        A("v_mul_f32 v22, v8, v12")
        for w in range(1, 4):
            A(f"v_fmac_f32 v22, v{8+w}, v{12+w}")
        self.wave_reduce("v_add_f32", 22, 21)
        A("v_mov_b32 v21, s54")
        A("v_mov_b32 v23, s54")
        A("s_lshl_b32 s7, s6, 4")
        A(f"s_add_u32 s7, s7, {WS_ML}")
        A("s_mov_b64 exec, 1")
        self.nearfar("ml", "buffer_store_dwordx4 v[20:23], off, s[48:51], s7")
        A("s_mov_b64 exec, -1")
        A("L_h_noml:")
        self.stamp(8)
        A("v_mov_b32 v41, s54")
        A("v_mov_b32 v43, s54")
        self.stamp(9)
        A("s_barrier")
        self.stamp(10)
        A(f"ds_read_b128 v[8:11], v232 offset:{L_O}")
        mll = [f"buffer_load_dwordx4 v[{24+4*x}:{27+4*x}], v236, s[48:51], s41 offen offset:{16*x} {self.ol}" for x in range(2)]
        ol = [f"buffer_load_dwordx4 v[{32+4*x}:{35+4*x}], v235, s[48:51], s43 offen offset:{1024*x} {self.ol}" for x in range(2)]
        for t in mll:
            A(t)
        A("s_waitcnt lgkmcnt(0)")
        for r in range(4):
            A(f"v_mul_f32 v{8+r}, v19, v{8+r}")
        for r in range(4):
            A(f"v_add_f32_dpp v{8+r}, v{8+r}, v{8+r} row_ror:8 {DPPF}")
        A("s_mov_b32 s44, 0x00ff00ff")
        A("s_mov_b32 s45, 0")
        A("v_permlane16_swap_b32 v8, v10")
        A("v_permlane16_swap_b32 v9, v11")
        self.nop(1)
        A("v_add_f32 v40, v8, v10")
        A("v_add_f32 v42, v9, v11")
        A("s_mov_b64 exec, s[44:45]")
        self.nearfar("o", "buffer_store_dwordx4 v[40:43], v234, s[48:51], s58 offen")
        A("s_mov_b64 exec, -1")
        for t in ol:
            A(t)
        def weights():
            if self.wolate:
                A("s_waitcnt vmcnt(5)")
                wo_perm()
            A("s_waitcnt vmcnt(3)")
            self.tagcheck([25, 27, 29, 31])
            A("v_max_f32 v18, v24, v28")
            A("s_cbranch_scc1 L_h_mlwait")
            A("L_h_mlok:")
            for r in (4, 8):
                self.nop(2 if r > 4 else 1)
                A(f"v_max_f32_dpp v18, v18, v18 row_ror:{r} {DPPF}")
            A("v_sub_f32 v16, v24, v18")
            A("v_sub_f32 v17, v28, v18")
            A(f"v_mul_f32 v16, {LOG2E:#x}, v16")
            A(f"v_mul_f32 v17, {LOG2E:#x}, v17")
            A("v_exp_f32 v16, v16")
            A("v_exp_f32 v17, v17")
            A("v_mul_f32 v18, v26, v16")
            A("v_fmac_f32 v18, v30, v17")
            for r in (4, 8):
                self.nop(2)
                A(f"v_add_f32_dpp v18, v18, v18 row_ror:{r} {DPPF}")
            A("v_rcp_f32 v18, v18")
            A("s_mov_b32 s47, 0")
            A("v_mul_f32 v16, v16, v18")
            A("v_mul_f32 v17, v17, v18")
        self.tpoll("L_h_o", ol, [33, 35, 37, 39], sleep=self.osleep, first=weights, issued=True)
        self.stamp(11)
        if self.gplate:
            A("s_cmp_eq_u32 s40, 1")
            A("s_cbranch_scc1 L_h_gpst")
            A("L_h_gpst_done:")
        A("v_mul_f32 v32, v16, v32")
        A("v_mul_f32 v34, v16, v34")
        A("v_fmac_f32 v32, v17, v36")
        A("v_fmac_f32 v34, v17, v38")
        for r in (4, 8):
            self.nop(1)
            A(f"v_add_f32_dpp v32, v32, v32 row_ror:{r} {DPPF}")
            A(f"v_add_f32_dpp v34, v34, v34 row_ror:{r} {DPPF}")
        A("v_cvt_pk_bf16_f32 v32, v32, v34")
        A("s_mov_b32 s44, 0xffff0000"); A("s_mov_b32 s45, 0xffff0000")
        for r in range(4):
            A(f"v_mov_b32_dpp v{28+r}, v32 quad_perm:[{r},{r},{r},{r}] {DPPF}")
        self.nop(2)
        B = lambda t: (192 if self.wolate else W) + (16 if t & 1 else 0) + 4 * (t // 2)
        for t in (0, 4, 1, 5, 2, 6, 3, 7):
            self.mfma(96 + 4 * t, 28, B(t), None)
        A("s_mov_b32 exec_lo, 0x03ff03ff")
        A("s_mov_b32 exec_hi, 0")
        for t in range(4):
            if t > 0:
                self.nop(1)
            A(f"v_cndmask_b32 v{20+t}, v{96+4*t}, v{112+4*t}, s[44:45]")
        A(f"ds_write_b128 v237, v[20:23] offset:{L_X}")
        A("s_mov_b64 exec, -1")
        A("s_waitcnt lgkmcnt(0)")
        A("s_barrier")
        A("s_cmp_eq_u32 s40, 0")
        A("s_cbranch_scc0 L_h_nou")
        for k in range(4):
            A(f"ds_read_b64 v[{8+2*k}:{9+2*k}], v238 offset:{L_X+320*k}")
        A("s_mov_b32 exec_lo, -1")
        A("s_mov_b32 exec_hi, 0xff")
        A("s_waitcnt lgkmcnt(2)")
        A("v_add_f32 v8, v8, v10")
        A("v_add_f32 v9, v9, v11")
        A("s_waitcnt lgkmcnt(0)")
        A("v_add_f32 v12, v12, v14")
        A("v_add_f32 v13, v13, v15")
        A("v_add_f32 v40, v8, v12")
        A("v_add_f32 v42, v9, v13")
        A(f"buffer_store_dwordx4 v[40:43], v228, s[48:51], s59 offen {self.uflag}")
        A("L_h_nou:")
        self.stamp(12)
        A("s_cmp_eq_u32 s55, 1")
        A("s_cbranch_scc0 L_h_end")
        NP = self.npipe
        SZ = 32 if self.gplate else 16
        NL = SZ // 4
        def uload(p):
            for i in range(4):
                A(f"buffer_load_dwordx4 v[{128+SZ*p+4*i}:{131+SZ*p+4*i}], v230, s[48:51], s52 offen offset:{640*i} {self.lflag}")
            if self.gplate:
                for i in range(4):
                    A(f"buffer_load_dwordx4 v[{144+SZ*p+4*i}:{147+SZ*p+4*i}], v230, s[48:51], s56 offen offset:{640*i} sc1")
        A("s_mov_b32 s47, 0")
        for p in range(NP):
            uload(p)
            if p < NP - 1 and self.gap:
                A(f"s_sleep {self.gap}")
        A("L_c_u:")
        for p in range(NP):
            A(f"s_waitcnt vmcnt({NL*(NP-1)})")
            self.tagcheck(range(129 + SZ * p, 128 + SZ * (p + 1), 2))
            A(f"s_cbranch_scc0 L_c_u{p}")
            if NP == 1 and self.usleep:
                A(f"s_sleep {self.usleep}")
            uload(p)
        A("s_cmp_lt_u32 s47, 0x40000")
        A("s_cbranch_scc1 L_c_u")
        for p in range(NP - 1, -1, -1):
            A(f"L_c_u{p}:")
            self.stamp(13)
            R = 128 + SZ * p
            if self.gplate:
                G = R + 16
                for X in (G, R):
                    A(f"v_add_f32 v{X}, v{X}, v{X+4}")
                    A(f"v_add_f32 v{X+2}, v{X+2}, v{X+6}")
                    A(f"v_add_f32 v{X+8}, v{X+8}, v{X+12}")
                    A(f"v_add_f32 v{X+10}, v{X+10}, v{X+14}")
                    A(f"v_add_f32 v{X}, v{X}, v{X+8}")
                    A(f"v_add_f32 v{X+2}, v{X+2}, v{X+10}")
                A(f"v_permlane32_swap_b32 v{G}, v{G+2}")
                self.nop(1)
                A(f"v_permlane32_swap_b32 v{R}, v{R+2}")
                A(f"v_add_f32 v{G}, v{G}, v{G+2}")
                A(f"v_add_f32 v{R}, v{R}, v{R+2}")
                self.nop(2)
                A(f"v_permlane16_swap_b32 v{G}, v{R}")
                self.nop(1)
                A(f"v_add_f32 v{G}, v{G}, v{R}")
                self.nop(2)
                A(f"v_add_f32_dpp v{G}, v{G}, v{G} row_ror:8 {DPPF}")
                self.bfr(8, G)
                A(f"v_mul_f32 v9, {LOG2E | 0x80000000:#x}, v8")
                A("v_mov_b32 v24, v8")
                A("v_exp_f32 v9, v9")
                A("v_mov_b32 v25, v8")
                A("v_add_f32 v9, 1.0, v9")
                A("v_rcp_f32 v9, v9")
                A("v_permlane16_swap_b32 v25, v24")
                A("v_mul_f32 v8, v8, v9")
                self.bfr(224, 8)
            else:
                self.colsum(R)
                self.bfr(24, R)
            A("v_mul_f32 v24, v24, v224")
            self.bfr(24, 24)
            A("v_add_f32 v24, v24, v225")
            A("v_cvt_pk_bf16_f32 v24, v24, v24")
            A("s_mov_b32 exec_lo, 0xff")
            A("s_mov_b32 exec_hi, 0xff")
            A("buffer_store_short v24, v229, s[60:63], s53 offen")
            if p > 0:
                A("s_branch L_c_fin")
        A("L_c_fin:")
        A(f"s_cmp_eq_u32 s2, {CONS0}")
        A("s_cbranch_scc0 L_h_end")
        A(f"s_mov_b32 s47, {WS_E:#x}")
        A("s_mov_b64 exec, 1")
        A("buffer_store_dword v41, off, s[48:51], s47 sc1")
        A("L_h_end:")
        if self.spin is not None:
            A(f"s_cmp_eq_u32 s2, {self.spin}")
            A("s_cbranch_scc0 L_nospin")
            if self.probe is not None:
                A("s_cmp_eq_u32 s40, 0")
                A("s_cbranch_scc0 L_nospin")
                if self.probe == 99:
                    A("s_memrealtime s[96:97]")
                A("s_waitcnt lgkmcnt(0)")
                A("s_sub_u32 s96, s96, s100")
                A("s_add_u32 s100, s100, s96")
            A("L_spin:")
            A("s_memrealtime s[98:99]")
            A("s_waitcnt lgkmcnt(0)")
            A("s_sub_u32 s98, s98, s100")
            A("s_cmp_lt_u32 s98, 10000")
            A("s_cbranch_scc1 L_spin")
            A("L_nospin:")
        self.stamp(14)
        if self.diag:
            for _ in range(3):
                A("s_sleep 127")
        self.flush_stamps(15)
        A("s_endpgm")
        if self.gplate:
            A("L_h_gpst:")
            A("s_mov_b32 exec_lo, 0x03ff03ff")
            A("s_mov_b32 exec_hi, 0x03ff03ff")
            A("buffer_store_dwordx4 v[240:243], v231, s[48:51], s56 offen sc1")
            A("s_mov_b64 exec, -1")
            A("s_branch L_h_gpst_done")
        A("L_h_mlwait:")
        self.tpoll("L_h_ml", mll, [25, 27, 29, 31], sleep=self.mlsleep)
        for t in ol:
            A(t)
        A("v_max_f32 v18, v24, v28")
        A("s_branch L_h_mlok")
        self.ffn()
        if self.fb:
            self.pacer()

    def pacer(self):
        A = self.A
        A("L_pacer:")
        A("v_mov_b32 v4, 0")
        A(f"s_mov_b32 s52, {self.cp0}")
        A(f"s_mov_b32 s53, {WS_TS}")
        A("v_mov_b32 v9, s54")
        A("L_p_loop:")
        self.lds_wait("L_p_w0", 4, L_PROG, "s_cmp_ge_u32", "s52", 8)
        A(f"ds_read_b32 v8, v4 offset:{L_PROG+4}")
        A("s_lshl_b32 s41, s2, 3")
        A("s_add_u32 s41, s41, s53")
        A(f"s_add_u32 s52, s52, {self.cplag}")
        A("s_waitcnt lgkmcnt(0)")
        A("v_readfirstlane_b32 s43, v8")
        A("s_cmp_lt_u32 s2, 32")
        A("s_cbranch_scc0 L_p_nopub")
        A("s_mov_b64 exec, 1")
        A("buffer_store_dwordx2 v[8:9], off, s[48:51], s41 sc1")
        A("s_mov_b64 exec, -1")
        A("L_p_nopub:")
        self.lds_wait("L_p_w1", 4, L_PROG, "s_cmp_ge_u32", "s52", 8)
        A("s_mov_b32 s44, 0")
        A("L_p_sum:")
        A("s_load_dwordx16 s[16:31], s[38:39], s53")
        A("s_add_u32 s53, s53, 64")
        A("s_waitcnt lgkmcnt(0)")
        for i in range(8):
            A(f"s_sub_u32 s41, s{16+2*i}, s43")
            A(f"s_cmp_eq_u32 s{17+2*i}, s54")
            A(f"s_cselect_b32 s41, s41, {self.cplag * self.tau}")
            A("s_add_u32 s44, s44, s41")
        A("s_and_b32 s41, s53, 0xff")
        A("s_cbranch_scc1 L_p_sum")
        A("s_ashr_i32 s44, s44, 5")
        A("s_add_u32 s44, s44, s43")
        A("v_mov_b32 v7, s44")
        A(f"ds_write_b32 v4, v7 offset:{L_ANCH}")
        A(f"s_add_u32 s52, s52, {self.cpd - self.cplag}")
        A(f"s_cmp_lt_u32 s52, {self.cp0 + self.ncp * self.cpd}")
        A("s_cbranch_scc1 L_p_loop")
        A("s_branch L_h_nocons")

    def gaddr(self):
        A = self.A
        A("v_lshrrev_b32 v6, 1, v1")
        A("v_and_b32 v7, 1, v1")
        A("v_lshl_add_u32 v6, v7, 1, v6")
        A("v_lshl_add_u32 v6, v2, 2, v6")
        A("v_lshlrev_b32 v231, 4, v6")

    def gettag(self):
        A = self.A
        A("v_mov_b32 v6, 0")
        A(f"ds_read_b64 v[6:7], v6 offset:{L_TAG}")
        A("s_waitcnt lgkmcnt(0)")
        A("v_readfirstlane_b32 s54, v6")
        A("v_readfirstlane_b32 s57, v7")

    def ffn(self):
        A = self.A
        W = self.W
        A("L_ffn:")
        self.gaddr()
        A(f"s_mul_i32 s56, s5, {32*640}")
        A("s_mul_i32 s47, s4, 640")
        A("s_add_u32 s56, s56, s47")
        A(f"s_add_u32 s56, s56, {WS_GP}")
        A(f"s_cmp_lt_u32 s4, {NFH}")
        A("s_cbranch_scc1 L_f_go")
        A("s_barrier")
        self.gettag()
        for r in range(4):
            A(f"v_mov_b32 v{28+r}, 0")
        A("s_branch L_f_pub")
        A("L_f_go:")
        self.x_issue()
        A("s_mov_b32 s44, 0xff00ff00"); A("s_mov_b32 s45, 0xff00ff00")
        A("v_mov_b32 v38, s28"); A("v_mov_b32 v39, s29")
        A("v_mov_b32 v8, s30"); A("v_mov_b32 v9, s31")
        A("v_cndmask_b32 v38, v38, v8, s[44:45]")
        A("v_cndmask_b32 v39, v39, v9, s[44:45]")
        A("v_and_b32 v8, 7, v0")
        A("v_lshlrev_b32 v8, 4, v8")
        A("v_mul_u32_u24 v9, 3456, v1")
        A("v_add_u32 v8, v8, v9")
        A(f"s_mul_i32 s47, s5, {80*3456}")
        A("s_lshl_b32 s41, s4, 7")
        A("s_add_u32 s47, s47, s41")
        A("v_add_u32 v8, s47, v8")
        A("v_mov_b32 v9, 0")
        A("v_lshl_add_u64 v[38:39], v[38:39], 0, v[8:9]")
        A("s_mov_b32 s42, 13824"); A("s_mov_b32 s43, 0")
        for i in range(20):
            sl = W + 4 * i
            A(f"global_load_dwordx4 v[{sl}:{sl+3}], v[38:39], off {self.wflag}")
            A("v_lshl_add_u64 v[38:39], v[38:39], 0, s[42:43]")
        self.srd(12, 32, 1728 * 1280)
        A("v_mul_u32_u24 v36, 1280, v1")
        A("v_lshl_add_u32 v36, v2, 4, v36")
        A("v_mov_b32 v37, 0x7fffffff")
        A("s_mov_b32 s44, 0x03ff03ff"); A("s_mov_b32 s45, 0x03ff03ff")
        A("v_cndmask_b32 v36, v37, v36, s[44:45]")
        A(f"s_mul_i32 s46, s4, {64*1280}")
        A("s_add_u32 s46, s46, s7")
        for n in range(16):
            sl = 144 + 4 * n
            A(f"buffer_load_dwordx4 v[{sl}:{sl+3}], v36, s[12:15], s46 offen {self.wflag}")
            A(f"s_add_u32 s46, s46, {4*1280}")
        A("s_barrier")
        self.gettag()
        self.masks(12, 6, 44)
        A("s_waitcnt vmcnt(36)")
        self.ln()
        for n in range(20):
            self.abuild(24, 21 + n // 16, 12, n % 16)
            A(f"s_waitcnt vmcnt({35-n})")
            self.nop(1)
            self.mfma(28, 24, W + 4 * n, None if n == 0 else 28)
        A("s_lshl_b32 s42, s6, 10")
        A(f"s_add_u32 s42, s42, {WS_FX}")
        A("s_and_b32 s41, s42, 0xffffe000")
        self.nop(2)
        self.pack(54)
        self.nearfar("fx", "buffer_store_dwordx4 v[24:27], v231, s[48:51], s42 offen")
        A("s_waitcnt vmcnt(0)")
        A("s_sleep 16")
        R = 64
        self.gather8("L_f_x", R, 16, 0)
        self.bfr(R, R)
        self.bfr(R + 2, R + 2)
        A(f"v_mov_b32 v{R+1}, v{R}")
        A(f"v_mov_b32 v{R+3}, v{R+2}")
        self.nop(2)
        A(f"v_permlane32_swap_b32 v{R}, v{R+1}")
        A(f"v_permlane32_swap_b32 v{R+2}, v{R+3}")
        self.nop(1)
        A(f"v_max_f32 v{R}, 0, v{R}")
        A(f"v_max_f32 v{R+2}, 0, v{R+2}")
        A(f"v_mul_f32 v{R}, v{R}, v{R+1}")
        A(f"v_mul_f32 v{R+2}, v{R+2}, v{R+3}")
        A(f"v_cvt_pk_bf16_f32 v{R}, v{R}, v{R}")
        A(f"v_cvt_pk_bf16_f32 v{R+1}, v{R+2}, v{R+2}")
        A("v_lshlrev_b32 v6, 3, v0")
        A("v_and_b32 v6, 0xff, v6                ; (lane&31)*8")
        A(f"ds_write_b64 v6, v[{R}:{R+1}] offset:{L_H}")
        A("v_lshlrev_b32 v6, 1, v4               ; (4j+s)*4")
        A(f"ds_read_b32 v21, v6 offset:{L_H}")
        A("s_waitcnt lgkmcnt(0)")
        for n in range(16):
            self.abuild(24, 21, 12, n)
            self.nop(2)
            self.mfma(28, 24, 144 + 4 * n, None if n == 0 else 28)
        self.nop(4)
        A("L_f_pub:")
        self.pack(54)
        if self.gplate:
            for r in range(4):
                A(f"v_mov_b32 v{240+r}, v{24+r}")
            A("s_branch L_h_shadow")
            return
        A("s_mov_b32 exec_lo, 0x03ff03ff")
        A("s_mov_b32 exec_hi, 0x03ff03ff")
        A("buffer_store_dwordx4 v[24:27], v231, s[48:51], s56 offen sc1")
        A("s_mov_b64 exec, -1")
        A("s_branch L_h_shadow")


if __name__ == "__main__":
    out = sys.argv[1]
    kw = eval("dict(" + (sys.argv[2] if len(sys.argv) > 2 else "") + ")")
    open(out, "w").write(Gen(**kw).gen())
```

```python
import sys
from gen_kernel import NAME, LOG2E, SCALE, DPPF
from gen6 import Gen as G6

WS_O = 0
WS_ML = 0x40000
WS_U = 0x50000
WS_GP = 0x80000
WS_TS = 0xF8000
WS_E = 0xFC000
WS_QN = 0x200000
WS_QF = 0x240000
WS_FX = 0x280000
WS_SIZE = 0x300000
L_Q = 16640
L_MW = L_Q + 256
L_FLAG = L_MW + 16
L_TAG = L_FLAG + 16
L_PROG = L_TAG + 8
L_ANCH = L_PROG + 8
L_LL = L_ANCH + 16
L_O = L_LL + 1024
L_X = L_O + 2048
L_H = L_X + 1280
L_END = L_H + 512
NFH = 27
CONS0 = 216
import gen6
gen6.L_ANCH, gen6.L_PROG = L_ANCH, L_PROG


class Gen(G6):
    def __init__(self, npipe=3, gap=2, warm=0, uflag='sc1', gplate=False, rwarm='', lflag='sc1', xl='sc1 nt', perm=0, ol='sc1 nt', nst='', ewarm=3, comp=False, lay=True, wolate=6, bsleep=3, pad=True, probe=None, **kw):
        kw.setdefault("N1", 24); kw.setdefault("N0", 30); kw.setdefault("xfast", 6); kw.setdefault("flagstep", 8); kw.setdefault("DL", 4); kw.setdefault("theta2", -70)
        super().__init__(**kw)
        self.npipe, self.gap, self.warm, self.uflag = npipe, gap, warm, uflag
        self.gplate, self.rwarm, self.lflag, self.xl, self.perm = gplate, rwarm, lflag, xl, perm
        self.ol, self.nst, self.ewarm = ol, nst, ewarm
        self.comp = comp
        self.lay = lay
        self.pad = pad
        self.probe = probe
        self.steady = False
        self.wolate, self.bsleep = wolate, bsleep
        if lay:
            self.NB = self.NS

    def gen(self):
        txt = super().gen()
        if self.pad:
            a = txt.index("L_streamer:\n"); b = txt.index("  s_branch L_post\n") + len("  s_branch L_post\n")
            blk = txt[a:b]
            txt = txt[:a] + txt[b:]
            f = txt.index("L_ffn:\n")
            txt = txt[:f] + blk + txt[f:]
        ld = "  s_load_dwordx16 s[16:31], s[0:1], 0\n  s_load_dwordx8 s[32:39], s[0:1], 64\n"
        txt = txt.replace(ld, "", 1)
        txt = txt.replace("  s_cmp_ge_u32 s2, 256\n", ld + "  s_cmp_ge_u32 s2, 256\n", 1)
        if self.perm == 1:
            txt = txt.replace("L_go:\n", "L_go:\n  s_lshl_b32 s4, s2, 3\n  s_lshr_b32 s2, s2, 5\n  s_or_b32 s2, s2, s4\n  s_and_b32 s2, s2, 255\n", 1)
        if self.perm == 2:
            txt = txt.replace("L_go:\n", "L_go:\n  s_lshr_b32 s4, s2, 3\n  s_and_b32 s4, s4, 1\n  s_xor_b32 s2, s2, s4\n", 1)
        return txt.replace(f"lds={gen6.L_END}", f"lds={L_END}")

    def setdeep(self, sreg, fb=False, base=0):
        A = self.A
        if not (fb and self.fb) or self.LA == self.D:
            return super().setdeep(sreg, fb, base)
        st = self.tau / 16.0
        A("s_waitcnt lgkmcnt(0)")
        A("v_readfirstlane_b32 s66, v59")
        A(f"s_add_u32 s67, s15, {base}")
        A(f"s_mul_i32 s68, s67, {self.tau}")
        A("s_sub_u32 s68, s64, s68")
        if self.comp:
            if self.DL:
                A(f"s_mul_i32 s69, s69, {round((self.D - self.DL) * st)}")
                A("s_sub_u32 s68, s68, s69")
            A(f"s_andn2_b32 s69, {round((self.LA - self.D) * st)}, vcc_lo")
            A("s_sub_u32 s68, s68, s69")
        A("v_mov_b32 v58, s67")
        A("v_mov_b32 v59, s68")
        A(f"ds_write_b64 v57, v[58:59] offset:{L_PROG}")
        A("s_sub_u32 s68, s68, s66")
        if self.DL:
            A(f"s_add_u32 s69, s68, 2000")
            A(f"s_cmp_lt_u32 s69, {2000 + self.theta2}")
            A("s_cselect_b32 s69, 1, 0")
        else:
            A("s_mov_b32 s69, 0")
        A(f"s_cmp_gt_i32 s68, {self.theta}")
        A("s_cselect_b64 vcc, -1, 0")
        if self.kmask or self.vmask:
            A(f"s_bitcmp1_b32 s{sreg}, s15")
            A("s_cselect_b64 vcc, -1, vcc")
        if self.diag:
            A("s_mov_b32 m0, s67")
            A("v_writelane_b32 v55, s64, m0")
            A("s_and_b32 s66, vcc_lo, 2")
            A("s_or_b32 s66, s66, s69")
            A("v_writelane_b32 v54, s66, m0")
        if self.DL:
            A("s_cmp_eq_u32 s69, 0")

    def stamp(self, i):
        if self.probe is not None and self.probe == i and getattr(self, "inhelper", False):
            self.A("s_memrealtime s[96:97]")
        if self.probe is not None and self.probe == 100 + i and not getattr(self, "inhelper", True):
            self.A("s_memrealtime s[96:97]")
        super().stamp(i)

    def dwait(self):
        A = self.A
        if not self.steady:
            A(f"s_waitcnt vmcnt({self.D-1})")
            return
        self.uid += 1
        A(f"s_waitcnt vmcnt({self.LA-1})")
        A(f"s_cbranch_vccnz L_dw{self.uid}")
        A(f"s_waitcnt vmcnt({self.D-1})")
        if self.DL:
            A(f"s_cbranch_scc1 L_dw{self.uid}")
            A(f"s_waitcnt vmcnt({self.DL-1})")
        A(f"L_dw{self.uid}:")

    def sload(self, n, switch=None, steady=False):
        super().sload(n, switch, steady)
        if steady and n % 8 == 0 and self.DL:
            self.A("s_cmp_eq_u32 s69, 0")

    def setup1(self):
        A = self.A
        if self.diag:
            self.srd(48, 38, WS_SIZE)
        A("v_and_b32 v6, 3, v2")
        A("v_lshl_add_u32 v6, v1, 2, v6          ; rho*4 + (j&3)")
        A("v_lshlrev_b32 v53, 4, v6")
        A("v_and_b32 v6, 1, v1")
        A("v_lshl_add_u32 v6, v2, 1, v6")
        A("s_lshl_b32 s7, s3, 9")
        A("v_lshl_add_u32 v60, v6, 4, s7")
        self.masks(12, 6, 40)
        A("s_mov_b32 s40, 0xaaaaaaaa"); A("s_mov_b32 s41, 0xaaaaaaaa")
        A("s_mov_b32 s42, 0xcccccccc"); A("s_mov_b32 s43, 0xcccccccc")
        A(f"s_mov_b32 s57, {self.kmask:#x}"); A(f"s_mov_b32 s58, {self.vmask:#x}")

    def streamer_issue(self):
        if self.lay:
            mark = len(self.L)
            super().streamer_issue()
            body = self.L[mark:]
            del self.L[mark:]
            k = [i for i, t in enumerate(body) if "lgkmcnt(0)" in t][0]
            self.L += body[:k]
            d = self.diag
            self.diag = False
            self.setup1()
            self.diag = d
            self.L += body[k:]
            if d:
                self.srd(48, 38, WS_SIZE)
        else:
            super().streamer_issue()

    def streamer(self):
        A = self.A
        D, LA, N0, Dp = self.D, self.LA, self.N0, self.Dp
        self.inhelper = False
        if self.lay and not self.pad:
            self.L.append(".p2align 12")
        A("L_streamer:")
        if not self.lay:
            self.setup1()
        A("s_mov_b32 s69, 0")
        A("s_lshl_b32 s7, s3, 2")
        A("v_mov_b32 v61, s7                     ; w*4")
        A("v_mov_b32 v6, 0")
        A(f"ds_write_b32 v61, v6 offset:{L_FLAG}")
        if self.fb:
            A("s_memrealtime s[64:65]")
            A("v_mov_b32 v56, 0")
            A("v_mov_b32 v7, 0")
            A(f"ds_write_b64 v56, v[6:7] offset:{L_PROG}")
            A("s_cmp_eq_u32 s3, 1")
            A(f"s_cselect_b32 s7, 0, {L_H - L_PROG + 256}")
            A("v_mov_b32 v57, s7")
            A("s_waitcnt lgkmcnt(0)")
            A("s_add_u32 s64, s64, 0x100000")
            A("v_mov_b32 v7, s64")
            A(f"ds_write_b32 v56, v7 offset:{L_ANCH}")
        A("s_lshl_b32 s7, s3, 8")
        A("v_lshl_add_u32 v62, v0, 2, s7")
        A("s_lshl_b32 s7, s3, 12")
        A("v_and_b32 v8, 60, v0")
        A("v_add_u32 v8, s7, v8")
        A("v_mov_b32 v5, 0xff800000")
        A("s_mov_b32 s15, 0")
        N1, Dp2 = self.N1, self.Dp2
        def pf(n):
            d = Dp if n < self.n1 else Dp2
            A(f"s_waitcnt vmcnt({d-1})")
            if (n - Dp) % 4 == 0 and (n - Dp) // 4 < 8:
                self.stamp(7 + (n - Dp) // 4)
            self.sload(n)
        for n in range(Dp, N1):
            pf(n)
        if self.pad:
            A("s_branch L_post")
            self.L.append(".p2align 12")
            A("L_pad:")
            A("s_branch L_pad_ret")
            A("L_post:")
        A("s_waitcnt lgkmcnt(0)")
        self.stamp(1)
        A("s_barrier")
        self.stamp(2)
        A(f"ds_read_b128 v[44:47], v53 offset:{L_Q}")
        rest = list(range(N1, N0))
        if rest:
            pf(rest.pop(0))
        A("s_waitcnt lgkmcnt(0)")
        for g in range(4):
            pat = (0xf << (4 * g)) * 0x00010001
            A(f"s_mov_b32 s44, {pat:#x}"); A(f"s_mov_b32 s45, {pat:#x}")
            for r in range(4):
                A(f"v_cndmask_b32 v{16+4*g+r}, 0, v{44+r}, s[44:45]")
            if rest:
                pf(rest.pop(0))
        for n in rest:
            pf(n)
        self.nop(2)
        self.stamp(3)
        NB = self.NB
        issued, landed = N0, N0 - Dp2
        last_mfma = {}
        A("s_mov_b64 vcc, 0")
        for n in range(NB):
            G, g = n // 4, n % 4
            if n % 16 == 0 and self.diag and self.fb:
                A("s_memrealtime s[64:65]")
                A("s_waitcnt lgkmcnt(0)")
                A(f"v_writelane_b32 v55, s64, {n//16}")
                A(f"v_writelane_b32 v54, 0, {n//16}")
            want = issued - n <= LA or (n >= 1 and (n <= D or n % self.cu == 0))
            if want and issued < NB + LA:
                prev = issued - self.NS if issued < self.NS + 16 else issued - 16
                if prev < n:
                    self.dwait()
                    landed = max(landed, issued - (LA - 1))
                    self.sload(issued)
                    issued += 1
            if landed <= n:
                A(f"s_waitcnt vmcnt({issued - n - 1})")
                landed = n + 1
            dreg = 32 + 4 * (G & 1)
            self.mfma(dreg, 16 + 4 * g, self.slot(n), None if g == 0 else dreg)
            last_mfma[G] = len(self.L)
            if g == 2 and G > 0:
                since = sum(1 for t in self.L[last_mfma[G - 1]:] if not t.endswith(":") and "vmcnt" not in t and "cbranch" not in t and "s69" not in t)
                self.kstep_post(n, since)
            if n % 16 == 15:
                A("v_add_u32 v8, 256, v8")
        assert issued == NB + LA, (issued, NB + LA)
        A(f"s_mov_b32 s15, {NB//16}")
        self.fb_sample()
        self.steady = True
        A("L_kloop:")
        self.setdeep(57, True, 0)
        for n in range(16):
            G, g = n // 4, n % 4
            self.dwait()
            self.sload(n + LA, "KV", True)
            dreg = 32 + 4 * (G & 1)
            self.mfma(dreg, 16 + 4 * g, self.slot(n, True), None if g == 0 else dreg)
            self.kstep_post(n, 9)
            if n == 14:
                self.fb_sample()
        A("v_add_u32 v8, 256, v8")
        A("s_add_u32 s15, s15, 1")
        A("s_cmp_lt_u32 s15, 16")
        A("s_cbranch_scc1 L_kloop")
        self.nop(6)
        self.kpost(36, 0)
        self.stamp(4)
        A("s_lshl_b32 s7, s3, 12")
        A("v_lshl_add_u32 v8, v2, 2, v1          ; 4j+s")
        A("v_lshlrev_b32 v8, 2, v8")
        A("v_add_u32 v8, s7, v8")
        A("ds_read_b32 v11, v8 offset:64")
        self.wave_reduce("v_max_f32", 5, 6, rors=(4, 8))
        self.bfr(9, 5)
        A(f"v_mul_f32 v9, {SCALE:#x}, v9")
        self.bfr(9, 9)
        A(f"ds_write_b32 v61, v9 offset:{L_MW}")
        A("v_mov_b32 v5, 0                       ; l")
        A("v_mov_b32 v63, 0")
        for r in range(4):
            A(f"v_mov_b32 v{40+r}, 0")
        A("s_mov_b32 s15, 0")
        A("L_vloop:")
        self.setdeep(58, True, 16)
        A("s_waitcnt lgkmcnt(0)")
        self.pcalc()
        for n in range(16):
            self.abuild(16, 10, 12, n)
            self.dwait()
            self.sload(n + LA, "END", True)
            self.mfma(40, 16, self.slot(n, True), 40)
            if n == 14:
                self.fb_sample()
            if n == self.flagstep:
                A("v_add_u32 v63, 1, v63")
                A(f"ds_write_b32 v62, v5 offset:{L_LL}")
                A(f"ds_write_b32 v61, v63 offset:{L_FLAG}")
        A("s_add_u32 s15, s15, 1")
        A("s_cmp_lt_u32 s15, 16")
        A("s_cbranch_scc1 L_vloop")
        self.stamp(5)
        self.exec_lo()
        self.nop(3)
        A(f"ds_write_b128 v60, v[40:43] offset:{L_O}")
        A("s_waitcnt lgkmcnt(0)")
        A("s_barrier")
        self.stamp(6)
        if self.probe is not None and self.probe >= 100:
            A("s_barrier")
            A(f"s_cmp_eq_u32 s2, {self.spin}")
            A("s_cbranch_scc0 L_nospin2")
            A("s_cmp_eq_u32 s3, 0")
            A("s_cbranch_scc0 L_nospin2")
            A("s_waitcnt lgkmcnt(0)")
            A("s_sub_u32 s96, s96, s100")
            A("s_add_u32 s100, s100, s96")
            A("L_spin2:")
            A("s_memrealtime s[98:99]")
            A("s_waitcnt lgkmcnt(0)")
            A("s_sub_u32 s98, s98, s100")
            A("s_cmp_lt_u32 s98, 10000")
            A("s_cbranch_scc1 L_spin2")
            A("L_nospin2:")
        if self.diag:
            A("s_barrier")
            for _ in range(3):
                A("s_sleep 127")
        if self.diag and self.fb:
            A("s_lshl_b32 s7, s2, 2"); A("s_add_u32 s7, s7, s3"); A("s_lshl_b32 s7, s7, 8"); A("s_add_u32 s7, s7, 0x140000")
            A("v_lshlrev_b32 v6, 2, v0")
            A("buffer_store_dword v55, v6, s[48:51], s7 offen")
            A("buffer_store_dword v54, v6, s[48:51], s7 offen offset:128")
        self.flush_stamps(15)
        A("s_endpgm")

    def nearfar(self, tag, store):
        A = self.A
        if self.fast:
            A("s_cmp_eq_u32 s57, 0")
            A(f"s_cbranch_scc0 L_{tag}_far")
            A(store + " " + self.nst)
            A(f"s_branch L_{tag}_fin")
            A(f"L_{tag}_far:")
        A(store + " sc1")
        A(f"L_{tag}_fin:")

    def tagcheck(self, regs, t0=3, t1=7):
        A = self.A
        r = list(regs)
        if len(r) == 2:
            A(f"v_cmp_ne_u32 vcc, s54, v{r[0]}")
            A(f"v_cmp_ne_u32 s[44:45], s54, v{r[1]}")
        else:
            A(f"v_and_b32 v{t0}, v{r[0]}, v{r[1]}")
            A(f"v_or_b32 v{t1}, v{r[0]}, v{r[1]}")
            for i in range(2, len(r), 2):
                A(f"v_bitop3_b32 v{t0}, v{t0}, v{r[i]}, v{r[i+1]} bitop3:0x80")
                A(f"v_or3_b32 v{t1}, v{t1}, v{r[i]}, v{r[i+1]}")
            A(f"v_cmp_ne_u32 vcc, s54, v{t0}")
            A(f"v_cmp_ne_u32 s[44:45], s54, v{t1}")
        A("s_add_u32 s47, s47, 1")
        A("s_or_b64 vcc, vcc, s[44:45]")

    def tpoll(self, label, loads, tags, sleep=0, first=None, issued=False):
        A = self.A
        A("s_mov_b32 s47, 0")
        if not issued:
            for t in loads:
                A(t)
        if first:
            first()
        A(f"{label}:")
        A("s_waitcnt vmcnt(0)")
        self.tagcheck(tags)
        A(f"s_cbranch_scc0 {label}_ok")
        A("s_mov_b64 exec, vcc")
        if sleep:
            A(f"s_sleep {sleep}")
        for t in loads:
            A(t)
        A("s_cmp_lt_u32 s47, 0x40000")
        A(f"s_cbranch_scc1 {label}")
        A(f"{label}_ok:")
        A("s_mov_b64 exec, -1")

    def pack(self, tagreg):
        A = self.A
        A("s_mov_b32 s44, 0"); A("s_mov_b32 s45, -1")
        A(f"v_mov_b32 v25, s{tagreg}")
        A(f"v_mov_b32 v27, s{tagreg}")
        A("v_cndmask_b32 v24, v28, v30, s[44:45]")
        A("v_cndmask_b32 v26, v29, v31, s[44:45]")

    def gather8(self, label, R, sleep, lowmask, pre=None):
        A = self.A
        A("s_mov_b32 s47, 0")
        A(f"{label}:")
        if pre:
            pre()
        A("s_add_u32 s43, s41, 4096")
        for c in range(8):
            A(f"buffer_load_dwordx4 v[{R+4*c}:{R+3+4*c}], v228, s[48:51], s{41 if c < 4 else 43} offen offset:{1024*(c%4)} {self.xl}")
        for c in range(8):
            A(f"s_waitcnt vmcnt({7-c})")
            if c == 0:
                A(f"v_and_b32 v6, v{R+1}, v{R+3}")
                A(f"v_or_b32 v7, v{R+1}, v{R+3}")
            else:
                A(f"v_bitop3_b32 v6, v6, v{R+4*c+1}, v{R+4*c+3} bitop3:0x80")
                A(f"v_or3_b32 v7, v7, v{R+4*c+1}, v{R+4*c+3}")
                A(f"v_add_f32 v{R}, v{R}, v{R+4*c}")
                A(f"v_add_f32 v{R+2}, v{R+2}, v{R+4*c+2}")
        A("v_xor_b32 v8, s54, v6")
        A("v_xor_b32 v9, s54, v7")
        A(f"v_cmp_lt_u32 vcc, {lowmask}, v8")
        A(f"v_cmp_lt_u32 s[44:45], {lowmask}, v9")
        A("s_add_u32 s47, s47, 1")
        A("s_or_b64 vcc, vcc, s[44:45]")
        A(f"s_cbranch_scc0 {label}_ok")
        if sleep:
            A(f"s_sleep {sleep}")
        A("s_cmp_lt_u32 s47, 0x40000")
        A(f"s_cbranch_scc1 {label}")
        A(f"{label}_ok:")

    def colsum(self, R):
        A = self.A
        A(f"v_add_f32 v{R}, v{R}, v{R+4}")
        A(f"v_add_f32 v{R+2}, v{R+2}, v{R+6}")
        A(f"v_add_f32 v{R+8}, v{R+8}, v{R+12}")
        A(f"v_add_f32 v{R+10}, v{R+10}, v{R+14}")
        A(f"v_add_f32 v{R}, v{R}, v{R+8}")
        A(f"v_add_f32 v{R+2}, v{R+2}, v{R+10}")
        self.nop(2)
        A(f"v_permlane32_swap_b32 v{R}, v{R+2}")
        self.nop(1)
        A(f"v_add_f32 v{R}, v{R}, v{R+2}")
        self.nop(1)
        A(f"v_mov_b32 v{R+2}, v{R}")
        self.nop(2)
        A(f"v_permlane16_swap_b32 v{R}, v{R+2}")
        self.nop(1)
        A(f"v_add_f32 v{R}, v{R}, v{R+2}")
        self.nop(2)
        A(f"v_add_f32_dpp v{R}, v{R}, v{R} row_ror:8 {DPPF}")

    def helper(self):
        A = self.A
        W = self.W
        self.inhelper = True
        A("L_helper:")
        A("s_sub_u32 s40, s3, 4                  ; hw")
        A("s_mul_i32 s7, s5, 160")
        A("v_lshl_add_u32 v4, v2, 2, v1          ; 4j+s")
        A("v_lshlrev_b32 v4, 1, v4")
        A("v_lshlrev_b32 v3, 2, v0               ; lane*4")
        A("v_lshlrev_b32 v228, 4, v0             ; lane*16")
        A("s_cmp_eq_u32 s40, 0")
        A("s_cbranch_scc0 L_h_noq")
        A("v_lshlrev_b32 v8, 13, v1")
        A("v_lshl_add_u32 v8, v2, 4, v8          ; s*8192 + j*16")
        A("v_add_u32 v9, 0x8000, v8")
        A("v_add_u32 v10, 0x10000, v8")
        A("v_add_u32 v11, 0x18000, v8")
        A(f"s_mul_i32 s42, s5, {80*8192}")
        A("s_lshl_b32 s43, s4, 8")
        A("s_add_u32 s42, s42, s43")
        A("s_waitcnt lgkmcnt(0)")
        A(f"s_load_dword s54, s[38:39], {WS_E:#x}")
        self.srd(8, 16, 1280)
        self.srd(12, 22, 640 * 8192)
        self.x_issue()
        for n in range(20):
            sl = W + 4 * n
            A(f"buffer_load_dwordx4 v[{sl}:{sl+3}], v{8+n%4}, s[12:15], s42 offen {self.wflag}")
            if n % 4 == 3 and n < 19:
                A("s_add_u32 s42, s42, 0x20000")
        self.stamp(1)
        self.srd(48, 38, WS_SIZE)
        self.masks(12, 6, 44)
        self.gaddr()
        A("s_lshl_b32 s42, s6, 10")
        A(f"s_add_u32 s42, s42, {WS_QN}")
        A("s_and_b32 s41, s42, 0xffffe000")
        A("s_waitcnt vmcnt(20)")
        self.stamp(2)
        self.ln()
        self.stamp(3)
        for n in range(20):
            self.abuild(24, 21 + n // 16, 12, n % 16)
            A(f"s_waitcnt vmcnt({19-n})")
            self.nop(1)
            self.mfma(28, 24, W + 4 * n, None if n == 0 else 28)
        A("s_waitcnt lgkmcnt(0)")
        self.mktag()
        A("s_getreg_b32 s47, hwreg(HW_REG_XCC_ID, 0, 4)")
        A("s_or_b32 s47, s47, s54")
        self.pack(47)
        A(f"buffer_store_dwordx4 v[24:27], v231, s[48:51], s42 offen {self.nst}")
        A(f"s_add_u32 s42, s42, {WS_QF - WS_QN}")
        A("s_waitcnt vmcnt(0)")
        def pre():
            A(f"s_cmp_lt_u32 s47, {self.xfast}")
            A("s_cbranch_scc1 L_q_keep")
            A(f"s_xor_b32 s41, s41, {WS_QF ^ WS_QN}")
            A(f"s_cmp_eq_u32 s47, {self.xfast}")
            A("s_cbranch_scc0 L_q_keep")
            A("buffer_store_dwordx4 v[24:27], v231, s[48:51], s42 offen sc1")
            A("L_q_keep:")
        self.gather8("L_q_x", 160, self.qsleep, 15, pre)
        A("v_xor_b32 v7, v6, v7")
        A("v_cvt_pk_bf16_f32 v8, v160, v162")
        A(f"ds_write_b32 v3, v8 offset:{L_Q}")
        A("v_mov_b32 v6, s54")
        A("v_mov_b32 v8, 0")
        A(f"ds_write_b64 v8, v[6:7] offset:{L_TAG}")
        A("v_readfirstlane_b32 s57, v7")
        A("s_cmp_eq_u32 s57, 0")
        A("s_cbranch_scc1 L_q_near")
        A("buffer_store_dwordx4 v[24:27], v231, s[48:51], s42 offen sc1")
        A("L_q_near:")
        A("s_waitcnt lgkmcnt(0)")
        self.stamp(4)
        A("s_barrier")
        A("s_branch L_h_shadow")
        A("L_h_noq:")
        if self.pad:
            A("s_cmp_eq_u32 s40, 2")
            A("s_cbranch_scc1 L_pad")
            A("L_pad_ret:")
        A("s_waitcnt lgkmcnt(0)")
        self.srd(8, 16, 1280)
        self.srd(48, 38, WS_SIZE)
        A("s_cmp_eq_u32 s40, 1")
        A("s_cbranch_scc1 L_ffn")
        if self.ewarm:
            A("s_cmp_eq_u32 s40, 3")
            A("s_cbranch_scc0 L_h_shadow")
            A(f"s_mul_i32 s59, s5, {32*640}")
            A("s_mul_i32 s41, s4, 640")
            A("s_add_u32 s59, s59, s41")
            A(f"s_add_u32 s41, s59, {WS_GP}")
            A(f"s_add_u32 s59, s59, {WS_U}")
            A("s_mov_b32 exec_hi, 0xff")
            A("buffer_load_dwordx4 v[8:11], v228, s[48:51], s59 offen")
            if self.ewarm & 2:
                A("buffer_load_dwordx4 v[12:15], v228, s[48:51], s41 offen")
            A("s_mov_b64 exec, -1")
        A("L_h_shadow:")
        self.gaddr()
        self.srd(12, 24, 4096 * 1280)
        A("v_mul_u32_u24 v36, 10240, v1")
        A("v_lshl_add_u32 v36, v2, 4, v36")
        A("v_mov_b32 v37, 0x7fffffff")
        A("s_mov_b32 s44, 0x03ff03ff"); A("s_mov_b32 s45, 0x03ff03ff")
        A("v_cndmask_b32 v239, v37, v36, s[44:45]")
        A("s_lshl_b32 s46, s4, 2")
        A("s_add_u32 s46, s46, s40               ; 4h + hw")
        A(f"s_mul_i32 s46, s46, {32*1280}")
        A("s_mul_i32 s47, s5, 160")
        A("s_add_u32 s46, s46, s47")
        def wo_issue(lo, hi, full):
            for e in range(lo, hi):
                sl = W + (16 if e & 1 else 0) + 4 * (e // 2)
                if e % 2 == 0 and e > 0:
                    A("s_add_u32 s46, s46, 2560")
                A(f"buffer_load_dwordx4 v[{sl}:{sl+3}], v239, s[12:15], s46 offen offset:{1280*(e&1)} {self.wflag}")
        def wo_perm():
            A("s_mov_b32 s44, 0x05040100")
            A("s_mov_b32 s45, 0x07060302")
            E = lambda i, c: W + 4 * i + c
            O = lambda i, c: W + 16 + 4 * i + c
            if self.wolate:
                for c in range(4):
                    for i in range(4):
                        A(f"v_perm_b32 v{192+4*c+i}, v{O(i,c)}, v{E(i,c)}, s44")
                        A(f"v_perm_b32 v{208+4*c+i}, v{O(i,c)}, v{E(i,c)}, s45")
                return
            for i in range(4):
                A(f"v_perm_b32 v16, v{O(i,i)}, v{E(i,i)}, s44")
                A(f"v_perm_b32 v{O(i,i)}, v{O(i,i)}, v{E(i,i)}, s45")
                A(f"v_mov_b32 v{E(i,i)}, v16")
                for c in range(i + 1, 4):
                    A(f"v_perm_b32 v16, v{O(i,c)}, v{E(i,c)}, s44")
                    A(f"v_perm_b32 v17, v{O(i,c)}, v{E(i,c)}, s45")
                    A(f"v_perm_b32 v{E(i,c)}, v{O(c,i)}, v{E(c,i)}, s44")
                    A(f"v_perm_b32 v{O(i,c)}, v{O(c,i)}, v{E(c,i)}, s45")
                    A(f"v_mov_b32 v{E(c,i)}, v16")
                    A(f"v_mov_b32 v{O(c,i)}, v17")
        NE = 8 - self.wolate
        wo_issue(0, NE, True)
        A("s_cmp_lt_u32 s40, 2")
        A("s_cbranch_scc1 L_h_nobar")
        A("s_barrier")
        self.gettag()
        A("L_h_nobar:")
        A("s_waitcnt vmcnt(0)")
        self.stamp(5)
        if not self.wolate:
            wo_perm()
        self.stamp(6)
        A("v_mov_b32 v227, 0")
        A("s_mov_b32 s55, 0")
        if self.fb:
            A("s_cmp_eq_u32 s40, 2")
            A("s_cbranch_scc1 L_pacer")
        A("s_cmp_eq_u32 s40, 3")
        A("s_cselect_b32 s41, s2, 0")
        A(f"s_cmp_ge_u32 s41, {CONS0}")
        A("s_cbranch_scc0 L_h_nocons")
        A("s_mov_b32 s55, 1")
        self.srd(60, 34, 1280)
        A(f"s_sub_u32 s52, s2, {CONS0}")
        A("s_lshl_b32 s53, s52, 5")
        A("v_and_b32 v6, 7, v0")
        A("v_lshrrev_b32 v7, 5, v0")
        A("v_lshl_add_u32 v229, v6, 1, v7")
        A("v_lshlrev_b32 v229, 1, v229           ; (2t + half)*2")
        A("v_lshrrev_b32 v230, 3, v0")
        A("v_mul_u32_u24 v230, 2560, v230")
        A("v_lshl_add_u32 v230, v6, 4, v230      ; g*2560 + t*16")
        A("s_mul_i32 s42, s52, 52")
        A("s_lshr_b32 s42, s42, 8")
        A(f"s_mul_i32 s42, s42, {32*640 - 640}")
        A("s_lshl_b32 s52, s52, 7")
        A("s_add_u32 s52, s52, s42")
        A(f"s_add_u32 s56, s52, {WS_GP}")
        A(f"s_add_u32 s52, s52, {WS_U}")
        gpl = [f"buffer_load_dwordx4 v[{8+4*i}:{11+4*i}], v230, s[48:51], s56 offen offset:{640*i} sc1" for i in range(4)]
        def gcalc():
            self.colsum(8)
            self.bfr(8, 8)
            A(f"v_mul_f32 v9, {LOG2E | 0x80000000:#x}, v8")
            A("v_exp_f32 v9, v9")
            self.nop(1)
            A("v_add_f32 v9, 1.0, v9")
            A("v_rcp_f32 v9, v9")
            self.nop(1)
            A("v_mul_f32 v8, v8, v9")
            self.bfr(224, 8)
        if not self.gplate or self.rwarm:
            self.lds_wait("L_h_trigA", 227, L_FLAG, "s_cmp_ge_u32", 1 if not self.gplate else 12, 100)
        A("buffer_load_ushort v225, v229, s[8:11], s53 offen")
        if self.rwarm:
            fl = self.rwarm.strip("_")
            for i in range(4):
                A(f"buffer_load_dwordx4 v[{128+4*i}:{131+4*i}], v230, s[48:51], s52 offen offset:{640*i} {fl}")
                A(f"buffer_load_dwordx4 v[{144+4*i}:{147+4*i}], v230, s[48:51], s56 offen offset:{640*i} {fl}")
        if not self.gplate:
            self.tpoll("L_c_gp", gpl, range(9, 24, 2), sleep=100)
            gcalc()
        A("s_waitcnt vmcnt(0)")
        A("v_lshlrev_b32 v225, 16, v225")
        A("L_h_nocons:")
        self.stamp(7)
        A("v_bfe_u32 v6, v0, 3, 2                ; w")
        A("v_and_b32 v7, 7, v0                   ; t")
        A("v_lshlrev_b32 v232, 9, v6")
        A("v_lshl_add_u32 v232, v7, 4, v232")
        A("s_lshl_b32 s7, s40, 7")
        A("v_add_u32 v232, s7, v232")
        A("v_lshlrev_b32 v233, 2, v6             ; w*4")
        A("v_lshl_add_u32 v234, v7, 1, v1")
        A("v_lshlrev_b32 v234, 4, v234")
        A("s_lshl_b32 s58, s6, 10")
        A("s_lshl_b32 s7, s40, 8")
        A("s_add_u32 s58, s58, s7")
        A("s_lshl_b32 s43, s4, 13")
        A("s_add_u32 s43, s43, s7")
        A("v_lshrrev_b32 v6, 2, v2               ; a")
        A("v_and_b32 v7, 3, v2                   ; b")
        A("v_lshlrev_b32 v235, 11, v6")
        A("v_lshl_add_u32 v235, v1, 6, v235")
        A("v_lshl_add_u32 v235, v7, 4, v235      ; a*2048 + s*64 + b*16")
        A("v_lshlrev_b32 v236, 5, v6             ; a*32")
        A("s_lshl_b32 s41, s4, 7")
        A(f"s_add_u32 s41, s41, {WS_ML}")
        A("v_lshl_add_u32 v237, v2, 1, v1")
        A("s_mul_i32 s7, s40, 320")
        A("v_lshl_add_u32 v237, v237, 4, s7")
        A("v_lshlrev_b32 v238, 3, v0             ; lane*8")
        A(f"s_mul_i32 s59, s5, {32*640}")
        A("s_mul_i32 s7, s4, 640")
        A("s_add_u32 s59, s59, s7")
        A(f"s_add_u32 s59, s59, {WS_U}")
        A("v_lshlrev_b32 v4, 2, v0")
        if self.warm:
            for r in range(4):
                A(f"v_not_b32 v{40+r}, s54")
            if self.warm & 1:
                A("s_cmp_eq_u32 s40, 0")
                A("s_cbranch_scc0 L_h_nowarm")
                A("s_mov_b32 exec_hi, 0xff")
                A("buffer_store_dwordx4 v[40:43], v228, s[48:51], s59 offen sc1")
                A("s_mov_b64 exec, -1")
                A("L_h_nowarm:")
            A("s_waitcnt vmcnt(0)")
        A("s_mov_b32 s47, 0")
        A("L_h_trigB:")
        A(f"ds_read_b128 v[8:11], v227 offset:{L_FLAG}")
        A("s_waitcnt lgkmcnt(0)")
        A("v_min_u32 v8, v8, v9")
        A("v_min3_u32 v8, v8, v10, v11")
        A("s_add_u32 s47, s47, 1")
        A("v_readfirstlane_b32 s42, v8")
        A("s_cmp_ge_u32 s42, 16")
        A("s_cbranch_scc1 L_h_trigB_ok")
        A(f"s_sleep {self.bsleep}")
        A("s_cmp_lt_u32 s47, 0x100000")
        A("s_cbranch_scc1 L_h_trigB")
        A("L_h_trigB_ok:")
        wo_issue(NE, 8, True)
        A(f"ds_read_b128 v[8:11], v227 offset:{L_MW}")
        A(f"ds_read_b32 v19, v233 offset:{L_MW}")
        for w in range(4):
            A(f"ds_read_b32 v{12+w}, v4 offset:{L_LL+256*w}")
        A("s_waitcnt lgkmcnt(0)")
        A("v_max3_f32 v20, v8, v9, v10")
        A("v_max_f32 v20, v20, v11")
        A("v_sub_f32 v19, v19, v20")
        A(f"v_mul_f32 v19, {LOG2E:#x}, v19")
        A("v_exp_f32 v19, v19")
        A("s_cmp_eq_u32 s40, 1")
        A("s_cbranch_scc0 L_h_noml")
        for w in range(4):
            A(f"v_sub_f32 v{8+w}, v{8+w}, v20")
            A(f"v_mul_f32 v{8+w}, {LOG2E:#x}, v{8+w}")
            A(f"v_exp_f32 v{8+w}, v{8+w}")
        A("v_mul_f32 v22, v8, v12")
        for w in range(1, 4):
            A(f"v_fmac_f32 v22, v{8+w}, v{12+w}")
        self.wave_reduce("v_add_f32", 22, 21)
        A("v_mov_b32 v21, s54")
        A("v_mov_b32 v23, s54")
        A("s_lshl_b32 s7, s6, 4")
        A(f"s_add_u32 s7, s7, {WS_ML}")
        A("s_mov_b64 exec, 1")
        self.nearfar("ml", "buffer_store_dwordx4 v[20:23], off, s[48:51], s7")
        A("s_mov_b64 exec, -1")
        A("L_h_noml:")
        self.stamp(8)
        A("v_mov_b32 v41, s54")
        A("v_mov_b32 v43, s54")
        self.stamp(9)
        A("s_barrier")
        self.stamp(10)
        A(f"ds_read_b128 v[8:11], v232 offset:{L_O}")
        mll = [f"buffer_load_dwordx4 v[{24+4*x}:{27+4*x}], v236, s[48:51], s41 offen offset:{16*x} {self.ol}" for x in range(2)]
        ol = [f"buffer_load_dwordx4 v[{32+4*x}:{35+4*x}], v235, s[48:51], s43 offen offset:{1024*x} {self.ol}" for x in range(2)]
        for t in mll:
            A(t)
        A("s_waitcnt lgkmcnt(0)")
        for r in range(4):
            A(f"v_mul_f32 v{8+r}, v19, v{8+r}")
        for r in range(4):
            A(f"v_add_f32_dpp v{8+r}, v{8+r}, v{8+r} row_ror:8 {DPPF}")
        A("s_mov_b32 s44, 0x00ff00ff")
        A("s_mov_b32 s45, 0")
        A("v_permlane16_swap_b32 v8, v10")
        A("v_permlane16_swap_b32 v9, v11")
        self.nop(1)
        A("v_add_f32 v40, v8, v10")
        A("v_add_f32 v42, v9, v11")
        A("s_mov_b64 exec, s[44:45]")
        self.nearfar("o", "buffer_store_dwordx4 v[40:43], v234, s[48:51], s58 offen")
        A("s_mov_b64 exec, -1")
        for t in ol:
            A(t)
        def weights():
            if self.wolate:
                A("s_waitcnt vmcnt(5)")
                wo_perm()
            A("s_waitcnt vmcnt(3)")
            self.tagcheck([25, 27, 29, 31])
            A("v_max_f32 v18, v24, v28")
            A("s_cbranch_scc1 L_h_mlwait")
            A("L_h_mlok:")
            for r in (4, 8):
                self.nop(2 if r > 4 else 1)
                A(f"v_max_f32_dpp v18, v18, v18 row_ror:{r} {DPPF}")
            A("v_sub_f32 v16, v24, v18")
            A("v_sub_f32 v17, v28, v18")
            A(f"v_mul_f32 v16, {LOG2E:#x}, v16")
            A(f"v_mul_f32 v17, {LOG2E:#x}, v17")
            A("v_exp_f32 v16, v16")
            A("v_exp_f32 v17, v17")
            A("v_mul_f32 v18, v26, v16")
            A("v_fmac_f32 v18, v30, v17")
            for r in (4, 8):
                self.nop(2)
                A(f"v_add_f32_dpp v18, v18, v18 row_ror:{r} {DPPF}")
            A("v_rcp_f32 v18, v18")
            A("s_mov_b32 s47, 0")
            A("v_mul_f32 v16, v16, v18")
            A("v_mul_f32 v17, v17, v18")
        self.tpoll("L_h_o", ol, [33, 35, 37, 39], sleep=self.osleep, first=weights, issued=True)
        self.stamp(11)
        if self.gplate:
            A("s_cmp_eq_u32 s40, 1")
            A("s_cbranch_scc1 L_h_gpst")
            A("L_h_gpst_done:")
        A("v_mul_f32 v32, v16, v32")
        A("v_mul_f32 v34, v16, v34")
        A("v_fmac_f32 v32, v17, v36")
        A("v_fmac_f32 v34, v17, v38")
        for r in (4, 8):
            self.nop(1)
            A(f"v_add_f32_dpp v32, v32, v32 row_ror:{r} {DPPF}")
            A(f"v_add_f32_dpp v34, v34, v34 row_ror:{r} {DPPF}")
        A("v_cvt_pk_bf16_f32 v32, v32, v34")
        A("s_mov_b32 s44, 0xffff0000"); A("s_mov_b32 s45, 0xffff0000")
        for r in range(4):
            A(f"v_mov_b32_dpp v{28+r}, v32 quad_perm:[{r},{r},{r},{r}] {DPPF}")
        self.nop(2)
        B = lambda t: (192 if self.wolate else W) + (16 if t & 1 else 0) + 4 * (t // 2)
        for t in (0, 4, 1, 5, 2, 6, 3, 7):
            self.mfma(96 + 4 * t, 28, B(t), None)
        A("s_mov_b32 exec_lo, 0x03ff03ff")
        A("s_mov_b32 exec_hi, 0")
        for t in range(4):
            if t > 0:
                self.nop(1)
            A(f"v_cndmask_b32 v{20+t}, v{96+4*t}, v{112+4*t}, s[44:45]")
        A(f"ds_write_b128 v237, v[20:23] offset:{L_X}")
        A("s_mov_b64 exec, -1")
        A("s_waitcnt lgkmcnt(0)")
        A("s_barrier")
        A("s_cmp_eq_u32 s40, 0")
        A("s_cbranch_scc0 L_h_nou")
        for k in range(4):
            A(f"ds_read_b64 v[{8+2*k}:{9+2*k}], v238 offset:{L_X+320*k}")
        A("s_mov_b32 exec_lo, -1")
        A("s_mov_b32 exec_hi, 0xff")
        A("s_waitcnt lgkmcnt(2)")
        A("v_add_f32 v8, v8, v10")
        A("v_add_f32 v9, v9, v11")
        A("s_waitcnt lgkmcnt(0)")
        A("v_add_f32 v12, v12, v14")
        A("v_add_f32 v13, v13, v15")
        A("v_add_f32 v40, v8, v12")
        A("v_add_f32 v42, v9, v13")
        A(f"buffer_store_dwordx4 v[40:43], v228, s[48:51], s59 offen {self.uflag}")
        A("L_h_nou:")
        self.stamp(12)
        A("s_cmp_eq_u32 s55, 1")
        A("s_cbranch_scc0 L_h_end")
        NP = self.npipe
        SZ = 32 if self.gplate else 16
        NL = SZ // 4
        def uload(p):
            for i in range(4):
                A(f"buffer_load_dwordx4 v[{128+SZ*p+4*i}:{131+SZ*p+4*i}], v230, s[48:51], s52 offen offset:{640*i} {self.lflag}")
            if self.gplate:
                for i in range(4):
                    A(f"buffer_load_dwordx4 v[{144+SZ*p+4*i}:{147+SZ*p+4*i}], v230, s[48:51], s56 offen offset:{640*i} sc1")
        A("s_mov_b32 s47, 0")
        for p in range(NP):
            uload(p)
            if p < NP - 1 and self.gap:
                A(f"s_sleep {self.gap}")
        A("L_c_u:")
        for p in range(NP):
            A(f"s_waitcnt vmcnt({NL*(NP-1)})")
            self.tagcheck(range(129 + SZ * p, 128 + SZ * (p + 1), 2))
            A(f"s_cbranch_scc0 L_c_u{p}")
            if NP == 1 and self.usleep:
                A(f"s_sleep {self.usleep}")
            uload(p)
        A("s_cmp_lt_u32 s47, 0x40000")
        A("s_cbranch_scc1 L_c_u")
        for p in range(NP - 1, -1, -1):
            A(f"L_c_u{p}:")
            self.stamp(13)
            R = 128 + SZ * p
            if self.gplate:
                G = R + 16
                for X in (G, R):
                    A(f"v_add_f32 v{X}, v{X}, v{X+4}")
                    A(f"v_add_f32 v{X+2}, v{X+2}, v{X+6}")
                    A(f"v_add_f32 v{X+8}, v{X+8}, v{X+12}")
                    A(f"v_add_f32 v{X+10}, v{X+10}, v{X+14}")
                    A(f"v_add_f32 v{X}, v{X}, v{X+8}")
                    A(f"v_add_f32 v{X+2}, v{X+2}, v{X+10}")
                A(f"v_permlane32_swap_b32 v{G}, v{G+2}")
                self.nop(1)
                A(f"v_permlane32_swap_b32 v{R}, v{R+2}")
                A(f"v_add_f32 v{G}, v{G}, v{G+2}")
                A(f"v_add_f32 v{R}, v{R}, v{R+2}")
                self.nop(2)
                A(f"v_permlane16_swap_b32 v{G}, v{R}")
                self.nop(1)
                A(f"v_add_f32 v{G}, v{G}, v{R}")
                self.nop(2)
                A(f"v_add_f32_dpp v{G}, v{G}, v{G} row_ror:8 {DPPF}")
                self.bfr(8, G)
                A(f"v_mul_f32 v9, {LOG2E | 0x80000000:#x}, v8")
                A("v_mov_b32 v24, v8")
                A("v_exp_f32 v9, v9")
                A("v_mov_b32 v25, v8")
                A("v_add_f32 v9, 1.0, v9")
                A("v_rcp_f32 v9, v9")
                A("v_permlane16_swap_b32 v25, v24")
                A("v_mul_f32 v8, v8, v9")
                self.bfr(224, 8)
            else:
                self.colsum(R)
                self.bfr(24, R)
            A("v_mul_f32 v24, v24, v224")
            self.bfr(24, 24)
            A("v_add_f32 v24, v24, v225")
            A("v_cvt_pk_bf16_f32 v24, v24, v24")
            A("s_mov_b32 exec_lo, 0xff")
            A("s_mov_b32 exec_hi, 0xff")
            A("buffer_store_short v24, v229, s[60:63], s53 offen")
            if p > 0:
                A("s_branch L_c_fin")
        A("L_c_fin:")
        A(f"s_cmp_eq_u32 s2, {CONS0}")
        A("s_cbranch_scc0 L_h_end")
        A(f"s_mov_b32 s47, {WS_E:#x}")
        A("s_mov_b64 exec, 1")
        A("buffer_store_dword v41, off, s[48:51], s47 sc1")
        A("L_h_end:")
        if self.spin is not None and not (self.probe is not None and self.probe >= 100):
            A(f"s_cmp_eq_u32 s2, {self.spin}")
            A("s_cbranch_scc0 L_nospin")
            if self.probe is not None:
                A("s_cmp_eq_u32 s40, 0")
                A("s_cbranch_scc0 L_nospin")
                if self.probe == 99:
                    A("s_memrealtime s[96:97]")
                A("s_waitcnt lgkmcnt(0)")
                A("s_sub_u32 s96, s96, s100")
                A("s_add_u32 s100, s100, s96")
            A("L_spin:")
            A("s_memrealtime s[98:99]")
            A("s_waitcnt lgkmcnt(0)")
            A("s_sub_u32 s98, s98, s100")
            A("s_cmp_lt_u32 s98, 10000")
            A("s_cbranch_scc1 L_spin")
            A("L_nospin:")
        self.stamp(14)
        if self.diag:
            for _ in range(3):
                A("s_sleep 127")
        self.flush_stamps(15)
        A("s_endpgm")
        if self.gplate:
            A("L_h_gpst:")
            A("s_mov_b32 exec_lo, 0x03ff03ff")
            A("s_mov_b32 exec_hi, 0x03ff03ff")
            A("buffer_store_dwordx4 v[240:243], v231, s[48:51], s56 offen sc1")
            A("s_mov_b64 exec, -1")
            A("s_branch L_h_gpst_done")
        A("L_h_mlwait:")
        self.tpoll("L_h_ml", mll, [25, 27, 29, 31], sleep=self.mlsleep)
        for t in ol:
            A(t)
        A("v_max_f32 v18, v24, v28")
        A("s_branch L_h_mlok")
        self.ffn()
        if self.fb:
            self.pacer()

    def pacer(self):
        A = self.A
        A("L_pacer:")
        A("v_mov_b32 v4, 0")
        A(f"s_mov_b32 s52, {self.cp0}")
        A(f"s_mov_b32 s53, {WS_TS}")
        A("v_mov_b32 v9, s54")
        A("L_p_loop:")
        self.lds_wait("L_p_w0", 4, L_PROG, "s_cmp_ge_u32", "s52", 8)
        A(f"ds_read_b32 v8, v4 offset:{L_PROG+4}")
        A("s_lshl_b32 s41, s2, 3")
        A("s_add_u32 s41, s41, s53")
        A(f"s_add_u32 s52, s52, {self.cplag}")
        A("s_waitcnt lgkmcnt(0)")
        A("v_readfirstlane_b32 s43, v8")
        A("s_cmp_lt_u32 s2, 32")
        A("s_cbranch_scc0 L_p_nopub")
        A("s_mov_b64 exec, 1")
        A("buffer_store_dwordx2 v[8:9], off, s[48:51], s41 sc1")
        A("s_mov_b64 exec, -1")
        A("L_p_nopub:")
        self.lds_wait("L_p_w1", 4, L_PROG, "s_cmp_ge_u32", "s52", 8)
        A("s_mov_b32 s44, 0")
        A("L_p_sum:")
        A("s_load_dwordx16 s[16:31], s[38:39], s53")
        A("s_add_u32 s53, s53, 64")
        A("s_waitcnt lgkmcnt(0)")
        for i in range(8):
            A(f"s_sub_u32 s41, s{16+2*i}, s43")
            A(f"s_cmp_eq_u32 s{17+2*i}, s54")
            A(f"s_cselect_b32 s41, s41, {self.cplag * self.tau}")
            A("s_add_u32 s44, s44, s41")
        A("s_and_b32 s41, s53, 0xff")
        A("s_cbranch_scc1 L_p_sum")
        A("s_ashr_i32 s44, s44, 5")
        A("s_add_u32 s44, s44, s43")
        A("v_mov_b32 v7, s44")
        A(f"ds_write_b32 v4, v7 offset:{L_ANCH}")
        A(f"s_add_u32 s52, s52, {self.cpd - self.cplag}")
        A(f"s_cmp_lt_u32 s52, {self.cp0 + self.ncp * self.cpd}")
        A("s_cbranch_scc1 L_p_loop")
        A("s_branch L_h_nocons")

    def gaddr(self):
        A = self.A
        A("v_lshrrev_b32 v6, 1, v1")
        A("v_and_b32 v7, 1, v1")
        A("v_lshl_add_u32 v6, v7, 1, v6")
        A("v_lshl_add_u32 v6, v2, 2, v6")
        A("v_lshlrev_b32 v231, 4, v6")

    def gettag(self):
        A = self.A
        A("v_mov_b32 v6, 0")
        A(f"ds_read_b64 v[6:7], v6 offset:{L_TAG}")
        A("s_waitcnt lgkmcnt(0)")
        A("v_readfirstlane_b32 s54, v6")
        A("v_readfirstlane_b32 s57, v7")

    def ffn(self):
        A = self.A
        W = self.W
        A("L_ffn:")
        self.gaddr()
        A(f"s_mul_i32 s56, s5, {32*640}")
        A("s_mul_i32 s47, s4, 640")
        A("s_add_u32 s56, s56, s47")
        A(f"s_add_u32 s56, s56, {WS_GP}")
        A(f"s_cmp_lt_u32 s4, {NFH}")
        A("s_cbranch_scc1 L_f_go")
        A("s_barrier")
        self.gettag()
        for r in range(4):
            A(f"v_mov_b32 v{28+r}, 0")
        A("s_branch L_f_pub")
        A("L_f_go:")
        self.x_issue()
        A("s_mov_b32 s44, 0xff00ff00"); A("s_mov_b32 s45, 0xff00ff00")
        A("v_mov_b32 v38, s28"); A("v_mov_b32 v39, s29")
        A("v_mov_b32 v8, s30"); A("v_mov_b32 v9, s31")
        A("v_cndmask_b32 v38, v38, v8, s[44:45]")
        A("v_cndmask_b32 v39, v39, v9, s[44:45]")
        A("v_and_b32 v8, 7, v0")
        A("v_lshlrev_b32 v8, 4, v8")
        A("v_mul_u32_u24 v9, 3456, v1")
        A("v_add_u32 v8, v8, v9")
        A(f"s_mul_i32 s47, s5, {80*3456}")
        A("s_lshl_b32 s41, s4, 7")
        A("s_add_u32 s47, s47, s41")
        A("v_add_u32 v8, s47, v8")
        A("v_mov_b32 v9, 0")
        A("v_lshl_add_u64 v[38:39], v[38:39], 0, v[8:9]")
        A("s_mov_b32 s42, 13824"); A("s_mov_b32 s43, 0")
        for i in range(20):
            sl = W + 4 * i
            A(f"global_load_dwordx4 v[{sl}:{sl+3}], v[38:39], off {self.wflag}")
            A("v_lshl_add_u64 v[38:39], v[38:39], 0, s[42:43]")
        self.srd(12, 32, 1728 * 1280)
        A("v_mul_u32_u24 v36, 1280, v1")
        A("v_lshl_add_u32 v36, v2, 4, v36")
        A("v_mov_b32 v37, 0x7fffffff")
        A("s_mov_b32 s44, 0x03ff03ff"); A("s_mov_b32 s45, 0x03ff03ff")
        A("v_cndmask_b32 v36, v37, v36, s[44:45]")
        A(f"s_mul_i32 s46, s4, {64*1280}")
        A("s_add_u32 s46, s46, s7")
        for n in range(16):
            sl = 144 + 4 * n
            A(f"buffer_load_dwordx4 v[{sl}:{sl+3}], v36, s[12:15], s46 offen {self.wflag}")
            A(f"s_add_u32 s46, s46, {4*1280}")
        A("s_barrier")
        self.gettag()
        self.masks(12, 6, 44)
        A("s_waitcnt vmcnt(36)")
        self.ln()
        for n in range(20):
            self.abuild(24, 21 + n // 16, 12, n % 16)
            A(f"s_waitcnt vmcnt({35-n})")
            self.nop(1)
            self.mfma(28, 24, W + 4 * n, None if n == 0 else 28)
        A("s_lshl_b32 s42, s6, 10")
        A(f"s_add_u32 s42, s42, {WS_FX}")
        A("s_and_b32 s41, s42, 0xffffe000")
        self.nop(2)
        self.pack(54)
        self.nearfar("fx", "buffer_store_dwordx4 v[24:27], v231, s[48:51], s42 offen")
        A("s_waitcnt vmcnt(0)")
        A("s_sleep 16")
        R = 64
        self.gather8("L_f_x", R, 16, 0)
        self.bfr(R, R)
        self.bfr(R + 2, R + 2)
        A(f"v_mov_b32 v{R+1}, v{R}")
        A(f"v_mov_b32 v{R+3}, v{R+2}")
        self.nop(2)
        A(f"v_permlane32_swap_b32 v{R}, v{R+1}")
        A(f"v_permlane32_swap_b32 v{R+2}, v{R+3}")
        self.nop(1)
        A(f"v_max_f32 v{R}, 0, v{R}")
        A(f"v_max_f32 v{R+2}, 0, v{R+2}")
        A(f"v_mul_f32 v{R}, v{R}, v{R+1}")
        A(f"v_mul_f32 v{R+2}, v{R+2}, v{R+3}")
        A(f"v_cvt_pk_bf16_f32 v{R}, v{R}, v{R}")
        A(f"v_cvt_pk_bf16_f32 v{R+1}, v{R+2}, v{R+2}")
        A("v_lshlrev_b32 v6, 3, v0")
        A("v_and_b32 v6, 0xff, v6                ; (lane&31)*8")
        A(f"ds_write_b64 v6, v[{R}:{R+1}] offset:{L_H}")
        A("v_lshlrev_b32 v6, 1, v4               ; (4j+s)*4")
        A(f"ds_read_b32 v21, v6 offset:{L_H}")
        A("s_waitcnt lgkmcnt(0)")
        for n in range(16):
            self.abuild(24, 21, 12, n)
            self.nop(2)
            self.mfma(28, 24, 144 + 4 * n, None if n == 0 else 28)
        self.nop(4)
        A("L_f_pub:")
        self.pack(54)
        if self.gplate:
            for r in range(4):
                A(f"v_mov_b32 v{240+r}, v{24+r}")
            A("s_branch L_h_shadow")
            return
        A("s_mov_b32 exec_lo, 0x03ff03ff")
        A("s_mov_b32 exec_hi, 0x03ff03ff")
        A("buffer_store_dwordx4 v[24:27], v231, s[48:51], s56 offen sc1")
        A("s_mov_b64 exec, -1")
        A("s_branch L_h_shadow")


if __name__ == "__main__":
    out = sys.argv[1]
    kw = eval("dict(" + (sys.argv[2] if len(sys.argv) > 2 else "") + ")")
    open(out, "w").write(Gen(**kw).gen())
```

```python
import sys
from gen_kernel import NAME, LOG2E, SCALE, DPPF
from gen6 import Gen as G6

WS_O = 0
WS_ML = 0x40000
WS_U = 0x50000
WS_GP = 0x80000
WS_TS = 0xF8000
WS_E = 0xFC000
WS_QN = 0x200000
WS_QF = 0x240000
WS_FX = 0x280000
WS_SIZE = 0x300000
L_Q = 16640
L_MW = L_Q + 256
L_FLAG = L_MW + 16
L_TAG = L_FLAG + 16
L_PROG = L_TAG + 8
L_ANCH = L_PROG + 8
L_LL = L_ANCH + 16
L_O = L_LL + 1024
L_X = L_O + 2048
L_H = L_X + 1280
L_END = L_H + 512
NFH = 27
CONS0 = 216
import gen6
gen6.L_ANCH, gen6.L_PROG = L_ANCH, L_PROG


class Gen(G6):
    def __init__(self, npipe=3, gap=2, warm=0, uflag='sc1', gplate=False, rwarm='', lflag='sc1', xl='sc1 nt', perm=0, ol='sc1 nt', nst='', ewarm=3, comp=False, lay=True, wolate=6, bsleep=3, pad=True, probe=None, fdelay=0, **kw):
        kw.setdefault("N1", 24); kw.setdefault("N0", 30); kw.setdefault("xfast", 6); kw.setdefault("flagstep", 8); kw.setdefault("DL", 4); kw.setdefault("theta2", -70)
        super().__init__(**kw)
        self.npipe, self.gap, self.warm, self.uflag = npipe, gap, warm, uflag
        self.gplate, self.rwarm, self.lflag, self.xl, self.perm = gplate, rwarm, lflag, xl, perm
        self.ol, self.nst, self.ewarm = ol, nst, ewarm
        self.comp = comp
        self.lay = lay
        self.pad = pad
        self.probe = probe
        self.fdelay = fdelay
        self.steady = False
        self.wolate, self.bsleep = wolate, bsleep
        if lay:
            self.NB = self.NS

    def gen(self):
        txt = super().gen()
        if self.pad:
            a = txt.index("L_streamer:\n"); b = txt.index("  s_branch L_post\n") + len("  s_branch L_post\n")
            blk = txt[a:b]
            txt = txt[:a] + txt[b:]
            f = txt.index("L_ffn:\n")
            txt = txt[:f] + blk + txt[f:]
        ld = "  s_load_dwordx16 s[16:31], s[0:1], 0\n  s_load_dwordx8 s[32:39], s[0:1], 64\n"
        txt = txt.replace(ld, "", 1)
        txt = txt.replace("  s_cmp_ge_u32 s2, 256\n", ld + "  s_cmp_ge_u32 s2, 256\n", 1)
        if self.perm == 1:
            txt = txt.replace("L_go:\n", "L_go:\n  s_lshl_b32 s4, s2, 3\n  s_lshr_b32 s2, s2, 5\n  s_or_b32 s2, s2, s4\n  s_and_b32 s2, s2, 255\n", 1)
        if self.perm == 2:
            txt = txt.replace("L_go:\n", "L_go:\n  s_lshr_b32 s4, s2, 3\n  s_and_b32 s4, s4, 1\n  s_xor_b32 s2, s2, s4\n", 1)
        return txt.replace(f"lds={gen6.L_END}", f"lds={L_END}")

    def setdeep(self, sreg, fb=False, base=0):
        A = self.A
        if not (fb and self.fb) or self.LA == self.D:
            return super().setdeep(sreg, fb, base)
        st = self.tau / 16.0
        A("s_waitcnt lgkmcnt(0)")
        A("v_readfirstlane_b32 s66, v59")
        A(f"s_add_u32 s67, s15, {base}")
        A(f"s_mul_i32 s68, s67, {self.tau}")
        A("s_sub_u32 s68, s64, s68")
        if self.comp:
            if self.DL:
                A(f"s_mul_i32 s69, s69, {round((self.D - self.DL) * st)}")
                A("s_sub_u32 s68, s68, s69")
            A(f"s_andn2_b32 s69, {round((self.LA - self.D) * st)}, vcc_lo")
            A("s_sub_u32 s68, s68, s69")
        A("v_mov_b32 v58, s67")
        A("v_mov_b32 v59, s68")
        A(f"ds_write_b64 v57, v[58:59] offset:{L_PROG}")
        A("s_sub_u32 s68, s68, s66")
        if self.DL:
            A(f"s_add_u32 s69, s68, 2000")
            A(f"s_cmp_lt_u32 s69, {2000 + self.theta2}")
            A("s_cselect_b32 s69, 1, 0")
        else:
            A("s_mov_b32 s69, 0")
        A(f"s_cmp_gt_i32 s68, {self.theta}")
        A("s_cselect_b64 vcc, -1, 0")
        if self.kmask or self.vmask:
            A(f"s_bitcmp1_b32 s{sreg}, s15")
            A("s_cselect_b64 vcc, -1, vcc")
        if self.diag:
            A("s_mov_b32 m0, s67")
            A("v_writelane_b32 v55, s64, m0")
            A("s_and_b32 s66, vcc_lo, 2")
            A("s_or_b32 s66, s66, s69")
            A("v_writelane_b32 v54, s66, m0")
        if self.DL:
            A("s_cmp_eq_u32 s69, 0")

    def stamp(self, i):
        if self.probe is not None and self.probe == i and getattr(self, "inhelper", False):
            self.A("s_memrealtime s[96:97]")
        if self.probe is not None and self.probe == 100 + i and not getattr(self, "inhelper", True):
            self.A("s_memrealtime s[96:97]")
        super().stamp(i)

    def dwait(self):
        A = self.A
        if not self.steady:
            A(f"s_waitcnt vmcnt({self.D-1})")
            return
        self.uid += 1
        A(f"s_waitcnt vmcnt({self.LA-1})")
        A(f"s_cbranch_vccnz L_dw{self.uid}")
        A(f"s_waitcnt vmcnt({self.D-1})")
        if self.DL:
            A(f"s_cbranch_scc1 L_dw{self.uid}")
            A(f"s_waitcnt vmcnt({self.DL-1})")
        A(f"L_dw{self.uid}:")

    def sload(self, n, switch=None, steady=False):
        super().sload(n, switch, steady)
        if steady and n % 8 == 0 and self.DL:
            self.A("s_cmp_eq_u32 s69, 0")

    def setup1(self):
        A = self.A
        if self.diag:
            self.srd(48, 38, WS_SIZE)
        A("v_and_b32 v6, 3, v2")
        A("v_lshl_add_u32 v6, v1, 2, v6          ; rho*4 + (j&3)")
        A("v_lshlrev_b32 v53, 4, v6")
        A("v_and_b32 v6, 1, v1")
        A("v_lshl_add_u32 v6, v2, 1, v6")
        A("s_lshl_b32 s7, s3, 9")
        A("v_lshl_add_u32 v60, v6, 4, s7")
        self.masks(12, 6, 40)
        A("s_mov_b32 s40, 0xaaaaaaaa"); A("s_mov_b32 s41, 0xaaaaaaaa")
        A("s_mov_b32 s42, 0xcccccccc"); A("s_mov_b32 s43, 0xcccccccc")
        A(f"s_mov_b32 s57, {self.kmask:#x}"); A(f"s_mov_b32 s58, {self.vmask:#x}")

    def streamer_issue(self):
        if self.lay:
            mark = len(self.L)
            super().streamer_issue()
            body = self.L[mark:]
            del self.L[mark:]
            k = [i for i, t in enumerate(body) if "lgkmcnt(0)" in t][0]
            self.L += body[:k]
            d = self.diag
            self.diag = False
            self.setup1()
            self.diag = d
            self.L += body[k:]
            if d:
                self.srd(48, 38, WS_SIZE)
        else:
            super().streamer_issue()

    def streamer(self):
        A = self.A
        D, LA, N0, Dp = self.D, self.LA, self.N0, self.Dp
        self.inhelper = False
        if self.lay and not self.pad:
            self.L.append(".p2align 12")
        A("L_streamer:")
        if not self.lay:
            self.setup1()
        A("s_mov_b32 s69, 0")
        A("s_lshl_b32 s7, s3, 2")
        A("v_mov_b32 v61, s7                     ; w*4")
        A("v_mov_b32 v6, 0")
        A(f"ds_write_b32 v61, v6 offset:{L_FLAG}")
        if self.fb:
            A("s_memrealtime s[64:65]")
            A("v_mov_b32 v56, 0")
            A("v_mov_b32 v7, 0")
            A(f"ds_write_b64 v56, v[6:7] offset:{L_PROG}")
            A("s_cmp_eq_u32 s3, 1")
            A(f"s_cselect_b32 s7, 0, {L_H - L_PROG + 256}")
            A("v_mov_b32 v57, s7")
            A("s_waitcnt lgkmcnt(0)")
            A("s_add_u32 s64, s64, 0x100000")
            A("v_mov_b32 v7, s64")
            A(f"ds_write_b32 v56, v7 offset:{L_ANCH}")
        A("s_lshl_b32 s7, s3, 8")
        A("v_lshl_add_u32 v62, v0, 2, s7")
        A("s_lshl_b32 s7, s3, 12")
        A("v_and_b32 v8, 60, v0")
        A("v_add_u32 v8, s7, v8")
        A("v_mov_b32 v5, 0xff800000")
        A("s_mov_b32 s15, 0")
        N1, Dp2 = self.N1, self.Dp2
        def pf(n):
            d = Dp if n < self.n1 else Dp2
            A(f"s_waitcnt vmcnt({d-1})")
            if (n - Dp) % 4 == 0 and (n - Dp) // 4 < 8:
                self.stamp(7 + (n - Dp) // 4)
            self.sload(n)
        for n in range(Dp, N1):
            pf(n)
        if self.pad:
            A("s_branch L_post")
            self.L.append(".p2align 12")
            A("L_pad:")
            A("s_branch L_pad_ret")
            A("L_post:")
        A("s_waitcnt lgkmcnt(0)")
        self.stamp(1)
        A("s_barrier")
        self.stamp(2)
        A(f"ds_read_b128 v[44:47], v53 offset:{L_Q}")
        rest = list(range(N1, N0))
        if rest:
            pf(rest.pop(0))
        A("s_waitcnt lgkmcnt(0)")
        for g in range(4):
            pat = (0xf << (4 * g)) * 0x00010001
            A(f"s_mov_b32 s44, {pat:#x}"); A(f"s_mov_b32 s45, {pat:#x}")
            for r in range(4):
                A(f"v_cndmask_b32 v{16+4*g+r}, 0, v{44+r}, s[44:45]")
            if rest:
                pf(rest.pop(0))
        for n in rest:
            pf(n)
        self.nop(2)
        self.stamp(3)
        NB = self.NB
        issued, landed = N0, N0 - Dp2
        last_mfma = {}
        A("s_mov_b64 vcc, 0")
        for n in range(NB):
            G, g = n // 4, n % 4
            if n % 16 == 0 and self.diag and self.fb:
                A("s_memrealtime s[64:65]")
                A("s_waitcnt lgkmcnt(0)")
                A(f"v_writelane_b32 v55, s64, {n//16}")
                A(f"v_writelane_b32 v54, 0, {n//16}")
            want = issued - n <= LA or (n >= 1 and (n <= D or n % self.cu == 0))
            if want and issued < NB + LA:
                prev = issued - self.NS if issued < self.NS + 16 else issued - 16
                if prev < n:
                    self.dwait()
                    landed = max(landed, issued - (LA - 1))
                    self.sload(issued)
                    issued += 1
            if landed <= n:
                A(f"s_waitcnt vmcnt({issued - n - 1})")
                landed = n + 1
            dreg = 32 + 4 * (G & 1)
            self.mfma(dreg, 16 + 4 * g, self.slot(n), None if g == 0 else dreg)
            last_mfma[G] = len(self.L)
            if g == 2 and G > 0:
                since = sum(1 for t in self.L[last_mfma[G - 1]:] if not t.endswith(":") and "vmcnt" not in t and "cbranch" not in t and "s69" not in t)
                self.kstep_post(n, since)
            if n % 16 == 15:
                A("v_add_u32 v8, 256, v8")
        assert issued == NB + LA, (issued, NB + LA)
        A(f"s_mov_b32 s15, {NB//16}")
        self.fb_sample()
        self.steady = True
        A("L_kloop:")
        self.setdeep(57, True, 0)
        for n in range(16):
            G, g = n // 4, n % 4
            self.dwait()
            self.sload(n + LA, "KV", True)
            dreg = 32 + 4 * (G & 1)
            self.mfma(dreg, 16 + 4 * g, self.slot(n, True), None if g == 0 else dreg)
            self.kstep_post(n, 9)
            if n == 14:
                self.fb_sample()
        A("v_add_u32 v8, 256, v8")
        A("s_add_u32 s15, s15, 1")
        A("s_cmp_lt_u32 s15, 16")
        A("s_cbranch_scc1 L_kloop")
        self.nop(6)
        self.kpost(36, 0)
        self.stamp(4)
        A("s_lshl_b32 s7, s3, 12")
        A("v_lshl_add_u32 v8, v2, 2, v1          ; 4j+s")
        A("v_lshlrev_b32 v8, 2, v8")
        A("v_add_u32 v8, s7, v8")
        A("ds_read_b32 v11, v8 offset:64")
        self.wave_reduce("v_max_f32", 5, 6, rors=(4, 8))
        self.bfr(9, 5)
        A(f"v_mul_f32 v9, {SCALE:#x}, v9")
        self.bfr(9, 9)
        A(f"ds_write_b32 v61, v9 offset:{L_MW}")
        A("v_mov_b32 v5, 0                       ; l")
        A("v_mov_b32 v63, 0")
        for r in range(4):
            A(f"v_mov_b32 v{40+r}, 0")
        A("s_mov_b32 s15, 0")
        A("L_vloop:")
        self.setdeep(58, True, 16)
        A("s_waitcnt lgkmcnt(0)")
        self.pcalc()
        for n in range(16):
            self.abuild(16, 10, 12, n)
            self.dwait()
            self.sload(n + LA, "END", True)
            self.mfma(40, 16, self.slot(n, True), 40)
            if n == 14:
                self.fb_sample()
            if n == self.flagstep:
                A("v_add_u32 v63, 1, v63")
                A(f"ds_write_b32 v62, v5 offset:{L_LL}")
                A(f"ds_write_b32 v61, v63 offset:{L_FLAG}")
        A("s_add_u32 s15, s15, 1")
        A("s_cmp_lt_u32 s15, 16")
        A("s_cbranch_scc1 L_vloop")
        self.stamp(5)
        self.exec_lo()
        self.nop(3)
        A(f"ds_write_b128 v60, v[40:43] offset:{L_O}")
        A("s_waitcnt lgkmcnt(0)")
        A("s_barrier")
        self.stamp(6)
        if self.probe is not None and self.probe >= 100:
            A("s_barrier")
            A(f"s_cmp_eq_u32 s2, {self.spin}")
            A("s_cbranch_scc0 L_nospin2")
            A("s_cmp_eq_u32 s3, 0")
            A("s_cbranch_scc0 L_nospin2")
            A("s_waitcnt lgkmcnt(0)")
            A("s_sub_u32 s96, s96, s100")
            A("s_add_u32 s100, s100, s96")
            A("L_spin2:")
            A("s_memrealtime s[98:99]")
            A("s_waitcnt lgkmcnt(0)")
            A("s_sub_u32 s98, s98, s100")
            A("s_cmp_lt_u32 s98, 10000")
            A("s_cbranch_scc1 L_spin2")
            A("L_nospin2:")
        if self.diag:
            A("s_barrier")
            for _ in range(3):
                A("s_sleep 127")
        if self.diag and self.fb:
            A("s_lshl_b32 s7, s2, 2"); A("s_add_u32 s7, s7, s3"); A("s_lshl_b32 s7, s7, 8"); A("s_add_u32 s7, s7, 0x140000")
            A("v_lshlrev_b32 v6, 2, v0")
            A("buffer_store_dword v55, v6, s[48:51], s7 offen")
            A("buffer_store_dword v54, v6, s[48:51], s7 offen offset:128")
        self.flush_stamps(15)
        A("s_endpgm")

    def nearfar(self, tag, store):
        A = self.A
        if self.fast:
            A("s_cmp_eq_u32 s57, 0")
            A(f"s_cbranch_scc0 L_{tag}_far")
            A(store + " " + self.nst)
            A(f"s_branch L_{tag}_fin")
            A(f"L_{tag}_far:")
        A(store + " sc1")
        A(f"L_{tag}_fin:")

    def tagcheck(self, regs, t0=3, t1=7):
        A = self.A
        r = list(regs)
        if len(r) == 2:
            A(f"v_cmp_ne_u32 vcc, s54, v{r[0]}")
            A(f"v_cmp_ne_u32 s[44:45], s54, v{r[1]}")
        else:
            A(f"v_and_b32 v{t0}, v{r[0]}, v{r[1]}")
            A(f"v_or_b32 v{t1}, v{r[0]}, v{r[1]}")
            for i in range(2, len(r), 2):
                A(f"v_bitop3_b32 v{t0}, v{t0}, v{r[i]}, v{r[i+1]} bitop3:0x80")
                A(f"v_or3_b32 v{t1}, v{t1}, v{r[i]}, v{r[i+1]}")
            A(f"v_cmp_ne_u32 vcc, s54, v{t0}")
            A(f"v_cmp_ne_u32 s[44:45], s54, v{t1}")
        A("s_add_u32 s47, s47, 1")
        A("s_or_b64 vcc, vcc, s[44:45]")

    def tpoll(self, label, loads, tags, sleep=0, first=None, issued=False):
        A = self.A
        A("s_mov_b32 s47, 0")
        if not issued:
            for t in loads:
                A(t)
        if first:
            first()
        A(f"{label}:")
        A("s_waitcnt vmcnt(0)")
        self.tagcheck(tags)
        A(f"s_cbranch_scc0 {label}_ok")
        A("s_mov_b64 exec, vcc")
        if sleep:
            A(f"s_sleep {sleep}")
        for t in loads:
            A(t)
        A("s_cmp_lt_u32 s47, 0x40000")
        A(f"s_cbranch_scc1 {label}")
        A(f"{label}_ok:")
        A("s_mov_b64 exec, -1")

    def pack(self, tagreg):
        A = self.A
        A("s_mov_b32 s44, 0"); A("s_mov_b32 s45, -1")
        A(f"v_mov_b32 v25, s{tagreg}")
        A(f"v_mov_b32 v27, s{tagreg}")
        A("v_cndmask_b32 v24, v28, v30, s[44:45]")
        A("v_cndmask_b32 v26, v29, v31, s[44:45]")

    def gather8(self, label, R, sleep, lowmask, pre=None):
        A = self.A
        A("s_mov_b32 s47, 0")
        A(f"{label}:")
        if pre:
            pre()
        A("s_add_u32 s43, s41, 4096")
        for c in range(8):
            A(f"buffer_load_dwordx4 v[{R+4*c}:{R+3+4*c}], v228, s[48:51], s{41 if c < 4 else 43} offen offset:{1024*(c%4)} {self.xl}")
        for c in range(8):
            A(f"s_waitcnt vmcnt({7-c})")
            if c == 0:
                A(f"v_and_b32 v6, v{R+1}, v{R+3}")
                A(f"v_or_b32 v7, v{R+1}, v{R+3}")
            else:
                A(f"v_bitop3_b32 v6, v6, v{R+4*c+1}, v{R+4*c+3} bitop3:0x80")
                A(f"v_or3_b32 v7, v7, v{R+4*c+1}, v{R+4*c+3}")
                A(f"v_add_f32 v{R}, v{R}, v{R+4*c}")
                A(f"v_add_f32 v{R+2}, v{R+2}, v{R+4*c+2}")
        A("v_xor_b32 v8, s54, v6")
        A("v_xor_b32 v9, s54, v7")
        A(f"v_cmp_lt_u32 vcc, {lowmask}, v8")
        A(f"v_cmp_lt_u32 s[44:45], {lowmask}, v9")
        A("s_add_u32 s47, s47, 1")
        A("s_or_b64 vcc, vcc, s[44:45]")
        A(f"s_cbranch_scc0 {label}_ok")
        if sleep:
            A(f"s_sleep {sleep}")
        A("s_cmp_lt_u32 s47, 0x40000")
        A(f"s_cbranch_scc1 {label}")
        A(f"{label}_ok:")

    def colsum(self, R):
        A = self.A
        A(f"v_add_f32 v{R}, v{R}, v{R+4}")
        A(f"v_add_f32 v{R+2}, v{R+2}, v{R+6}")
        A(f"v_add_f32 v{R+8}, v{R+8}, v{R+12}")
        A(f"v_add_f32 v{R+10}, v{R+10}, v{R+14}")
        A(f"v_add_f32 v{R}, v{R}, v{R+8}")
        A(f"v_add_f32 v{R+2}, v{R+2}, v{R+10}")
        self.nop(2)
        A(f"v_permlane32_swap_b32 v{R}, v{R+2}")
        self.nop(1)
        A(f"v_add_f32 v{R}, v{R}, v{R+2}")
        self.nop(1)
        A(f"v_mov_b32 v{R+2}, v{R}")
        self.nop(2)
        A(f"v_permlane16_swap_b32 v{R}, v{R+2}")
        self.nop(1)
        A(f"v_add_f32 v{R}, v{R}, v{R+2}")
        self.nop(2)
        A(f"v_add_f32_dpp v{R}, v{R}, v{R} row_ror:8 {DPPF}")

    def helper(self):
        A = self.A
        W = self.W
        self.inhelper = True
        A("L_helper:")
        A("s_sub_u32 s40, s3, 4                  ; hw")
        A("s_mul_i32 s7, s5, 160")
        A("v_lshl_add_u32 v4, v2, 2, v1          ; 4j+s")
        A("v_lshlrev_b32 v4, 1, v4")
        A("v_lshlrev_b32 v3, 2, v0               ; lane*4")
        A("v_lshlrev_b32 v228, 4, v0             ; lane*16")
        A("s_cmp_eq_u32 s40, 0")
        A("s_cbranch_scc0 L_h_noq")
        A("v_lshlrev_b32 v8, 13, v1")
        A("v_lshl_add_u32 v8, v2, 4, v8          ; s*8192 + j*16")
        A("v_add_u32 v9, 0x8000, v8")
        A("v_add_u32 v10, 0x10000, v8")
        A("v_add_u32 v11, 0x18000, v8")
        A(f"s_mul_i32 s42, s5, {80*8192}")
        A("s_lshl_b32 s43, s4, 8")
        A("s_add_u32 s42, s42, s43")
        A("s_waitcnt lgkmcnt(0)")
        A(f"s_load_dword s54, s[38:39], {WS_E:#x}")
        self.srd(8, 16, 1280)
        self.srd(12, 22, 640 * 8192)
        self.x_issue()
        for n in range(20):
            sl = W + 4 * n
            A(f"buffer_load_dwordx4 v[{sl}:{sl+3}], v{8+n%4}, s[12:15], s42 offen {self.wflag}")
            if n % 4 == 3 and n < 19:
                A("s_add_u32 s42, s42, 0x20000")
        self.stamp(1)
        self.srd(48, 38, WS_SIZE)
        self.masks(12, 6, 44)
        self.gaddr()
        A("s_lshl_b32 s42, s6, 10")
        A(f"s_add_u32 s42, s42, {WS_QN}")
        A("s_and_b32 s41, s42, 0xffffe000")
        A("s_waitcnt vmcnt(20)")
        self.stamp(2)
        self.ln()
        self.stamp(3)
        for n in range(20):
            self.abuild(24, 21 + n // 16, 12, n % 16)
            A(f"s_waitcnt vmcnt({19-n})")
            self.nop(1)
            self.mfma(28, 24, W + 4 * n, None if n == 0 else 28)
        A("s_waitcnt lgkmcnt(0)")
        self.mktag()
        A("s_getreg_b32 s47, hwreg(HW_REG_XCC_ID, 0, 4)")
        A("s_or_b32 s47, s47, s54")
        self.pack(47)
        A(f"buffer_store_dwordx4 v[24:27], v231, s[48:51], s42 offen {self.nst}")
        A(f"s_add_u32 s42, s42, {WS_QF - WS_QN}")
        A("s_waitcnt vmcnt(0)")
        def pre():
            A(f"s_cmp_lt_u32 s47, {self.xfast}")
            A("s_cbranch_scc1 L_q_keep")
            A(f"s_xor_b32 s41, s41, {WS_QF ^ WS_QN}")
            A(f"s_cmp_eq_u32 s47, {self.xfast}")
            A("s_cbranch_scc0 L_q_keep")
            A("buffer_store_dwordx4 v[24:27], v231, s[48:51], s42 offen sc1")
            A("L_q_keep:")
        self.gather8("L_q_x", 160, self.qsleep, 15, pre)
        A("v_xor_b32 v7, v6, v7")
        A("v_cvt_pk_bf16_f32 v8, v160, v162")
        A(f"ds_write_b32 v3, v8 offset:{L_Q}")
        A("v_mov_b32 v6, s54")
        A("v_mov_b32 v8, 0")
        A(f"ds_write_b64 v8, v[6:7] offset:{L_TAG}")
        A("v_readfirstlane_b32 s57, v7")
        A("s_cmp_eq_u32 s57, 0")
        A("s_cbranch_scc1 L_q_near")
        A("buffer_store_dwordx4 v[24:27], v231, s[48:51], s42 offen sc1")
        A("L_q_near:")
        A("s_waitcnt lgkmcnt(0)")
        self.stamp(4)
        A("s_barrier")
        A("s_branch L_h_shadow")
        A("L_h_noq:")
        if self.pad:
            A("s_cmp_eq_u32 s40, 2")
            A("s_cbranch_scc1 L_pad")
            A("L_pad_ret:")
        A("s_waitcnt lgkmcnt(0)")
        self.srd(8, 16, 1280)
        self.srd(48, 38, WS_SIZE)
        A("s_cmp_eq_u32 s40, 1")
        A("s_cbranch_scc1 L_ffn")
        if self.ewarm:
            A("s_cmp_eq_u32 s40, 3")
            A("s_cbranch_scc0 L_h_shadow")
            A(f"s_mul_i32 s59, s5, {32*640}")
            A("s_mul_i32 s41, s4, 640")
            A("s_add_u32 s59, s59, s41")
            A(f"s_add_u32 s41, s59, {WS_GP}")
            A(f"s_add_u32 s59, s59, {WS_U}")
            A("s_mov_b32 exec_hi, 0xff")
            A("buffer_load_dwordx4 v[8:11], v228, s[48:51], s59 offen")
            if self.ewarm & 2:
                A("buffer_load_dwordx4 v[12:15], v228, s[48:51], s41 offen")
            A("s_mov_b64 exec, -1")
        A("L_h_shadow:")
        self.gaddr()
        self.srd(12, 24, 4096 * 1280)
        A("v_mul_u32_u24 v36, 10240, v1")
        A("v_lshl_add_u32 v36, v2, 4, v36")
        A("v_mov_b32 v37, 0x7fffffff")
        A("s_mov_b32 s44, 0x03ff03ff"); A("s_mov_b32 s45, 0x03ff03ff")
        A("v_cndmask_b32 v239, v37, v36, s[44:45]")
        A("s_lshl_b32 s46, s4, 2")
        A("s_add_u32 s46, s46, s40               ; 4h + hw")
        A(f"s_mul_i32 s46, s46, {32*1280}")
        A("s_mul_i32 s47, s5, 160")
        A("s_add_u32 s46, s46, s47")
        def wo_issue(lo, hi, full):
            for e in range(lo, hi):
                sl = W + (16 if e & 1 else 0) + 4 * (e // 2)
                if e % 2 == 0 and e > 0:
                    A("s_add_u32 s46, s46, 2560")
                A(f"buffer_load_dwordx4 v[{sl}:{sl+3}], v239, s[12:15], s46 offen offset:{1280*(e&1)} {self.wflag}")
        def wo_perm():
            A("s_mov_b32 s44, 0x05040100")
            A("s_mov_b32 s45, 0x07060302")
            E = lambda i, c: W + 4 * i + c
            O = lambda i, c: W + 16 + 4 * i + c
            if self.wolate:
                for c in range(4):
                    for i in range(4):
                        A(f"v_perm_b32 v{192+4*c+i}, v{O(i,c)}, v{E(i,c)}, s44")
                        A(f"v_perm_b32 v{208+4*c+i}, v{O(i,c)}, v{E(i,c)}, s45")
                return
            for i in range(4):
                A(f"v_perm_b32 v16, v{O(i,i)}, v{E(i,i)}, s44")
                A(f"v_perm_b32 v{O(i,i)}, v{O(i,i)}, v{E(i,i)}, s45")
                A(f"v_mov_b32 v{E(i,i)}, v16")
                for c in range(i + 1, 4):
                    A(f"v_perm_b32 v16, v{O(i,c)}, v{E(i,c)}, s44")
                    A(f"v_perm_b32 v17, v{O(i,c)}, v{E(i,c)}, s45")
                    A(f"v_perm_b32 v{E(i,c)}, v{O(c,i)}, v{E(c,i)}, s44")
                    A(f"v_perm_b32 v{O(i,c)}, v{O(c,i)}, v{E(c,i)}, s45")
                    A(f"v_mov_b32 v{E(c,i)}, v16")
                    A(f"v_mov_b32 v{O(c,i)}, v17")
        NE = 8 - self.wolate
        wo_issue(0, NE, True)
        A("s_cmp_lt_u32 s40, 2")
        A("s_cbranch_scc1 L_h_nobar")
        A("s_barrier")
        self.gettag()
        A("L_h_nobar:")
        A("s_waitcnt vmcnt(0)")
        self.stamp(5)
        if not self.wolate:
            wo_perm()
        self.stamp(6)
        A("v_mov_b32 v227, 0")
        A("s_mov_b32 s55, 0")
        if self.fb:
            A("s_cmp_eq_u32 s40, 2")
            A("s_cbranch_scc1 L_pacer")
        A("s_cmp_eq_u32 s40, 3")
        A("s_cselect_b32 s41, s2, 0")
        A(f"s_cmp_ge_u32 s41, {CONS0}")
        A("s_cbranch_scc0 L_h_nocons")
        A("s_mov_b32 s55, 1")
        self.srd(60, 34, 1280)
        A(f"s_sub_u32 s52, s2, {CONS0}")
        A("s_lshl_b32 s53, s52, 5")
        A("v_and_b32 v6, 7, v0")
        A("v_lshrrev_b32 v7, 5, v0")
        A("v_lshl_add_u32 v229, v6, 1, v7")
        A("v_lshlrev_b32 v229, 1, v229           ; (2t + half)*2")
        A("v_lshrrev_b32 v230, 3, v0")
        A("v_mul_u32_u24 v230, 2560, v230")
        A("v_lshl_add_u32 v230, v6, 4, v230      ; g*2560 + t*16")
        A("s_mul_i32 s42, s52, 52")
        A("s_lshr_b32 s42, s42, 8")
        A(f"s_mul_i32 s42, s42, {32*640 - 640}")
        A("s_lshl_b32 s52, s52, 7")
        A("s_add_u32 s52, s52, s42")
        A(f"s_add_u32 s56, s52, {WS_GP}")
        A(f"s_add_u32 s52, s52, {WS_U}")
        gpl = [f"buffer_load_dwordx4 v[{8+4*i}:{11+4*i}], v230, s[48:51], s56 offen offset:{640*i} sc1" for i in range(4)]
        def gcalc():
            self.colsum(8)
            self.bfr(8, 8)
            A(f"v_mul_f32 v9, {LOG2E | 0x80000000:#x}, v8")
            A("v_exp_f32 v9, v9")
            self.nop(1)
            A("v_add_f32 v9, 1.0, v9")
            A("v_rcp_f32 v9, v9")
            self.nop(1)
            A("v_mul_f32 v8, v8, v9")
            self.bfr(224, 8)
        if not self.gplate or self.rwarm:
            self.lds_wait("L_h_trigA", 227, L_FLAG, "s_cmp_ge_u32", 1 if not self.gplate else 12, 100)
        A("buffer_load_ushort v225, v229, s[8:11], s53 offen")
        if self.rwarm:
            fl = self.rwarm.strip("_")
            for i in range(4):
                A(f"buffer_load_dwordx4 v[{128+4*i}:{131+4*i}], v230, s[48:51], s52 offen offset:{640*i} {fl}")
                A(f"buffer_load_dwordx4 v[{144+4*i}:{147+4*i}], v230, s[48:51], s56 offen offset:{640*i} {fl}")
        if not self.gplate:
            self.tpoll("L_c_gp", gpl, range(9, 24, 2), sleep=100)
            gcalc()
        A("s_waitcnt vmcnt(0)")
        A("v_lshlrev_b32 v225, 16, v225")
        A("L_h_nocons:")
        self.stamp(7)
        A("v_bfe_u32 v6, v0, 3, 2                ; w")
        A("v_and_b32 v7, 7, v0                   ; t")
        A("v_lshlrev_b32 v232, 9, v6")
        A("v_lshl_add_u32 v232, v7, 4, v232")
        A("s_lshl_b32 s7, s40, 7")
        A("v_add_u32 v232, s7, v232")
        A("v_lshlrev_b32 v233, 2, v6             ; w*4")
        A("v_lshl_add_u32 v234, v7, 1, v1")
        A("v_lshlrev_b32 v234, 4, v234")
        A("s_lshl_b32 s58, s6, 10")
        A("s_lshl_b32 s7, s40, 8")
        A("s_add_u32 s58, s58, s7")
        A("s_lshl_b32 s43, s4, 13")
        A("s_add_u32 s43, s43, s7")
        A("v_lshrrev_b32 v6, 2, v2               ; a")
        A("v_and_b32 v7, 3, v2                   ; b")
        A("v_lshlrev_b32 v235, 11, v6")
        A("v_lshl_add_u32 v235, v1, 6, v235")
        A("v_lshl_add_u32 v235, v7, 4, v235      ; a*2048 + s*64 + b*16")
        A("v_lshlrev_b32 v236, 5, v6             ; a*32")
        A("s_lshl_b32 s41, s4, 7")
        A(f"s_add_u32 s41, s41, {WS_ML}")
        A("v_lshl_add_u32 v237, v2, 1, v1")
        A("s_mul_i32 s7, s40, 320")
        A("v_lshl_add_u32 v237, v237, 4, s7")
        A("v_lshlrev_b32 v238, 3, v0             ; lane*8")
        A(f"s_mul_i32 s59, s5, {32*640}")
        A("s_mul_i32 s7, s4, 640")
        A("s_add_u32 s59, s59, s7")
        A(f"s_add_u32 s59, s59, {WS_U}")
        A("v_lshlrev_b32 v4, 2, v0")
        if self.warm:
            for r in range(4):
                A(f"v_not_b32 v{40+r}, s54")
            if self.warm & 1:
                A("s_cmp_eq_u32 s40, 0")
                A("s_cbranch_scc0 L_h_nowarm")
                A("s_mov_b32 exec_hi, 0xff")
                A("buffer_store_dwordx4 v[40:43], v228, s[48:51], s59 offen sc1")
                A("s_mov_b64 exec, -1")
                A("L_h_nowarm:")
            A("s_waitcnt vmcnt(0)")
        A("s_mov_b32 s47, 0")
        A("L_h_trigB:")
        A(f"ds_read_b128 v[8:11], v227 offset:{L_FLAG}")
        A("s_waitcnt lgkmcnt(0)")
        A("v_min_u32 v8, v8, v9")
        A("v_min3_u32 v8, v8, v10, v11")
        A("s_add_u32 s47, s47, 1")
        A("v_readfirstlane_b32 s42, v8")
        A("s_cmp_ge_u32 s42, 16")
        A("s_cbranch_scc1 L_h_trigB_ok")
        A(f"s_sleep {self.bsleep}")
        A("s_cmp_lt_u32 s47, 0x100000")
        A("s_cbranch_scc1 L_h_trigB")
        A("L_h_trigB_ok:")
        wo_issue(NE, 8, True)
        A(f"ds_read_b128 v[8:11], v227 offset:{L_MW}")
        A(f"ds_read_b32 v19, v233 offset:{L_MW}")
        for w in range(4):
            A(f"ds_read_b32 v{12+w}, v4 offset:{L_LL+256*w}")
        A("s_waitcnt lgkmcnt(0)")
        A("v_max3_f32 v20, v8, v9, v10")
        A("v_max_f32 v20, v20, v11")
        A("v_sub_f32 v19, v19, v20")
        A(f"v_mul_f32 v19, {LOG2E:#x}, v19")
        A("v_exp_f32 v19, v19")
        A("s_cmp_eq_u32 s40, 1")
        A("s_cbranch_scc0 L_h_noml")
        for w in range(4):
            A(f"v_sub_f32 v{8+w}, v{8+w}, v20")
            A(f"v_mul_f32 v{8+w}, {LOG2E:#x}, v{8+w}")
            A(f"v_exp_f32 v{8+w}, v{8+w}")
        A("v_mul_f32 v22, v8, v12")
        for w in range(1, 4):
            A(f"v_fmac_f32 v22, v{8+w}, v{12+w}")
        self.wave_reduce("v_add_f32", 22, 21)
        A("v_mov_b32 v21, s54")
        A("v_mov_b32 v23, s54")
        A("s_lshl_b32 s7, s6, 4")
        A(f"s_add_u32 s7, s7, {WS_ML}")
        A("s_mov_b64 exec, 1")
        self.nearfar("ml", "buffer_store_dwordx4 v[20:23], off, s[48:51], s7")
        A("s_mov_b64 exec, -1")
        A("L_h_noml:")
        self.stamp(8)
        A("v_mov_b32 v41, s54")
        A("v_mov_b32 v43, s54")
        self.stamp(9)
        A("s_barrier")
        self.stamp(10)
        A(f"ds_read_b128 v[8:11], v232 offset:{L_O}")
        mll = [f"buffer_load_dwordx4 v[{24+4*x}:{27+4*x}], v236, s[48:51], s41 offen offset:{16*x} {self.ol}" for x in range(2)]
        ol = [f"buffer_load_dwordx4 v[{32+4*x}:{35+4*x}], v235, s[48:51], s43 offen offset:{1024*x} {self.ol}" for x in range(2)]
        for t in mll:
            A(t)
        A("s_waitcnt lgkmcnt(0)")
        for r in range(4):
            A(f"v_mul_f32 v{8+r}, v19, v{8+r}")
        for r in range(4):
            A(f"v_add_f32_dpp v{8+r}, v{8+r}, v{8+r} row_ror:8 {DPPF}")
        A("s_mov_b32 s44, 0x00ff00ff")
        A("s_mov_b32 s45, 0")
        A("v_permlane16_swap_b32 v8, v10")
        A("v_permlane16_swap_b32 v9, v11")
        self.nop(1)
        A("v_add_f32 v40, v8, v10")
        A("v_add_f32 v42, v9, v11")
        A("s_mov_b64 exec, s[44:45]")
        self.nearfar("o", "buffer_store_dwordx4 v[40:43], v234, s[48:51], s58 offen")
        A("s_mov_b64 exec, -1")
        for t in ol:
            A(t)
        def weights():
            if self.wolate:
                A("s_waitcnt vmcnt(5)")
                wo_perm()
            A("s_waitcnt vmcnt(3)")
            self.tagcheck([25, 27, 29, 31])
            A("v_max_f32 v18, v24, v28")
            A("s_cbranch_scc1 L_h_mlwait")
            A("L_h_mlok:")
            for r in (4, 8):
                self.nop(2 if r > 4 else 1)
                A(f"v_max_f32_dpp v18, v18, v18 row_ror:{r} {DPPF}")
            A("v_sub_f32 v16, v24, v18")
            A("v_sub_f32 v17, v28, v18")
            A(f"v_mul_f32 v16, {LOG2E:#x}, v16")
            A(f"v_mul_f32 v17, {LOG2E:#x}, v17")
            A("v_exp_f32 v16, v16")
            A("v_exp_f32 v17, v17")
            A("v_mul_f32 v18, v26, v16")
            A("v_fmac_f32 v18, v30, v17")
            for r in (4, 8):
                self.nop(2)
                A(f"v_add_f32_dpp v18, v18, v18 row_ror:{r} {DPPF}")
            A("v_rcp_f32 v18, v18")
            A("s_mov_b32 s47, 0")
            A("v_mul_f32 v16, v16, v18")
            A("v_mul_f32 v17, v17, v18")
        self.tpoll("L_h_o", ol, [33, 35, 37, 39], sleep=self.osleep, first=weights, issued=True)
        self.stamp(11)
        if self.gplate:
            A("s_cmp_eq_u32 s40, 1")
            A("s_cbranch_scc1 L_h_gpst")
            A("L_h_gpst_done:")
        A("v_mul_f32 v32, v16, v32")
        A("v_mul_f32 v34, v16, v34")
        A("v_fmac_f32 v32, v17, v36")
        A("v_fmac_f32 v34, v17, v38")
        for r in (4, 8):
            self.nop(1)
            A(f"v_add_f32_dpp v32, v32, v32 row_ror:{r} {DPPF}")
            A(f"v_add_f32_dpp v34, v34, v34 row_ror:{r} {DPPF}")
        A("v_cvt_pk_bf16_f32 v32, v32, v34")
        A("s_mov_b32 s44, 0xffff0000"); A("s_mov_b32 s45, 0xffff0000")
        for r in range(4):
            A(f"v_mov_b32_dpp v{28+r}, v32 quad_perm:[{r},{r},{r},{r}] {DPPF}")
        self.nop(2)
        B = lambda t: (192 if self.wolate else W) + (16 if t & 1 else 0) + 4 * (t // 2)
        for t in (0, 4, 1, 5, 2, 6, 3, 7):
            self.mfma(96 + 4 * t, 28, B(t), None)
        A("s_mov_b32 exec_lo, 0x03ff03ff")
        A("s_mov_b32 exec_hi, 0")
        for t in range(4):
            if t > 0:
                self.nop(1)
            A(f"v_cndmask_b32 v{20+t}, v{96+4*t}, v{112+4*t}, s[44:45]")
        A(f"ds_write_b128 v237, v[20:23] offset:{L_X}")
        A("s_mov_b64 exec, -1")
        A("s_waitcnt lgkmcnt(0)")
        A("s_barrier")
        A("s_cmp_eq_u32 s40, 0")
        A("s_cbranch_scc0 L_h_nou")
        for k in range(4):
            A(f"ds_read_b64 v[{8+2*k}:{9+2*k}], v238 offset:{L_X+320*k}")
        A("s_mov_b32 exec_lo, -1")
        A("s_mov_b32 exec_hi, 0xff")
        A("s_waitcnt lgkmcnt(2)")
        A("v_add_f32 v8, v8, v10")
        A("v_add_f32 v9, v9, v11")
        A("s_waitcnt lgkmcnt(0)")
        A("v_add_f32 v12, v12, v14")
        A("v_add_f32 v13, v13, v15")
        A("v_add_f32 v40, v8, v12")
        A("v_add_f32 v42, v9, v13")
        A(f"buffer_store_dwordx4 v[40:43], v228, s[48:51], s59 offen {self.uflag}")
        A("L_h_nou:")
        self.stamp(12)
        A("s_cmp_eq_u32 s55, 1")
        A("s_cbranch_scc0 L_h_end")
        NP = self.npipe
        SZ = 32 if self.gplate else 16
        NL = SZ // 4
        def uload(p):
            for i in range(4):
                A(f"buffer_load_dwordx4 v[{128+SZ*p+4*i}:{131+SZ*p+4*i}], v230, s[48:51], s52 offen offset:{640*i} {self.lflag}")
            if self.gplate:
                for i in range(4):
                    A(f"buffer_load_dwordx4 v[{144+SZ*p+4*i}:{147+SZ*p+4*i}], v230, s[48:51], s56 offen offset:{640*i} sc1")
        A("s_mov_b32 s47, 0")
        for p in range(NP):
            uload(p)
            if p < NP - 1 and self.gap:
                A(f"s_sleep {self.gap}")
        A("L_c_u:")
        for p in range(NP):
            A(f"s_waitcnt vmcnt({NL*(NP-1)})")
            self.tagcheck(range(129 + SZ * p, 128 + SZ * (p + 1), 2))
            A(f"s_cbranch_scc0 L_c_u{p}")
            if NP == 1 and self.usleep:
                A(f"s_sleep {self.usleep}")
            uload(p)
        A("s_cmp_lt_u32 s47, 0x40000")
        A("s_cbranch_scc1 L_c_u")
        for p in range(NP - 1, -1, -1):
            A(f"L_c_u{p}:")
            self.stamp(13)
            R = 128 + SZ * p
            if self.gplate:
                G = R + 16
                for X in (G, R):
                    A(f"v_add_f32 v{X}, v{X}, v{X+4}")
                    A(f"v_add_f32 v{X+2}, v{X+2}, v{X+6}")
                    A(f"v_add_f32 v{X+8}, v{X+8}, v{X+12}")
                    A(f"v_add_f32 v{X+10}, v{X+10}, v{X+14}")
                    A(f"v_add_f32 v{X}, v{X}, v{X+8}")
                    A(f"v_add_f32 v{X+2}, v{X+2}, v{X+10}")
                A(f"v_permlane32_swap_b32 v{G}, v{G+2}")
                self.nop(1)
                A(f"v_permlane32_swap_b32 v{R}, v{R+2}")
                A(f"v_add_f32 v{G}, v{G}, v{G+2}")
                A(f"v_add_f32 v{R}, v{R}, v{R+2}")
                self.nop(2)
                A(f"v_permlane16_swap_b32 v{G}, v{R}")
                self.nop(1)
                A(f"v_add_f32 v{G}, v{G}, v{R}")
                self.nop(2)
                A(f"v_add_f32_dpp v{G}, v{G}, v{G} row_ror:8 {DPPF}")
                self.bfr(8, G)
                A(f"v_mul_f32 v9, {LOG2E | 0x80000000:#x}, v8")
                A("v_mov_b32 v24, v8")
                A("v_exp_f32 v9, v9")
                A("v_mov_b32 v25, v8")
                A("v_add_f32 v9, 1.0, v9")
                A("v_rcp_f32 v9, v9")
                A("v_permlane16_swap_b32 v25, v24")
                A("v_mul_f32 v8, v8, v9")
                self.bfr(224, 8)
            else:
                self.colsum(R)
                self.bfr(24, R)
            A("v_mul_f32 v24, v24, v224")
            self.bfr(24, 24)
            A("v_add_f32 v24, v24, v225")
            A("v_cvt_pk_bf16_f32 v24, v24, v24")
            A("s_mov_b32 exec_lo, 0xff")
            A("s_mov_b32 exec_hi, 0xff")
            A("buffer_store_short v24, v229, s[60:63], s53 offen")
            if p > 0:
                A("s_branch L_c_fin")
        A("L_c_fin:")
        A(f"s_cmp_eq_u32 s2, {CONS0}")
        A("s_cbranch_scc0 L_h_end")
        A(f"s_mov_b32 s47, {WS_E:#x}")
        A("s_mov_b64 exec, 1")
        A("buffer_store_dword v41, off, s[48:51], s47 sc1")
        A("L_h_end:")
        if self.spin is not None and not (self.probe is not None and self.probe >= 100):
            A(f"s_cmp_eq_u32 s2, {self.spin}")
            A("s_cbranch_scc0 L_nospin")
            if self.probe is not None:
                A("s_cmp_eq_u32 s40, 0")
                A("s_cbranch_scc0 L_nospin")
                if self.probe == 99:
                    A("s_memrealtime s[96:97]")
                A("s_waitcnt lgkmcnt(0)")
                A("s_sub_u32 s96, s96, s100")
                A("s_add_u32 s100, s100, s96")
            A("L_spin:")
            A("s_memrealtime s[98:99]")
            A("s_waitcnt lgkmcnt(0)")
            A("s_sub_u32 s98, s98, s100")
            A("s_cmp_lt_u32 s98, 10000")
            A("s_cbranch_scc1 L_spin")
            A("L_nospin:")
        self.stamp(14)
        if self.diag:
            for _ in range(3):
                A("s_sleep 127")
        self.flush_stamps(15)
        A("s_endpgm")
        if self.gplate:
            A("L_h_gpst:")
            A("s_mov_b32 exec_lo, 0x03ff03ff")
            A("s_mov_b32 exec_hi, 0x03ff03ff")
            A("buffer_store_dwordx4 v[240:243], v231, s[48:51], s56 offen sc1")
            A("s_mov_b64 exec, -1")
            A("s_branch L_h_gpst_done")
        A("L_h_mlwait:")
        self.tpoll("L_h_ml", mll, [25, 27, 29, 31], sleep=self.mlsleep)
        for t in ol:
            A(t)
        A("v_max_f32 v18, v24, v28")
        A("s_branch L_h_mlok")
        self.ffn()
        if self.fb:
            self.pacer()

    def pacer(self):
        A = self.A
        A("L_pacer:")
        A("v_mov_b32 v4, 0")
        A(f"s_mov_b32 s52, {self.cp0}")
        A(f"s_mov_b32 s53, {WS_TS}")
        A("v_mov_b32 v9, s54")
        A("L_p_loop:")
        self.lds_wait("L_p_w0", 4, L_PROG, "s_cmp_ge_u32", "s52", 8)
        A(f"ds_read_b32 v8, v4 offset:{L_PROG+4}")
        A("s_lshl_b32 s41, s2, 3")
        A("s_add_u32 s41, s41, s53")
        A(f"s_add_u32 s52, s52, {self.cplag}")
        A("s_waitcnt lgkmcnt(0)")
        A("v_readfirstlane_b32 s43, v8")
        A("s_cmp_lt_u32 s2, 32")
        A("s_cbranch_scc0 L_p_nopub")
        A("s_mov_b64 exec, 1")
        A("buffer_store_dwordx2 v[8:9], off, s[48:51], s41 sc1")
        A("s_mov_b64 exec, -1")
        A("L_p_nopub:")
        self.lds_wait("L_p_w1", 4, L_PROG, "s_cmp_ge_u32", "s52", 8)
        A("s_mov_b32 s44, 0")
        A("L_p_sum:")
        A("s_load_dwordx16 s[16:31], s[38:39], s53")
        A("s_add_u32 s53, s53, 64")
        A("s_waitcnt lgkmcnt(0)")
        for i in range(8):
            A(f"s_sub_u32 s41, s{16+2*i}, s43")
            A(f"s_cmp_eq_u32 s{17+2*i}, s54")
            A(f"s_cselect_b32 s41, s41, {self.cplag * self.tau}")
            A("s_add_u32 s44, s44, s41")
        A("s_and_b32 s41, s53, 0xff")
        A("s_cbranch_scc1 L_p_sum")
        A("s_ashr_i32 s44, s44, 5")
        A("s_add_u32 s44, s44, s43")
        A("v_mov_b32 v7, s44")
        A(f"ds_write_b32 v4, v7 offset:{L_ANCH}")
        A(f"s_add_u32 s52, s52, {self.cpd - self.cplag}")
        A(f"s_cmp_lt_u32 s52, {self.cp0 + self.ncp * self.cpd}")
        A("s_cbranch_scc1 L_p_loop")
        A("s_branch L_h_nocons")

    def gaddr(self):
        A = self.A
        A("v_lshrrev_b32 v6, 1, v1")
        A("v_and_b32 v7, 1, v1")
        A("v_lshl_add_u32 v6, v7, 1, v6")
        A("v_lshl_add_u32 v6, v2, 2, v6")
        A("v_lshlrev_b32 v231, 4, v6")

    def gettag(self):
        A = self.A
        A("v_mov_b32 v6, 0")
        A(f"ds_read_b64 v[6:7], v6 offset:{L_TAG}")
        A("s_waitcnt lgkmcnt(0)")
        A("v_readfirstlane_b32 s54, v6")
        A("v_readfirstlane_b32 s57, v7")

    def ffn(self):
        A = self.A
        W = self.W
        A("L_ffn:")
        self.gaddr()
        A(f"s_mul_i32 s56, s5, {32*640}")
        A("s_mul_i32 s47, s4, 640")
        A("s_add_u32 s56, s56, s47")
        A(f"s_add_u32 s56, s56, {WS_GP}")
        A(f"s_cmp_lt_u32 s4, {NFH}")
        A("s_cbranch_scc1 L_f_go")
        A("s_barrier")
        self.gettag()
        for r in range(4):
            A(f"v_mov_b32 v{28+r}, 0")
        A("s_branch L_f_pub")
        A("L_f_go:")
        self.x_issue()
        A("s_mov_b32 s44, 0xff00ff00"); A("s_mov_b32 s45, 0xff00ff00")
        A("v_mov_b32 v38, s28"); A("v_mov_b32 v39, s29")
        A("v_mov_b32 v8, s30"); A("v_mov_b32 v9, s31")
        A("v_cndmask_b32 v38, v38, v8, s[44:45]")
        A("v_cndmask_b32 v39, v39, v9, s[44:45]")
        A("v_and_b32 v8, 7, v0")
        A("v_lshlrev_b32 v8, 4, v8")
        A("v_mul_u32_u24 v9, 3456, v1")
        A("v_add_u32 v8, v8, v9")
        A(f"s_mul_i32 s47, s5, {80*3456}")
        A("s_lshl_b32 s41, s4, 7")
        A("s_add_u32 s47, s47, s41")
        A("v_add_u32 v8, s47, v8")
        A("v_mov_b32 v9, 0")
        A("v_lshl_add_u64 v[38:39], v[38:39], 0, v[8:9]")
        A("s_mov_b32 s42, 13824"); A("s_mov_b32 s43, 0")
        if self.fdelay == 1:
            A("s_waitcnt vmcnt(0)")
        if self.fdelay == 2:
            A("s_barrier")
        for i in range(20):
            sl = W + 4 * i
            A(f"global_load_dwordx4 v[{sl}:{sl+3}], v[38:39], off {self.wflag}")
            A("v_lshl_add_u64 v[38:39], v[38:39], 0, s[42:43]")
        self.srd(12, 32, 1728 * 1280)
        A("v_mul_u32_u24 v36, 1280, v1")
        A("v_lshl_add_u32 v36, v2, 4, v36")
        A("v_mov_b32 v37, 0x7fffffff")
        A("s_mov_b32 s44, 0x03ff03ff"); A("s_mov_b32 s45, 0x03ff03ff")
        A("v_cndmask_b32 v36, v37, v36, s[44:45]")
        A(f"s_mul_i32 s46, s4, {64*1280}")
        A("s_add_u32 s46, s46, s7")
        for n in range(16):
            sl = 144 + 4 * n
            A(f"buffer_load_dwordx4 v[{sl}:{sl+3}], v36, s[12:15], s46 offen {self.wflag}")
            A(f"s_add_u32 s46, s46, {4*1280}")
        if self.fdelay != 2:
            A("s_barrier")
        self.gettag()
        self.masks(12, 6, 44)
        A("s_waitcnt vmcnt(36)")
        self.ln()
        for n in range(20):
            self.abuild(24, 21 + n // 16, 12, n % 16)
            A(f"s_waitcnt vmcnt({35-n})")
            self.nop(1)
            self.mfma(28, 24, W + 4 * n, None if n == 0 else 28)
        A("s_lshl_b32 s42, s6, 10")
        A(f"s_add_u32 s42, s42, {WS_FX}")
        A("s_and_b32 s41, s42, 0xffffe000")
        self.nop(2)
        self.pack(54)
        self.nearfar("fx", "buffer_store_dwordx4 v[24:27], v231, s[48:51], s42 offen")
        A("s_waitcnt vmcnt(0)")
        A("s_sleep 16")
        R = 64
        self.gather8("L_f_x", R, 16, 0)
        self.bfr(R, R)
        self.bfr(R + 2, R + 2)
        A(f"v_mov_b32 v{R+1}, v{R}")
        A(f"v_mov_b32 v{R+3}, v{R+2}")
        self.nop(2)
        A(f"v_permlane32_swap_b32 v{R}, v{R+1}")
        A(f"v_permlane32_swap_b32 v{R+2}, v{R+3}")
        self.nop(1)
        A(f"v_max_f32 v{R}, 0, v{R}")
        A(f"v_max_f32 v{R+2}, 0, v{R+2}")
        A(f"v_mul_f32 v{R}, v{R}, v{R+1}")
        A(f"v_mul_f32 v{R+2}, v{R+2}, v{R+3}")
        A(f"v_cvt_pk_bf16_f32 v{R}, v{R}, v{R}")
        A(f"v_cvt_pk_bf16_f32 v{R+1}, v{R+2}, v{R+2}")
        A("v_lshlrev_b32 v6, 3, v0")
        A("v_and_b32 v6, 0xff, v6                ; (lane&31)*8")
        A(f"ds_write_b64 v6, v[{R}:{R+1}] offset:{L_H}")
        A("v_lshlrev_b32 v6, 1, v4               ; (4j+s)*4")
        A(f"ds_read_b32 v21, v6 offset:{L_H}")
        A("s_waitcnt lgkmcnt(0)")
        for n in range(16):
            self.abuild(24, 21, 12, n)
            self.nop(2)
            self.mfma(28, 24, 144 + 4 * n, None if n == 0 else 28)
        self.nop(4)
        A("L_f_pub:")
        self.pack(54)
        if self.gplate:
            for r in range(4):
                A(f"v_mov_b32 v{240+r}, v{24+r}")
            A("s_branch L_h_shadow")
            return
        A("s_mov_b32 exec_lo, 0x03ff03ff")
        A("s_mov_b32 exec_hi, 0x03ff03ff")
        A("buffer_store_dwordx4 v[24:27], v231, s[48:51], s56 offen sc1")
        A("s_mov_b64 exec, -1")
        A("s_branch L_h_shadow")


if __name__ == "__main__":
    out = sys.argv[1]
    kw = eval("dict(" + (sys.argv[2] if len(sys.argv) > 2 else "") + ")")
    open(out, "w").write(Gen(**kw).gen())
```
